```python
import torch

def _softmax(x, axis=-1):
    return torch.softmax(x, dim=axis)
def _gelu(x):
    return torch.nn.functional.gelu(x, approximate="tanh")
def _silu(x):
    return torch.nn.functional.silu(x)
def _sigmoid(x):
    return torch.sigmoid(x)
def _layernorm(x, axis=-1, eps=1e-5):
    m = x.mean(dim=axis, keepdim=True)
    v = x.var(dim=axis, keepdim=True, unbiased=False)
    return (x - m) / torch.sqrt(v + eps)
def _scatter_add(tgt, idx, src, axis=0):
    return tgt.clone().index_add_(axis, idx, src)
def _segment_sum(src, seg, n):
    out = torch.zeros((n,) + src.shape[1:], dtype=src.dtype)
    return out.index_add_(0, seg, src)
def _pad(x, pw):
    flat = tuple(v for pair in reversed(pw) for v in pair)
    return torch.nn.functional.pad(x, flat)

kernel_name = 'sequential_preLN__mha_block_cached__dense_activation_silu__decode'

def setup_inputs():

    _w = (lambda a: (lambda t: t.to(torch.bfloat16) if t.is_floating_point() else t)(torch.as_tensor(a)))
    def _A_setup():
        B, Sq, D = 2, 1, 640
        H, Sk, Dh = 32, 8192, 192
        return {
            "x": _w((lambda *s: torch.randn(*s, dtype=torch.bfloat16) * 0.05)(B, Sq, D)),
            "k_cache": _w((lambda *s: torch.randn(*s, dtype=torch.bfloat16) * 3.2)(B, H, Sk, Dh)),
            "v_cache": _w((lambda *s: torch.randn(*s, dtype=torch.bfloat16) * 0.8)(B, H, Sk, Dh)),
            "wq": _w((lambda *s: torch.randn(*s, dtype=torch.bfloat16) * 3.2)(D, H * Dh) * (D ** -0.5)),
            "wo": _w((lambda *s: torch.randn(*s, dtype=torch.bfloat16) * 0.8)(H * Dh, D) * ((H * Dh) ** -0.5)),
        }
    _A_in = _A_setup()

    def _B_setup():
        B, S, D, F = 2, 1, 640, 1536
        return {
            "x": _w((lambda *s: torch.randn(*s, dtype=torch.bfloat16) * 0.05)(B, S, D)),
            "w1": _w((lambda *s: torch.randn(*s, dtype=torch.bfloat16) * 3.2)(D, F) * (D ** -0.5)),
            "w2": _w((lambda *s: torch.randn(*s, dtype=torch.bfloat16) * 0.8)(F, D) * (F ** -0.5)),
        }
    _B_in = _B_setup()

    return {
        "A_x": _A_in["x"],
        "A_k_cache": _A_in["k_cache"],
        "A_v_cache": _A_in["v_cache"],
        "A_wq": _A_in["wq"],
        "A_wo": _A_in["wo"],
        "B_x": _B_in["x"],
        "B_w1": _B_in["w1"],
        "B_w2": _B_in["w2"],
    }

def reference(A_x, A_k_cache, A_v_cache, A_wq, A_wo, B_x, B_w1, B_w2):
    def _A_ref(x, k_cache, v_cache, wq, wo):
        B, Sq, D = x.shape
        H, Dh = 32, 192
        q = (lambda x, *d: x.permute(*d))((x @ wq).reshape(B, Sq, H, Dh), 0, 2, 1, 3)
        scores = torch.einsum("bhqd,bhkd->bhqk", q, k_cache) * (Dh ** -0.5)
        p = _softmax(scores, axis=-1)
        o = torch.einsum("bhqk,bhkd->bhqd", p, v_cache)
        return (lambda x, *d: x.permute(*d))(o, 0, 2, 1, 3).reshape(B, Sq, H * Dh) @ wo

    def _B_ref(x, w1, w2):
        h = torch.einsum("bsd,df->bsf", x, w1)
        h = _silu(h)
        out = torch.einsum("bsf,fd->bsd", h, w2)
        return out

    x = A_x
    h = x + _A_ref(_layernorm(x, axis=-1), A_k_cache, A_v_cache, A_wq, A_wo)
    h2 = h + _B_ref(_layernorm(h, axis=-1), B_w1, B_w2)
    return h2
```

```python
import re

REG_RE = re.compile(r'\b([vsa])(?:(\d+)\b|\[(\d+):(\d+)\])')

def regs_of(op):
    out = set()
    for m in REG_RE.finditer(op):
        k = m.group(1)
        if m.group(2) is not None:
            out.add((k, int(m.group(2))))
        else:
            for i in range(int(m.group(3)), int(m.group(4)) + 1):
                out.add((k, i))
    if re.search(r'\bvcc\b', op): out |= {('s', 'vcc')}
    if re.search(r'\bexec\b', op): out |= {('s', 'exec')}
    if re.search(r'\bm0\b', op): out |= {('s', 'm0')}
    return out

def split_ops(s):
    ops, depth, cur = [], 0, ''
    for ch in s:
        if ch == '[': depth += 1
        if ch == ']': depth -= 1
        if ch == ',' and depth == 0:
            ops.append(cur.strip()); cur = ''
        else:
            cur += ch
    if cur.strip(): ops.append(cur.strip())
    return ops

TRANS = ('v_exp_f32', 'v_log_f32', 'v_rcp_f32', 'v_rsq_f32', 'v_sqrt_f32', 'v_sin_f32', 'v_cos_f32')
MFMA_PASSES = {'v_mfma_f32_16x16x32_bf16': 4, 'v_mfma_f32_16x16x16_bf16': 4, 'v_mfma_f32_32x32x16_bf16': 8}

class Ins:
    __slots__ = ('text', 'mn', 'kind', 'wr', 'rd', 'states', 'dpp', 'srcc', 'srcab', 'wide_store', 'passes')

def classify(text):
    t = text.split(';')[0].strip()
    parts = t.split(None, 1)
    mn = parts[0]
    rest = parts[1] if len(parts) > 1 else ''
    ops = split_ops(rest)
    I = Ins(); I.text = text; I.mn = mn; I.wr = set(); I.rd = set(); I.states = 1
    I.dpp = False; I.srcc = set(); I.srcab = set(); I.wide_store = False; I.passes = 0
    base = re.sub(r'_(e32|e64|dpp|sdwa)$', '', mn)
    def R(i): return regs_of(ops[i]) if i < len(ops) else set()
    allr = set()
    for o in ops: allr |= regs_of(o)
    if mn == 's_nop':
        I.kind = 'nop'; I.states = int(ops[0], 0) + 1
    elif mn.startswith('v_mfma'):
        I.kind = 'mfma'; I.passes = MFMA_PASSES[base]
        I.wr = R(0); I.srcab = R(1) | R(2); I.srcc = R(3); I.rd = I.srcab | I.srcc
    elif mn.startswith('v_'):
        I.kind = 'valu'
        I.dpp = ('_dpp' in mn) or any(k in rest for k in ('quad_perm', 'row_shr', 'row_shl', 'row_ror', 'row_mirror', 'row_half_mirror', 'row_bcast', 'row_newbcast'))
        if base in TRANS: I.kind = 'trans'
        if base.startswith('v_dot'): I.kind = 'dot'
        if base.startswith('v_permlane'):
            I.kind = 'permlane'; I.wr = R(0) | R(1); I.rd = R(0) | R(1)
        elif base in ('v_readlane_b32', 'v_readfirstlane_b32'):
            I.kind = 'readlane'; I.wr = R(0)
            for i in range(1, len(ops)): I.rd |= R(i)
        else:
            I.wr = R(0)
            st = 1
            if base in ('v_add_co_u32', 'v_sub_co_u32', 'v_addc_co_u32', 'v_subb_co_u32', 'v_div_scale_f32'):
                I.wr |= R(1); st = 2
            for i in range(st, len(ops)): I.rd |= R(i)
            if base in ('v_fmac_f32', 'v_dot2c_f32_bf16', 'v_writelane_b32') or I.dpp or 'sdwa' in mn:
                I.rd |= R(0)
            if base == 'v_cndmask_b32' and len(ops) == 3: I.rd |= {('s', 'vcc')}
            if base == 'v_div_fmas_f32': I.rd |= {('s', 'vcc')}
    elif mn.startswith('buffer_') or mn.startswith('global_'):
        I.kind = 'vmem'
        if '_load' in mn and not re.search(r'\blds\b', rest):
            I.wr = R(0)
            for i in range(1, len(ops)): I.rd |= R(i)
            if 'd16' in mn: I.rd |= R(0)
        else:
            I.rd = allr
            if 'atomic' in mn and re.search(r'\bsc0\b', rest): I.wr = R(0)
            if re.search(r'store_dwordx[34]', mn): I.wide_store = True
            if re.search(r'\blds\b', rest): I.rd |= {('s', 'm0')}
    elif mn.startswith('ds_'):
        I.kind = 'ds'
        if mn.startswith('ds_read') or mn.startswith('ds_bpermute') or mn.startswith('ds_swizzle') or mn.startswith('ds_permute'):
            I.wr = R(0)
            for i in range(1, len(ops)): I.rd |= R(i)
        else:
            I.rd = allr
    elif mn.startswith('s_'):
        I.kind = 'salu'
        if mn.startswith(('s_cmp', 's_waitcnt', 's_branch', 's_cbranch', 's_barrier', 's_endpgm', 's_sleep', 's_setprio', 's_bitcmp')):
            I.rd = allr
        else:
            I.wr = R(0)
            for i in range(1, len(ops)): I.rd |= R(i)
            if 'saveexec' in mn: I.wr |= {('s', 'exec')}
    else:
        raise ValueError("unknown instruction: " + text)
    return I

def is_valu(I): return I.kind in ('valu', 'trans', 'dot', 'permlane', 'readlane')

def need(P, C):
    n = 0
    vw = {r for r in P.wr if r[0] in 'va'}
    sw = {r for r in P.wr if r[0] == 's'}
    if is_valu(P):
        if vw & C.rd:
            if C.dpp: n = max(n, 2)
            if C.kind == 'permlane': n = max(n, 2)
            if C.kind == 'readlane': n = max(n, 1)
            if C.kind == 'mfma': n = max(n, 2)
            if P.kind == 'trans' and is_valu(C) and C.kind != 'trans': n = max(n, 1)
            if P.kind == 'trans' and C.kind in ('vmem', 'ds', 'mfma'): n = max(n, 1)
        if P.kind == 'dot' and (vw & (C.rd | C.wr)):
            same = (C.kind == 'dot' and C.mn == P.mn)
            if same:
                ops = split_ops(C.text.split(';')[0].split(None, 1)[1])
                ab = regs_of(ops[1]) | regs_of(ops[2])
                if vw & ab: n = max(n, 3)
            else:
                n = max(n, 3)
        if sw & C.rd:
            if is_valu(C): n = max(n, 2)
            if C.kind == 'readlane': n = max(n, 4)
            if C.mn.startswith('v_div_fmas'): n = max(n, 4)
            if C.kind == 'vmem': n = max(n, 5)
            if C.kind == 'salu': n = max(n, 1)
        if ('s', 'exec') in sw:
            if C.dpp: n = max(n, 5)
            if C.kind in ('readlane', 'permlane', 'mfma'): n = max(n, 4)
    if P.kind == 'mfma':
        d = P.wr
        tbl = {2: (2, 4, 5, 5), 4: (0, 6, 8, 8), 8: (0, 10, 12, 12), 16: (0, 18, 20, 20)}[P.passes]
        if C.kind == 'mfma':
            if d & C.srcc:
                if d == C.srcc and C.passes == P.passes: n = max(n, tbl[0])
                else: n = max(n, tbl[1])
            if d & C.srcab: n = max(n, tbl[2])
            if (d & C.wr) and not (d & C.srcc): n = max(n, tbl[1])
        else:
            if d & (C.rd | C.wr): n = max(n, tbl[3])
        if is_valu(C) and (P.srcc & C.wr):
            n = max(n, {2: 1, 4: 3, 8: 7, 16: 15}[P.passes])
    if P.kind == 'vmem' and P.wide_store:
        ops = split_ops(P.text.split(';')[0].split(None, 1)[1])
        data = regs_of(ops[0]) if P.mn.startswith('buffer_') else regs_of(ops[1])
        if data & C.wr: n = max(n, 2)
    if P.kind == 'salu' and ('s', 'm0') in sw and ('s', 'm0') in C.rd and C.kind in ('vmem', 'ds'):
        n = max(n, 1)
    return n

class Asm:
    def __init__(self):
        self.lines = []
        self.hist = []
        self.vm_issued = 0
        self.maxv = 0; self.maxs = 0; self.maxa = -1
    def raw(self, text):
        self.lines.append(text)
    def comment(self, text):
        self.lines.append('    ; ' + text)
    def label(self, name):
        self.lines.append(name + ':')
    def fence(self, n=None):
        self.hist = []
    def e(self, text):
        I = classify(text)
        req = 0; dist = 0
        for P in reversed(self.hist):
            k = need(P, I)
            if k > dist: req = max(req, k - dist)
            dist += P.states
            if dist >= 24: break
        while req > 0:
            k = min(req, 16)
            N = classify(f's_nop {k-1}')
            self.lines.append(f'    s_nop {k-1}')
            self.hist.append(N); req -= k
        self.lines.append('    ' + text)
        self.hist.append(I)
        if len(self.hist) > 40: self.hist = self.hist[-40:]
        for r in I.wr | I.rd:
            if r[0] == 'v': self.maxv = max(self.maxv, r[1])
            elif r[0] == 'a': self.maxa = max(self.maxa, r[1])
            elif isinstance(r[1], int): self.maxs = max(self.maxs, r[1])
        if I.kind == 'vmem':
            self.vm_issued += 1
            return self.vm_issued
        return None
    def wait_vm(self, ticket, extra=''):
        n = self.vm_issued - ticket
        assert 0 <= n
        n = min(n, 63)
        self.e(f's_waitcnt vmcnt({n})' + extra)
    def text(self):
        return '\n'.join(self.lines) + '\n'
```

```python
import sys, struct
from asmlib import Asm

NAME = "sequential_preLN__mha_block_cached__dense_activation_silu__decode_kernel"
HEADER = open(__file__.replace("gen_fused.py", "header.txt")).read()

def f32(x): return struct.unpack('<I', struct.pack('<f', x))[0]

WS_PART = 0x000000
WS_Y    = 0x040000
WS_H    = 0x068000
WS_Z    = 0x070000
WS_STAMP= 0x100000
WS_SIZE = 0x200000
L_RED  = 0
L_QS   = 6656
L_MX   = 7040
L_OB   = 7168
L_LN   = 8192
L_W    = 18432
LDS_BYTES = L_W + 53248

KVBYTES = 2*32*8192*384

def gen(depth=8, wpos=20, stamps=False, spin_limit=1 << 22, ring_tiles=13, kvflags="nt", wqflags="nt", wflags="nt"):
    A = Asm(); e = A.e
    A.raw(HEADER.rstrip('\n'))
    A.raw(f"; @launch grid=(256,1,1) block=(512,1,1) lds={LDS_BYTES}")
    A.raw('.amdgcn_target "amdgcn-amd-amdhsa--gfx950"\n.text\n.globl %s\n.p2align 8\n.type %s,@function\n%s:' % (NAME, NAME, NAME))
    VT, VLANE, VKV, VQO = 0, 1, 2, 3
    T = list(range(4, 20))
    VG, VC, VX1, VX2 = 20, 21, 22, 23
    Q = 24; ACC = 36; SC = 60; RING = 92
    SP = list(range(RING + ring_tiles*12, 256))
    assert len(SP) >= 8
    VWG, VWL, VRED = SP[0], SP[1], SP[2]
    SRD_X, SRD_K, SRD_V, SRD_WQ, SRD_WT, SRD_OUT, SRD_DBG, SRD_WS = 28, 32, 36, 40, 44, 48, 52, 56
    sW, sH, sB, sSPL, sMEM, sKVB, sOFF = 60, 61, 62, 63, 64, 65, 66
    sMASK, sR, sRS, sT0, sT1, sT2, sT3, sSPIN, sF0 = 67, 68, 69, 70, 71, 72, 73, 74, 75
    sPLO, sPHI = 76, 77
    sST = 80
    def srd(s): return f"s[{s}:{s+3}]"
    nstamp = [0]
    def stamp():
        if not stamps: return
        i = nstamp[0]; nstamp[0] += 1
        assert i < 10
        e(f"s_memrealtime s[{sST+2*i}:{sST+2*i+1}]")
    e("s_cmp_ge_u32 s2, 256")
    e("s_cbranch_scc1 L_end")
    e("s_load_dwordx16 s[4:19], s[0:1], 0")
    e("s_load_dwordx4 s[20:23], s[0:1], 64")
    e("s_load_dwordx2 s[24:25], s[0:1], 80")
    stamp()
    e(f"v_lshrrev_b32 v{T[0]}, 6, v0")
    e(f"v_and_b32 v{VLANE}, 63, v0")
    e(f"v_readfirstlane_b32 s{sW}, v{T[0]}")
    e(f"v_lshrrev_b32 v{VG}, 3, v{VLANE}")
    e(f"v_and_b32 v{VC}, 7, v{VLANE}")
    e(f"s_and_b32 s{sT0}, s2, 7")
    e(f"s_lshr_b32 s{sT1}, s2, 3")
    e(f"s_lshr_b32 s{sT2}, s{sT1}, 3")
    e(f"s_lshl_b32 s{sH}, s{sT0}, 2")
    e(f"s_add_u32 s{sH}, s{sH}, s{sT2}")
    e(f"s_and_b32 s{sMEM}, s{sT1}, 7")
    e(f"s_lshr_b32 s{sB}, s{sMEM}, 2")
    e(f"s_and_b32 s{sSPL}, s{sMEM}, 3")
    e(f"s_lshl_b32 s{sT0}, s{sB}, 5")
    e(f"s_add_u32 s{sT0}, s{sT0}, s{sH}")
    e(f"s_lshl_b32 s{sT0}, s{sT0}, 2")
    e(f"s_add_u32 s{sT0}, s{sT0}, s{sSPL}")
    e(f"s_mul_i32 s{sKVB}, s{sT0}, 786432")
    e(f"s_mov_b32 s{sMASK}, 0xffff0000")
    e(f"s_mov_b32 s{sPLO}, 0x05040100")
    e(f"s_mov_b32 s{sPHI}, 0x07060302")
    e(f"s_mul_i32 s{sR}, s{sH}, 5")
    e(f"s_add_u32 s{sR}, s{sR}, s{sMEM}")
    e(f"s_mul_i32 s{sF0}, s{sH}, 3")
    e(f"s_add_u32 s{sF0}, s{sF0}, s{sMEM}")
    e(f"s_sub_u32 s{sF0}, s{sF0}, 5")
    e(f"s_lshl_b32 s{sF0}, s{sF0}, 4")
    e(f"v_mul_u32_u24 v{VKV}, 384, v{VG}")
    e(f"v_lshl_add_u32 v{VKV}, v{VC}, 4, v{VKV}")
    e(f"s_mul_i32 s{sT0}, s{sW}, 3072")
    e(f"v_add_u32 v{VKV}, s{sT0}, v{VKV}")
    e(f"s_lshl_b32 s{sT0}, s{sW}, 3")
    e(f"v_add_u32 v{T[0]}, s{sT0}, v{VG}")
    e(f"v_mul_u32_u24 v{VQO}, 122880, v{T[0]}")
    e(f"v_lshl_add_u32 v{VQO}, v{VC}, 4, v{VQO}")
    e(f"s_mul_i32 s{sT1}, s{sB}, 1280")
    e(f"v_mul_u32_u24 v{VX1}, 20, v{T[0]}")
    e(f"v_add_u32 v{VX1}, s{sT1}, v{VX1}")
    e(f"v_mul_u32_u24 v{VX2}, 20, v{VLANE}")
    e(f"v_add_u32 v{VX2}, s{sT1}, v{VX2}")
    e(f"s_lshl_b32 s{sT0}, s{sH}, 3")
    e(f"s_add_u32 s{sT0}, s{sT0}, s{sMEM}")
    e(f"s_lshl_b32 s{sT0}, s{sT0}, 10")
    e(f"s_mov_b32 s{sT2}, {WS_SIZE}")
    e(f"s_lshl_b32 s{sT1}, s{sR}, 10")
    e(f"s_add_u32 s{sT1}, s{sT1}, {WS_Y}")
    e(f"s_cmp_eq_u32 s{sW}, 1")
    e(f"s_cselect_b32 s{sT2}, s{sT1}, s{sT2}")
    e(f"s_mul_i32 s{sT1}, s{sR}, 3072")
    e(f"s_lshl_b32 s{sT3}, s{sW}, 10")
    e(f"s_add_u32 s{sT1}, s{sT1}, s{sT3}")
    e(f"s_add_u32 s{sT1}, s{sT1}, {WS_Z - 2048}")
    e(f"s_sub_u32 s{sT3}, s{sW}, 2")
    e(f"s_cmp_lt_u32 s{sT3}, 3")
    e(f"s_cselect_b32 s{sT2}, s{sT1}, s{sT2}")
    e(f"s_lshl_b32 s{sT1}, s{sR}, 5")
    e(f"s_add_u32 s{sT1}, s{sT1}, {WS_H}")
    e(f"s_cmp_eq_u32 s{sW}, 5")
    e(f"s_cselect_b32 s{sT2}, s{sT1}, s{sT2}")
    e(f"s_cmp_ge_u32 s{sMEM}, 5")
    e(f"s_cselect_b32 s{sT2}, {WS_SIZE}, s{sT2}")
    e(f"s_cmp_eq_u32 s{sW}, 0")
    e(f"s_cselect_b32 s{sT2}, s{sT0}, s{sT2}")
    e(f"v_lshlrev_b32 v{T[1]}, 4, v{VLANE}")
    e(f"v_add_u32 v{T[1]}, s{sT2}, v{T[1]}")
    e(f"s_cmp_eq_u32 s{sW}, 5")
    e(f"s_cselect_b32 s{sT3}, 2, 64")
    e(f"v_cmp_le_u32 vcc, s{sT3}, v{VLANE}")
    e(f"v_mov_b32 v{T[2]}, {WS_SIZE}")
    e(f"v_cndmask_b32 v{T[1]}, v{T[1]}, v{T[2]}, vcc")
    for i in range(4): e(f"v_mov_b32 v{T[4+i]}, -1")
    e("s_waitcnt lgkmcnt(0)")
    def mk(s, p, size):
        e(f"s_mov_b32 s{s}, s{p}"); e(f"s_mov_b32 s{s+1}, s{p+1}"); e(f"s_mov_b32 s{s+2}, {size}"); e(f"s_mov_b32 s{s+3}, 0x20000")
    mk(SRD_WS, 24, WS_SIZE)
    mk(SRD_X, 4, 2560)
    mk(SRD_WQ, 10, 640*6144*2)
    tk_clear = e(f"buffer_store_dwordx4 v[{T[4]}:{T[7]}], v{T[1]}, {srd(SRD_WS)}, 0 offen sc1")
    XS = T[8]; XO = SC + 16
    e(f"buffer_load_dwordx4 v[{XS}:{XS+3}], v{VX2}, {srd(SRD_X)}, 0 offen")
    e(f"buffer_load_dword v{XS+4}, v{VX2}, {srd(SRD_X)}, 0 offen offset:16")
    e(f"buffer_load_dwordx4 v[{XO}:{XO+3}], v{VX1}, {srd(SRD_X)}, 0 offen")
    tk_x = e(f"buffer_load_dword v{XO+4}, v{VX1}, {srd(SRD_X)}, 0 offen offset:16")
    mk(SRD_K, 6, KVBYTES); mk(SRD_V, 8, KVBYTES)
    items = [('Q', t) for t in range(10)] + [('K', t) for t in range(32)] + [('V', t) for t in range(32)]
    items.insert(10 + wpos, ('W', 0))
    free = list(range(ring_tiles))
    slot_of = {}; tick = {}
    nxt = [0]
    def issue(idx):
        kind, t = items[idx]
        if kind == 'W':
            sl = [free.pop(0) for _ in range(3)]
            slot_of[idx] = sl
            regs = [RING + s*12 + j*4 for s in sl for j in range(3)][:8]
            tk = []
            for kk in range(8):
                if kk == 0: so = "0"
                else:
                    e(f"s_mul_i32 s{sOFF}, s{sRS}, {kk}"); so = f"s{sOFF}"
                tk.append(e(f"buffer_load_dwordx4 v[{regs[kk]}:{regs[kk]+3}], v{VWG}, {srd(SRD_WT)}, {so} offen {wflags}"))
            tick[idx] = tk
            return
        s = free.pop(0); slot_of[idx] = [s]
        if kind == 'Q':
            e(f"s_mul_i32 s{sOFF}, s{sH}, 384")
            if t: e(f"s_add_u32 s{sOFF}, s{sOFF}, {t*12288}")
            sr, vo, fl = SRD_WQ, VQO, wqflags
        else:
            e(f"s_add_u32 s{sOFF}, s{sKVB}, {t*24576}")
            sr, vo, fl = (SRD_K if kind == 'K' else SRD_V), VKV, kvflags
        tk = []
        for j in range(3):
            r = RING + s*12 + j*4
            tk.append(e(f"buffer_load_dwordx4 v[{r}:{r+3}], v{vo}, {srd(sr)}, s{sOFF} offen offset:{j*128} {fl}"))
        tick[idx] = tk
    def refill(cur, limit):
        while nxt[0] < len(items) and nxt[0] <= cur + limit:
            need = 3 if items[nxt[0]][0] == 'W' else 1
            if len(free) < need: break
            issue(nxt[0]); nxt[0] += 1
    refill(-1, ring_tiles)
    mk(SRD_OUT, 20, 2560); mk(SRD_DBG, 22, 256)
    n_, gq = T[0], T[1]
    e(f"v_and_b32 v{n_}, 15, v{VLANE}")
    e(f"v_lshrrev_b32 v{gq}, 4, v{VLANE}")
    e(f"s_lshl_b32 s{sT0}, s{sW}, 2")
    e(f"v_add_u32 v{T[2]}, s{sT0}, v{gq}")
    e(f"v_mul_u32_u24 v{T[3]}, 43, v{T[2]}")
    e(f"v_lshrrev_b32 v{T[3]}, 7, v{T[3]}")
    e(f"v_mul_u32_u24 v{T[4]}, 3, v{T[3]}")
    e(f"v_sub_u32 v{T[4]}, v{T[2]}, v{T[4]}")
    e(f"v_lshlrev_b32 v{T[4]}, 6, v{T[4]}")
    e(f"v_lshl_add_u32 v{T[4]}, v{T[3]}, 3, v{T[4]}")
    e(f"s_mul_i32 s{sT0}, s{sH}, 192")
    e(f"v_add_u32 v{T[4]}, s{sT0}, v{T[4]}")
    e(f"v_mul_u32_u24 v{T[4]}, 1280, v{T[4]}")
    e(f"v_lshl_add_u32 v{T[4]}, v{n_}, 4, v{T[4]}")
    e(f"s_lshl_b32 s{sT0}, s{sMEM}, 8")
    e(f"v_add_u32 v{T[4]}, s{sT0}, v{T[4]}")
    e(f"v_lshrrev_b32 v{T[5]}, 1, v{n_}")
    e(f"v_mul_u32_u24 v{T[5]}, 6144, v{T[5]}")
    e(f"v_lshl_add_u32 v{T[5]}, v{gq}, 8, v{T[5]}")
    e(f"v_and_b32 v{T[6]}, 1, v{n_}")
    e(f"v_lshl_add_u32 v{T[5]}, v{T[6]}, 7, v{T[5]}")
    e(f"s_lshl_b32 s{sT0}, s{sW}, 10")
    e(f"s_add_u32 s{sT0}, s{sT0}, {L_W}")
    e(f"v_add_u32 v{T[5]}, s{sT0}, v{T[5]}")
    e(f"s_lshl_b32 s{sT0}, s{sW}, 6")
    e(f"v_add_u32 v{T[6]}, s{sT0}, v{VLANE}")
    e(f"v_lshrrev_b32 v{T[7]}, 1, v{T[6]}")
    e(f"v_mul_u32_u24 v{T[7]}, 24576, v{T[7]}")
    e(f"v_and_b32 v{T[2]}, 1, v{T[6]}")
    e(f"v_lshl_add_u32 v{T[7]}, v{T[2]}, 4, v{T[7]}")
    e(f"s_lshl_b32 s{sT0}, s{sF0}, 1")
    e(f"v_add_u32 v{T[7]}, s{sT0}, v{T[7]}")
    e(f"v_lshlrev_b32 v{T[2]}, 7, v{T[6]}")
    e(f"v_add_u32 v{T[2]}, {L_W}, v{T[2]}")
    L_W2 = L_W + 24576
    e(f"v_subrev_u32 v{T[6]}, 192, v{T[6]}")
    e(f"v_cmp_le_u32 vcc, 80, v{T[6]}")
    e(f"v_cndmask_b32 v{T[3]}, 0, 1, vcc")
    e(f"v_mul_u32_u24 v{T[13]}, 80, v{T[3]}")
    e(f"v_sub_u32 v{T[13]}, v{T[6]}, v{T[13]}")
    e(f"v_mul_u32_u24 v{T[14]}, 10240, v{T[3]}")
    e(f"v_lshl_add_u32 v{T[14]}, v{T[13]}, 4, v{T[14]}")
    e(f"s_mul_i32 s{sT0}, s{sF0}, 1280")
    e(f"v_add_u32 v{T[14]}, s{sT0}, v{T[14]}")
    e(f"v_cmp_le_u32 vcc, 160, v{T[6]}")
    e(f"v_mov_b32 v{T[15]}, 0x7f000000")
    e(f"v_cndmask_b32 v{T[14]}, v{T[14]}, v{T[15]}, vcc")
    e(f"v_lshrrev_b32 v{T[15]}, 1, v{T[13]}")
    e(f"v_lshlrev_b32 v{T[15]}, 9, v{T[15]}")
    e(f"v_lshl_add_u32 v{T[15]}, v{T[3]}, 8, v{T[15]}")
    e(f"v_and_b32 v{T[13]}, 1, v{T[13]}")
    e(f"v_lshl_add_u32 v{T[15]}, v{T[13]}, 7, v{T[15]}")
    e(f"v_add_u32 v{T[15]}, {L_W2}, v{T[15]}")
    e(f"s_cmp_lt_u32 s{sW}, 3")
    e(f"s_cselect_b64 s[{sT2}:{sT3}], -1, 0")
    e(f"v_cndmask_b32 v{VWG}, v{T[14]}, v{T[7]}, s[{sT2}:{sT3}]")
    e(f"v_cndmask_b32 v{VWL}, v{T[15]}, v{T[2]}, s[{sT2}:{sT3}]")
    e(f"s_cselect_b32 s{SRD_WT}, s16, s18")
    e(f"s_cselect_b32 s{SRD_WT+1}, s17, s19")
    e(f"s_movk_i32 s{sRS}, 1280")
    e(f"s_cselect_b32 s{sRS}, 3072, s{sRS}")
    e(f"s_mov_b32 s{SRD_WT+2}, {640*1536*2}")
    e(f"s_cmp_lt_u32 s{sMEM}, 5")
    e(f"s_cselect_b64 s[{sT2}:{sT3}], -1, 0")
    e(f"v_cndmask_b32 v{VWG}, v{VWG}, v{T[4]}, s[{sT2}:{sT3}]")
    e(f"v_cndmask_b32 v{VWL}, v{VWL}, v{T[5]}, s[{sT2}:{sT3}]")
    e(f"s_cselect_b32 s{SRD_WT}, s12, s{SRD_WT}")
    e(f"s_cselect_b32 s{SRD_WT+1}, s13, s{SRD_WT+1}")
    e(f"s_cselect_b32 s{sRS}, 1280, s{sRS}")
    e(f"s_cselect_b32 s{SRD_WT+2}, {6144*640*2}, s{SRD_WT+2}")
    e(f"s_mov_b32 s{SRD_WT+3}, 0x20000")
    e(f"s_cmp_ge_u32 s{sW}, 6")
    e(f"s_cselect_b64 s[{sT2}:{sT3}], -1, 0")
    e(f"v_mov_b32 v{T[2]}, 0x7f000000")
    e(f"v_cndmask_b32 v{VWG}, v{VWG}, v{T[2]}, s[{sT2}:{sT3}]")
    e(f"v_mul_u32_u24 v{VRED}, 96, v{VC}")
    e(f"v_mul_u32_u24 v{T[2]}, 12, v{VG}")
    e(f"v_add_u32 v{VRED}, v{VRED}, v{T[2]}")
    e(f"s_mul_i32 s{sT0}, s{sW}, 832")
    e(f"v_add_u32 v{VRED}, s{sT0}, v{VRED}")

    def wave_reduce(v, op, tmp, full=True, n=64):
        for ctl in ("quad_perm:[1,0,3,2]", "quad_perm:[2,3,0,1]", "row_half_mirror", "row_mirror"):
            e(f"v_{op}_dpp v{v}, v{v}, v{v} {ctl} row_mask:0xf bank_mask:0xf")
        e(f"v_mov_b32 v{tmp}, v{v}")
        e(f"v_permlane16_swap_b32 v{v}, v{tmp}")
        e(f"v_{op} v{v}, v{v}, v{tmp}")
        if n == 64:
            e(f"v_mov_b32 v{tmp}, v{v}")
            e(f"v_permlane32_swap_b32 v{v}, v{tmp}")
            e(f"v_{op} v{v}, v{v}, v{tmp}")
    def group_reduce(v, op, tmp):
        e(f"v_{op}_dpp v{v}, v{v}, v{v} row_ror:8 row_mask:0xf bank_mask:0xf")
        e(f"v_mov_b32 v{tmp}, v{v}")
        e(f"v_permlane16_swap_b32 v{v}, v{tmp}")
        e(f"v_{op} v{v}, v{v}, v{tmp}")
        e(f"v_mov_b32 v{tmp}, v{v}")
        e(f"v_permlane32_swap_b32 v{v}, v{tmp}")
        e(f"v_{op} v{v}, v{v}, v{tmp}")
    def bf16r(v):
        e(f"v_cvt_pk_bf16_f32 v{v}, v{v}, v{v}")
        e(f"v_lshlrev_b32 v{v}, 16, v{v}")
    def acc_reduce_to_lds():
        a = ACC
        for k in range(12): e(f"v_permlane32_swap_b32 v{a+k}, v{a+k+12}")
        for k in range(12): e(f"v_add_f32 v{a+k}, v{a+k}, v{a+k+12}")
        for k in range(6): e(f"v_permlane16_swap_b32 v{a+k}, v{a+k+6}")
        for k in range(6): e(f"v_add_f32 v{a+k}, v{a+k}, v{a+k+6}")
        for k in range(3): e(f"v_add_f32_dpp v{a+12+k}, v{a+k}, v{a+k} row_ror:8 row_mask:0xf bank_mask:0x3")
        for k in range(3): e(f"v_add_f32_dpp v{a+12+k}, v{a+3+k}, v{a+3+k} row_ror:8 row_mask:0xf bank_mask:0xc")
        e(f"ds_write2_b32 v{VRED}, v{a+12}, v{a+13} offset0:0 offset1:1")
        e(f"ds_write_b32 v{VRED}, v{a+14} offset:8")
    def axpy_tile(idx, preg, first):
        s = slot_of[idx][0]
        for j in range(3):
            A.wait_vm(tick[idx][j])
            r = RING + s*12 + j*4
            for i in range(4):
                lo, hi = T[(2*i) % 8], T[(2*i+1) % 8]
                e(f"v_lshlrev_b32 v{lo}, 16, v{r+i}")
                e(f"v_and_b32 v{hi}, s{sMASK}, v{r+i}")
                k = ACC + 8*j + 2*i
                if first:
                    e(f"v_mul_f32 v{k}, v{preg}, v{lo}"); e(f"v_mul_f32 v{k+1}, v{preg}, v{hi}")
                else:
                    e(f"v_fmac_f32 v{k}, v{preg}, v{lo}"); e(f"v_fmac_f32 v{k+1}, v{preg}, v{hi}")
    def spin_begin(lbl):
        e(f"s_mov_b32 s{sSPIN}, 0")
        A.label(lbl); A.fence()
    def spin_end(lbl, done_lbl, sleep=1):
        e(f"s_cbranch_vccz {done_lbl}")
        e(f"s_add_u32 s{sSPIN}, s{sSPIN}, 1")
        e(f"s_cmp_ge_u32 s{sSPIN}, {spin_limit}")
        e(f"s_cbranch_scc1 {done_lbl}")
        if sleep: e(f"s_sleep {sleep}")
        e(f"s_branch {lbl}")
        A.label(done_lbl); A.fence()

    A.wait_vm(tk_x)
    xs = [T[i] for i in range(0, 8)] + [SC+24, SC+25]
    xs = [SC + i for i in range(0, 10)]
    for i in range(5):
        e(f"v_lshlrev_b32 v{xs[2*i]}, 16, v{XS+i}")
        e(f"v_and_b32 v{xs[2*i+1]}, s{sMASK}, v{XS+i}")
    s_, t_ = T[0], T[1]
    e(f"v_add_f32 v{s_}, v{xs[0]}, v{xs[1]}")
    for i in range(2, 10): e(f"v_add_f32 v{s_}, v{s_}, v{xs[i]}")
    wave_reduce(s_, "add_f32", t_)
    e(f"v_mul_f32 v{s_}, {hex(f32(1.0/640))}, v{s_}")
    q_ = T[2]
    for i in range(10):
        e(f"v_sub_f32 v{xs[i]}, v{xs[i]}, v{s_}")
        if i == 0: e(f"v_mul_f32 v{q_}, v{xs[i]}, v{xs[i]}")
        else: e(f"v_fmac_f32 v{q_}, v{xs[i]}, v{xs[i]}")
    wave_reduce(q_, "add_f32", t_)
    e(f"v_mul_f32 v{q_}, {hex(f32(1.0/640))}, v{q_}")
    bf16r(s_); bf16r(q_)
    e(f"v_add_f32 v{q_}, {hex(f32(1e-5))}, v{q_}")
    bf16r(q_)
    e(f"v_sqrt_f32 v{q_}, v{q_}")
    bf16r(q_)
    e(f"v_rcp_f32 v{q_}, v{q_}")
    for i in range(5):
        e(f"v_lshlrev_b32 v{SC+2*i}, 16, v{XO+i}")
        e(f"v_and_b32 v{SC+2*i+1}, s{sMASK}, v{XO+i}")
    for i in range(10):
        e(f"v_sub_f32 v{SC+i}, v{SC+i}, v{s_}")
        bf16r(SC+i)
        e(f"v_mul_f32 v{SC+i}, v{SC+i}, v{q_}")
        bf16r(SC+i)
    stamp()
    LOG2E = hex(f32(1.4426950408889634))
    SCALE = hex(f32(192 ** -0.5))
    for idx, (kind, t) in enumerate(items):
        if kind == 'Q':
            axpy_tile(idx, SC + t, t == 0)
            free.extend(slot_of[idx]); refill(idx, ring_tiles)
            if t == 9:
                acc_reduce_to_lds()
                e("s_waitcnt lgkmcnt(0)")
                e("s_barrier")
                e(f"s_cmp_lg_u32 s{sW}, 0")
                e("s_cbranch_scc1 L_q_skip")
                e(f"v_lshlrev_b32 v{T[0]}, 4, v{VLANE}")
                for w in range(8):
                    d = (ACC + 4*w) if w < 6 else (T[8] + 4*(w-6))
                    e(f"ds_read_b128 v[{d}:{d+3}], v{T[0]} offset:{L_RED + w*832}")
                e(f"v_mov_b32 v{T[1]}, 1")
                e(f"v_mov_b32 v{T[2]}, 0")
                e("s_mov_b64 exec, 1")
                A.vm_issued -= 0
                A.lines.append(f"    buffer_atomic_add v{T[1]}, v{T[2]}, {srd(SRD_DBG)}, 0 offen sc1")
                e("s_mov_b64 exec, -1")
                e("s_waitcnt lgkmcnt(0)")
                for w in range(1, 8):
                    d = (ACC + 4*w) if w < 6 else (T[8] + 4*(w-6))
                    for i in range(4): e(f"v_add_f32 v{ACC+i}, v{ACC+i}, v{d+i}")
                e(f"v_cvt_pk_bf16_f32 v{T[2]}, v{ACC}, v{ACC+1}")
                e(f"v_cvt_pk_bf16_f32 v{T[3]}, v{ACC+2}, v{ACC+3}")
                e(f"v_lshlrev_b32 v{T[0]}, 3, v{VLANE}")
                e(f"v_cmp_gt_u32 vcc, 48, v{VLANE}")
                e(f"s_and_saveexec_b64 s[{sT2}:{sT3}], vcc")
                e(f"ds_write_b64 v{T[0]}, v[{T[2]}:{T[3]}] offset:{L_QS}")
                e(f"s_mov_b64 exec, -1")
                e("s_waitcnt lgkmcnt(0)")
                A.label("L_q_skip"); A.fence()
                e("s_barrier")
                e(f"v_mul_u32_u24 v{T[0]}, 48, v{VC}")
                for j in range(3):
                    e(f"ds_read_b128 v[{Q+4*j}:{Q+4*j+3}], v{T[0]} offset:{L_QS + 16*j}")
                e("s_waitcnt lgkmcnt(0)")
                stamp()
        elif kind == 'K':
            s = slot_of[idx][0]
            for j in range(3):
                A.wait_vm(tick[idx][j])
                r = RING + s*12 + j*4
                for i in range(4):
                    c = "0" if i == 0 else f"v{T[j]}"
                    e(f"v_dot2_f32_bf16 v{T[j]}, v{r+i}, v{Q+4*j+i}, {c}")
            free.extend(slot_of[idx]); refill(idx, depth)
            sc = SC + t
            e(f"v_add_f32 v{sc}, v{T[0]}, v{T[1]}")
            e(f"v_add_f32 v{sc}, v{sc}, v{T[2]}")
            for ctl in ("quad_perm:[1,0,3,2]", "quad_perm:[2,3,0,1]", "row_half_mirror"):
                e(f"v_add_f32_dpp v{sc}, v{sc}, v{sc} {ctl} row_mask:0xf bank_mask:0xf")
            bf16r(sc)
            e(f"v_mul_f32 v{sc}, {SCALE}, v{sc}")
            bf16r(sc)
            if t == 31:
                stamp()
                m = T[0]
                e(f"v_max3_f32 v{m}, v{SC}, v{SC+1}, v{SC+2}")
                for i in range(3, 31, 2): e(f"v_max3_f32 v{m}, v{m}, v{SC+i}, v{SC+i+1}")
                e(f"v_max_f32 v{m}, v{m}, v{SC+31}")
                group_reduce(m, "max_f32", T[1])
                e(f"s_lshl_b32 s{sT0}, s{sW}, 2")
                e(f"v_mov_b32 v{T[1]}, s{sT0}")
                e(f"ds_write_b32 v{T[1]}, v{m} offset:{L_MX}")
                e("s_waitcnt lgkmcnt(0)")
                e("s_barrier")
                e(f"v_mov_b32 v{T[1]}, 0")
                e(f"ds_read_b128 v[{T[4]}:{T[7]}], v{T[1]} offset:{L_MX}")
                e(f"ds_read_b128 v[{T[8]}:{T[11]}], v{T[1]} offset:{L_MX+16}")
                e("s_waitcnt lgkmcnt(0)")
                e(f"v_max3_f32 v{m}, v{T[4]}, v{T[5]}, v{T[6]}")
                e(f"v_max3_f32 v{m}, v{m}, v{T[7]}, v{T[8]}")
                e(f"v_max3_f32 v{m}, v{m}, v{T[9]}, v{T[10]}")
                e(f"v_max_f32 v{m}, v{m}, v{T[11]}")
                for i in range(32):
                    e(f"v_sub_f32 v{SC+i}, v{SC+i}, v{m}")
                    e(f"v_mul_f32 v{SC+i}, {LOG2E}, v{SC+i}")
                    e(f"v_exp_f32 v{SC+i}, v{SC+i}")
                l = T[5]
                e(f"v_add_f32 v{l}, v{SC}, v{SC+1}")
                for i in range(2, 32): e(f"v_add_f32 v{l}, v{l}, v{SC+i}")
                group_reduce(l, "add_f32", T[1])
                e(f"s_cmp_eq_u32 s{sW}, 0")
                e(f"s_cselect_b64 s[{sT2}:{sT3}], -1, 0")
                e(f"v_cndmask_b32 v{T[4]}, 0, v{m}, s[{sT2}:{sT3}]")
                e(f"v_mov_b32 v{T[6]}, 0"); e(f"v_mov_b32 v{T[7]}, 0")
                e(f"s_mul_i32 s{sT0}, s{sW}, 832")
                e(f"v_mov_b32 v{T[1]}, s{sT0}")
                e(f"ds_write_b128 v{T[1]}, v[{T[4]}:{T[7]}] offset:{L_RED+768}")
        elif kind == 'V':
            if t == 8:
                e(f"v_mov_b32 v{SP[3]}, 0")
                tk_cnt = e(f"buffer_load_dword v{SP[4]}, v{SP[3]}, {srd(SRD_DBG)}, 0 offen sc1")
            axpy_tile(idx, SC + t, t == 0)
            free.extend(slot_of[idx]); refill(idx, depth)
        elif kind == 'W':
            sl = slot_of[idx]
            regs = [RING + s*12 + j*4 for s in sl for j in range(3)][:8]
            A.wait_vm(tick[idx][7])
            e(f"s_cmp_ge_u32 s{sW}, 6")
            e("s_cbranch_scc1 L_w_skip")
            for i in range(4):
                tb = T[0] if i % 2 == 0 else T[8]
                for kp in range(4):
                    e(f"v_perm_b32 v{tb+kp}, v{regs[2*kp+1]+i}, v{regs[2*kp]+i}, s{sPLO}")
                    e(f"v_perm_b32 v{tb+4+kp}, v{regs[2*kp+1]+i}, v{regs[2*kp]+i}, s{sPHI}")
                e(f"ds_write_b128 v{VWL}, v[{tb}:{tb+3}] offset:{32*i}")
                e(f"ds_write_b128 v{VWL}, v[{tb+4}:{tb+7}] offset:{32*i+16}")
            e("s_waitcnt lgkmcnt(0)")
            A.label("L_w_skip"); A.fence()
            free.extend(sl); refill(idx, depth)
    stamp()
    acc_reduce_to_lds()
    A.wait_vm(tk_cnt)
    e(f"v_cmp_ne_u32 vcc, 256, v{SP[4]}")
    e("s_cbranch_vccz L_cnt_ok")
    spin_begin("L_cnt_spin")
    e(f"buffer_load_dword v{SP[4]}, v{SP[3]}, {srd(SRD_DBG)}, 0 offen sc1")
    e("s_waitcnt vmcnt(0)")
    e(f"v_cmp_ne_u32 vcc, 256, v{SP[4]}")
    spin_end("L_cnt_spin", "L_cnt_ok")
    e("s_waitcnt lgkmcnt(0)")
    e("s_barrier")
    e(f"s_cmp_lg_u32 s{sW}, 0")
    e("s_cbranch_scc1 L_pub_skip")
    e(f"v_lshlrev_b32 v{T[0]}, 4, v{VLANE}")
    for w in range(8):
        d = (ACC + 4*w) if w < 6 else (T[8] + 4*(w-6))
        e(f"ds_read_b128 v[{d}:{d+3}], v{T[0]} offset:{L_RED + w*832}")
    e(f"s_lshl_b32 s{sT0}, s{sH}, 3")
    e(f"s_add_u32 s{sT0}, s{sT0}, s{sMEM}")
    e(f"s_lshl_b32 s{sT0}, s{sT0}, 10")
    e(f"v_cmp_gt_u32 vcc, 49, v{VLANE}")
    e(f"v_mov_b32 v{T[1]}, {WS_SIZE}")
    e(f"v_cndmask_b32 v{T[0+2]}, v{T[1]}, v{T[0]}, vcc")
    e("s_waitcnt lgkmcnt(0)")
    for w in range(1, 8):
        d = (ACC + 4*w) if w < 6 else (T[8] + 4*(w-6))
        for i in range(4): e(f"v_add_f32 v{ACC+i}, v{ACC+i}, v{d+i}")
    for i in range(4): e(f"v_min_u32 v{ACC+i}, -2, v{ACC+i}")
    e(f"buffer_store_dwordx4 v[{ACC}:{ACC+3}], v{T[2]}, {srd(SRD_WS)}, s{sT0} offen sc1")
    A.label("L_pub_skip"); A.fence()
    stamp()
    e(f"s_cmp_ge_u32 s{sMEM}, 5")
    e("s_cbranch_scc1 L_mlp")
    FR = RING
    e(f"v_lshlrev_b32 v{T[0]}, 4, v{VLANE}")
    e(f"s_mul_i32 s{sT0}, s{sW}, 6144")
    e(f"v_add_u32 v{T[0]}, s{sT0}, v{T[0]}")
    for ks in range(6):
        e(f"ds_read_b128 v[{FR+4*ks}:{FR+4*ks+3}], v{T[0]} offset:{L_W + ks*1024}")
    j_, g4 = T[1], T[2]
    e(f"v_and_b32 v{j_}, 15, v{VLANE}")
    e(f"v_lshrrev_b32 v{g4}, 4, v{VLANE}")
    VBA, VYA = SP[5], SP[6]
    e(f"v_and_b32 v{T[3]}, 1, v{j_}")
    e(f"v_mul_u32_u24 v{VBA}, 384, v{T[3]}")
    e(f"v_lshl_add_u32 v{VBA}, v{g4}, 4, v{VBA}")
    e(f"v_mul_u32_u24 v{VYA}, 80, v{j_}")
    e(f"v_lshrrev_b32 v{T[3]}, 1, v{g4}")
    e(f"v_add_u32 v{VYA}, v{VYA}, v{T[3]}")
    e(f"s_lshl_b32 s{sT0}, s{sMEM}, 4")
    e(f"s_lshl_b32 s{sT1}, s{sW}, 1")
    e(f"s_add_u32 s{sT0}, s{sT0}, s{sT1}")
    e(f"v_add_u32 v{VYA}, s{sT0}, v{VYA}")
    e(f"v_lshlrev_b32 v{VYA}, 10, v{VYA}")
    e(f"v_and_b32 v{T[3]}, 1, v{g4}")
    e(f"v_lshl_add_u32 v{VYA}, v{T[3]}, 4, v{VYA}")
    e(f"s_lshl_b32 s{sT0}, s{sH}, 5")
    e(f"s_add_u32 s{sT0}, s{sT0}, {WS_Y}")
    e(f"v_add_u32 v{VYA}, s{sT0}, v{VYA}")
    e(f"v_cmp_lt_u32 vcc, 1, v{j_}")
    e(f"v_mov_b32 v{T[3]}, {WS_SIZE}")
    e(f"v_cndmask_b32 v{VYA}, v{VYA}, v{T[3]}, vcc")
    e(f"s_cmp_ge_u32 s{sW}, 4")
    e("s_cbranch_scc1 L_wo_bar")
    PO = ACC
    PM = ACC + 8
    e(f"s_lshr_b32 s{sT0}, s{sW}, 1")
    e(f"s_lshl_b32 s{sT0}, s{sT0}, 2")
    e(f"s_lshl_b32 s{sT1}, s{sH}, 3")
    e(f"s_add_u32 s{sT0}, s{sT0}, s{sT1}")
    e(f"s_lshl_b32 s{sT0}, s{sT0}, 10")
    e(f"s_and_b32 s{sT1}, s{sW}, 1")
    e(f"s_mul_i32 s{sT1}, s{sT1}, 384")
    e(f"v_lshlrev_b32 v{T[4]}, 3, v{VLANE}")
    e(f"v_add_u32 v{T[4]}, s{sT1}, v{T[4]}")
    e(f"v_cmp_gt_u32 vcc, 48, v{VLANE}")
    e(f"v_cndmask_b32 v{T[4]}, v{T[3]}, v{T[4]}, vcc")
    e(f"v_mov_b32 v{T[5]}, 768")
    spin_begin("L_a_spin")
    for s in range(4):
        e(f"buffer_load_dwordx2 v[{PO+2*s}:{PO+2*s+1}], v{T[4]}, {srd(SRD_WS)}, s{sT0} offen offset:{1024*s} sc1")
        e(f"buffer_load_dwordx2 v[{PM+2*s}:{PM+2*s+1}], v{T[5]}, {srd(SRD_WS)}, s{sT0} offen offset:{1024*s} sc1")
    e("s_waitcnt vmcnt(0)")
    e(f"v_max3_u32 v{T[6]}, v{PO}, v{PO+1}, v{PO+2}")
    for i in range(3, 15, 2): e(f"v_max3_u32 v{T[6]}, v{T[6]}, v{PO+i}, v{PO+i+1}")
    e(f"v_max_u32 v{T[6]}, v{T[6]}, v{PO+15}")
    e(f"v_cmp_eq_u32 vcc, -1, v{T[6]}")
    spin_end("L_a_spin", "L_a_done")
    M = T[6]
    e(f"v_max3_f32 v{M}, v{PM}, v{PM+2}, v{PM+4}")
    e(f"v_max_f32 v{M}, v{M}, v{PM+6}")
    for s in range(4):
        e(f"v_sub_f32 v{PM+2*s}, v{PM+2*s}, v{M}")
        e(f"v_mul_f32 v{PM+2*s}, {LOG2E}, v{PM+2*s}")
        e(f"v_exp_f32 v{PM+2*s}, v{PM+2*s}")
    Ls = T[7]
    e(f"v_mul_f32 v{Ls}, v{PM}, v{PM+1}")
    for s in range(1, 4): e(f"v_fmac_f32 v{Ls}, v{PM+2*s}, v{PM+2*s+1}")
    e(f"v_rcp_f32 v{Ls}, v{Ls}")
    e(f"v_mul_f32 v{T[8]}, v{PM}, v{PO}")
    e(f"v_mul_f32 v{T[9]}, v{PM}, v{PO+1}")
    for s in range(1, 4):
        e(f"v_fmac_f32 v{T[8]}, v{PM+2*s}, v{PO+2*s}")
        e(f"v_fmac_f32 v{T[9]}, v{PM+2*s}, v{PO+2*s+1}")
    e(f"v_mul_f32 v{T[8]}, v{T[8]}, v{Ls}")
    e(f"v_mul_f32 v{T[9]}, v{T[9]}, v{Ls}")
    e(f"v_cvt_pk_bf16_f32 v{T[8]}, v{T[8]}, v{T[9]}")
    e(f"s_mul_i32 s{sT0}, s{sW}, 192")
    e(f"v_lshlrev_b32 v{T[9]}, 2, v{VLANE}")
    e(f"v_add_u32 v{T[9]}, s{sT0}, v{T[9]}")
    e(f"v_cmp_gt_u32 vcc, 48, v{VLANE}")
    e(f"s_and_saveexec_b64 s[{sT2}:{sT3}], vcc")
    e(f"ds_write_b32 v{T[9]}, v{T[8]} offset:{L_OB}")
    e("s_mov_b64 exec, -1")
    A.label("L_wo_bar"); A.fence()
    e("s_waitcnt lgkmcnt(0)")
    e("s_barrier")
    BF = RING + 24
    for ks in range(6):
        e(f"ds_read_b128 v[{BF+4*ks}:{BF+4*ks+3}], v{VBA} offset:{L_OB + 64*ks}")
    D = T[8]
    for ks in range(6):
        e(f"s_waitcnt lgkmcnt({5-ks})")
        c = "0" if ks == 0 else f"v[{D}:{D+3}]"
        e(f"v_mfma_f32_16x16x32_bf16 v[{D}:{D+3}], v[{FR+4*ks}:{FR+4*ks+3}], v[{BF+4*ks}:{BF+4*ks+3}], {c}")
    for i in range(4): e(f"v_min_u32 v{D+i}, -2, v{D+i}")
    e(f"buffer_store_dwordx4 v[{D}:{D+3}], v{VYA}, {srd(SRD_WS)}, 0 offen sc1")
    e(f"s_cmp_lg_u32 s{sW}, 0")
    e("s_cbranch_scc1 L_end")
    stamp()
    col = T[0]
    e(f"v_and_b32 v{col}, 1, v{VLANE}")
    e(f"v_lshlrev_b32 v{col}, 2, v{col}")
    e(f"v_lshrrev_b32 v{T[1]}, 5, v{VLANE}")
    e(f"v_lshl_add_u32 v{col}, v{T[1]}, 1, v{col}")
    e(f"v_bfe_u32 v{T[1]}, v{VLANE}, 4, 1")
    e(f"v_add_u32 v{col}, v{col}, v{T[1]}")
    e(f"s_lshl_b32 s{sT0}, s{sR}, 3")
    e(f"v_add_u32 v{col}, s{sT0}, v{col}")
    e(f"v_lshlrev_b32 v{T[1]}, 1, v{col}")
    e(f"buffer_load_ushort v{T[2]}, v{T[1]}, {srd(SRD_X)}, 0 offen")
    e(f"v_and_b32 v{T[3]}, 14, v{VLANE}")
    e(f"v_cmp_ne_u32 vcc, 0, v{T[3]}")
    e(f"v_mov_b32 v{T[3]}, {WS_SIZE}")
    e(f"v_lshlrev_b32 v{T[4]}, 2, v{col}")
    e(f"v_add_u32 v{T[4]}, {WS_H}, v{T[4]}")
    e(f"v_cndmask_b32 v{T[4]}, v{T[4]}, v{T[3]}, vcc")
    e(f"v_cndmask_b32 v{T[1]}, v{T[1]}, v{T[3]}, vcc")
    e(f"v_lshlrev_b32 v{T[5]}, 4, v{VLANE}")
    e(f"s_lshl_b32 s{sT0}, s{sR}, 10")
    e(f"s_add_u32 s{sT0}, s{sT0}, {WS_Y}")
    Yr = ACC
    def red8(y):
        e(f"v_permlane32_swap_b32 v{y}, v{y+2}")
        e(f"v_permlane32_swap_b32 v{y+1}, v{y+3}")
        e(f"v_add_f32 v{y}, v{y}, v{y+2}")
        e(f"v_add_f32 v{y+1}, v{y+1}, v{y+3}")
        e(f"v_permlane16_swap_b32 v{y}, v{y+1}")
        e(f"v_add_f32 v{y}, v{y}, v{y+1}")
        for k in (8, 4, 2):
            e(f"v_add_f32_dpp v{y}, v{y}, v{y} row_ror:{k} row_mask:0xf bank_mask:0xf")
    spin_begin("L_b_spin")
    e(f"buffer_load_dwordx4 v[{Yr}:{Yr+3}], v{T[5]}, {srd(SRD_WS)}, s{sT0} offen sc1")
    e("s_waitcnt vmcnt(0)")
    e(f"v_max3_u32 v{T[6]}, v{Yr}, v{Yr+1}, v{Yr+2}")
    e(f"v_max_u32 v{T[6]}, v{T[6]}, v{Yr+3}")
    e(f"v_cmp_eq_u32 vcc, -1, v{T[6]}")
    spin_end("L_b_spin", "L_b_done")
    red8(Yr)
    bf16r(Yr)
    e(f"v_lshlrev_b32 v{T[2]}, 16, v{T[2]}")
    e(f"v_add_f32 v{T[2]}, v{T[2]}, v{Yr}")
    bf16r(T[2])
    e(f"buffer_store_dword v{T[2]}, v{T[4]}, {srd(SRD_WS)}, 0 offen sc1")
    stamp()
    e(f"s_mul_i32 s{sT0}, s{sR}, 3072")
    e(f"s_add_u32 s{sT0}, s{sT0}, {WS_Z}")
    spin_begin("L_c_spin")
    for i in range(3):
        e(f"buffer_load_dwordx4 v[{Yr+4*i}:{Yr+4*i+3}], v{T[5]}, {srd(SRD_WS)}, s{sT0} offen offset:{1024*i} sc1")
    e("s_waitcnt vmcnt(0)")
    e(f"v_max3_u32 v{T[6]}, v{Yr}, v{Yr+1}, v{Yr+2}")
    for i in range(3, 11, 2): e(f"v_max3_u32 v{T[6]}, v{T[6]}, v{Yr+i}, v{Yr+i+1}")
    e(f"v_max_u32 v{T[6]}, v{T[6]}, v{Yr+11}")
    e(f"v_cmp_eq_u32 vcc, -1, v{T[6]}")
    spin_end("L_c_spin", "L_c_done")
    for i in range(4):
        e(f"v_add_f32 v{Yr+i}, v{Yr+i}, v{Yr+4+i}")
        e(f"v_add_f32 v{Yr+i}, v{Yr+i}, v{Yr+8+i}")
    red8(Yr)
    bf16r(Yr)
    e(f"v_add_f32 v{Yr}, v{Yr}, v{T[2]}")
    e(f"v_cvt_pk_bf16_f32 v{Yr}, v{Yr}, v{Yr}")
    e(f"buffer_store_short v{Yr}, v{T[1]}, {srd(SRD_OUT)}, 0 offen")
    stamp()
    e("s_branch L_fin")
    A.label("L_mlp"); A.fence()
    nstamp_save = nstamp[0]; nstamp[0] = 6 if stamps else 0
    e(f"s_cmp_ge_u32 s{sW}, 4")
    e("s_cbranch_scc1 L_end")
    F1 = RING
    F2 = RING + 80
    HB = ACC
    BFm = SC
    e(f"v_lshlrev_b32 v{T[0]}, 4, v{VLANE}")
    for ks in range(20):
        e(f"ds_read_b128 v[{F1+4*ks}:{F1+4*ks+3}], v{T[0]} offset:{L_W + ks*1024}")
        if ks % 8 == 7: e("s_waitcnt lgkmcnt(4)")
    i_, g4 = T[1], T[2]
    e(f"v_and_b32 v{i_}, 15, v{VLANE}")
    e(f"v_lshrrev_b32 v{g4}, 4, v{VLANE}")
    e(f"v_lshrrev_b32 v{T[3]}, 1, v{g4}")
    e(f"v_lshlrev_b32 v{T[3]}, 8, v{T[3]}")
    e(f"v_lshl_add_u32 v{T[3]}, v{i_}, 4, v{T[3]}")
    e(f"v_and_b32 v{T[4]}, 1, v{g4}")
    e(f"v_lshl_add_u32 v{T[3]}, v{T[4]}, 3, v{T[3]}")
    e(f"s_mul_i32 s{sT0}, s{sW}, 5120")
    e(f"v_add_u32 v{T[3]}, s{sT0}, v{T[3]}")
    e("s_waitcnt lgkmcnt(4)")
    for tt in range(10):
        e(f"ds_read_b64 v[{F2+2*tt}:{F2+2*tt+1}], v{T[3]} offset:{L_W2 + tt*512}")
    VLW, VLR, VZA = SP[5], SP[6], SP[7]
    e(f"s_mul_i32 s{sT0}, s{sW}, 2560")
    e(f"s_add_u32 s{sT0}, s{sT0}, {L_LN}")
    e(f"v_mul_u32_u24 v{VLW}, 40, v{VLANE}")
    e(f"v_add_u32 v{VLW}, s{sT0}, v{VLW}")
    e(f"v_and_b32 v{T[4]}, 1, v{i_}")
    e(f"v_mul_u32_u24 v{VLR}, 1280, v{T[4]}")
    e(f"v_lshl_add_u32 v{VLR}, v{g4}, 4, v{VLR}")
    e(f"v_add_u32 v{VLR}, s{sT0}, v{VLR}")
    e(f"v_mul_u32_u24 v{VZA}, 80, v{i_}")
    e(f"v_lshrrev_b32 v{T[4]}, 1, v{g4}")
    e(f"v_add_u32 v{VZA}, v{VZA}, v{T[4]}")
    e(f"s_mul_i32 s{sT0}, s{sW}, 20")
    e(f"v_add_u32 v{VZA}, s{sT0}, v{VZA}")
    e(f"v_mul_u32_u24 v{VZA}, 3072, v{VZA}")
    e(f"v_and_b32 v{T[4]}, 1, v{g4}")
    e(f"v_lshl_add_u32 v{VZA}, v{T[4]}, 4, v{VZA}")
    e(f"s_lshl_b32 s{sT0}, s{sF0}, 1")
    e(f"s_add_u32 s{sT0}, s{sT0}, {WS_Z}")
    e(f"v_add_u32 v{VZA}, s{sT0}, v{VZA}")
    e(f"v_cmp_lt_u32 vcc, 1, v{i_}")
    e(f"v_mov_b32 v{T[4]}, {WS_SIZE}")
    e(f"v_cndmask_b32 v{VZA}, v{VZA}, v{T[4]}, vcc")
    e(f"v_mul_u32_u24 v{T[5]}, 80, v{VLANE}")
    e(f"s_mov_b32 s{sT0}, {WS_H}")
    spin_begin("L_h_spin")
    for i in range(5):
        e(f"buffer_load_dwordx4 v[{HB+4*i}:{HB+4*i+3}], v{T[5]}, {srd(SRD_WS)}, s{sT0} offen offset:{16*i} sc1")
    e("s_waitcnt vmcnt(0)")
    e(f"v_max3_u32 v{T[6]}, v{HB}, v{HB+1}, v{HB+2}")
    for i in range(3, 19, 2): e(f"v_max3_u32 v{T[6]}, v{T[6]}, v{HB+i}, v{HB+i+1}")
    e(f"v_max_u32 v{T[6]}, v{T[6]}, v{HB+19}")
    e(f"v_cmp_eq_u32 vcc, -1, v{T[6]}")
    spin_end("L_h_spin", "L_h_done")
    stamp()
    s_, t_, q_ = T[0], T[1], T[2]
    e(f"v_pk_add_f32 v[{T[4]}:{T[5]}], v[{HB}:{HB+1}], v[{HB+2}:{HB+3}]")
    for i in range(4, 20, 2): e(f"v_pk_add_f32 v[{T[4]}:{T[5]}], v[{T[4]}:{T[5]}], v[{HB+i}:{HB+i+1}]")
    e(f"v_add_f32 v{s_}, v{T[4]}, v{T[5]}")
    wave_reduce(s_, "add_f32", t_, n=32)
    e(f"v_mul_f32 v{s_}, {hex(f32(-1.0/640))}, v{s_}")
    for i in range(0, 20, 2):
        e(f"v_pk_add_f32 v[{T[6]}:{T[7]}], v[{HB+i}:{HB+i+1}], v[{s_}:{s_+1}] op_sel_hi:[1,0]")
        if i == 0: e(f"v_pk_mul_f32 v[{T[4]}:{T[5]}], v[{T[6]}:{T[7]}], v[{T[6]}:{T[7]}]")
        else: e(f"v_pk_fma_f32 v[{T[4]}:{T[5]}], v[{T[6]}:{T[7]}], v[{T[6]}:{T[7]}], v[{T[4]}:{T[5]}]")
    e(f"v_add_f32 v{q_}, v{T[4]}, v{T[5]}")
    wave_reduce(q_, "add_f32", T[3], n=32)
    e(f"v_mul_f32 v{q_}, {hex(f32(1.0/640))}, v{q_}")
    bf16r(s_); bf16r(q_)
    e(f"v_add_f32 v{q_}, {hex(f32(1e-5))}, v{q_}")
    bf16r(q_)
    e(f"v_sqrt_f32 v{q_}, v{q_}")
    bf16r(q_)
    e(f"v_rcp_f32 v{q_}, v{q_}")
    for i in range(0, 20, 2):
        a = HB + i
        e(f"v_pk_add_f32 v[{a}:{a+1}], v[{a}:{a+1}], v[{s_}:{s_+1}] op_sel_hi:[1,0]")
        e(f"v_cvt_pk_bf16_f32 v{a+1}, v{a}, v{a+1}")
        e(f"v_lshlrev_b32 v{a}, 16, v{a+1}")
        e(f"v_and_b32 v{a+1}, s{sMASK}, v{a+1}")
        e(f"v_pk_mul_f32 v[{a}:{a+1}], v[{a}:{a+1}], v[{q_}:{q_+1}] op_sel_hi:[1,0]")
        e(f"v_cvt_pk_bf16_f32 v{Q + i//2}, v{a}, v{a+1}")
    for i in range(5):
        e(f"ds_write_b64 v{VLW}, v[{Q+2*i}:{Q+2*i+1}] offset:{8*i}")
    e("s_waitcnt lgkmcnt(0)")
    bregs = [SC + 4*i for i in range(8)] + [ACC + 4*i for i in range(6)] + [RING + 100 + 4*i for i in range(6)]
    for ks in range(15):
        e(f"ds_read_b128 v[{bregs[ks]}:{bregs[ks]+3}], v{VLR} offset:{64*ks}")
    D = T[8]
    outstanding = 15
    for ks in range(20):
        issued = min(20, 15 + ks)
        e(f"s_waitcnt lgkmcnt({issued - ks - 1})")
        c = "0" if ks == 0 else f"v[{D}:{D+3}]"
        e(f"v_mfma_f32_16x16x32_bf16 v[{D}:{D+3}], v[{F1+4*ks}:{F1+4*ks+3}], v[{bregs[ks]}:{bregs[ks]+3}], {c}")
        if 15 + ks < 20:
            k2 = 15 + ks
            e(f"ds_read_b128 v[{bregs[k2]}:{bregs[k2]+3}], v{VLR} offset:{64*k2}")
    for i in range(4):
        bf16r(D+i)
        e(f"v_mul_f32 v{T[i]}, {hex(f32(-1.4426950408889634))}, v{D+i}")
        e(f"v_exp_f32 v{T[i]}, v{T[i]}")
        e(f"v_add_f32 v{T[i]}, 1.0, v{T[i]}")
        e(f"v_rcp_f32 v{T[i]}, v{T[i]}")
        e(f"v_mul_f32 v{D+i}, v{D+i}, v{T[i]}")
    e(f"v_cvt_pk_bf16_f32 v{T[4]}, v{D}, v{D+1}")
    e(f"v_cvt_pk_bf16_f32 v{T[5]}, v{D+2}, v{D+3}")
    ZD = F1
    for tt in range(10):
        e(f"v_mfma_f32_16x16x16_bf16 v[{ZD+4*tt}:{ZD+4*tt+3}], v[{F2+2*tt}:{F2+2*tt+1}], v[{T[4]}:{T[5]}], 0")
    for tt in range(10):
        for i in range(4): e(f"v_min_u32 v{ZD+4*tt+i}, -2, v{ZD+4*tt+i}")
        if tt: e(f"s_mov_b32 s{sT0}, {tt*6144}")
        so = f"s{sT0}" if tt else "0"
        e(f"buffer_store_dwordx4 v[{ZD+4*tt}:{ZD+4*tt+3}], v{VZA}, {srd(SRD_WS)}, {so} offen sc1")
    stamp()
    if stamps:
        e(f"s_cmp_lg_u32 s{sW}, 0")
        e("s_cbranch_scc1 L_end")
        e(f"s_mov_b64 s[{sST+16}:{sST+17}], 0")
    A.label("L_fin"); A.fence()
    if stamps:
        e("s_waitcnt lgkmcnt(0)")
        e(f"s_lshl_b32 s{sT0}, s2, 7")
        e(f"s_add_u32 s{sT0}, s{sT0}, {WS_STAMP}")
        e(f"v_mov_b32 v{T[0]}, 0")
        e("s_mov_b64 exec, 1")
        for i in range(9):
            e(f"v_mov_b32 v{T[2]}, s{sST+2*i}")
            e(f"v_mov_b32 v{T[3]}, s{sST+2*i+1}")
            e(f"buffer_store_dwordx2 v[{T[2]}:{T[3]}], v{T[0]}, {srd(SRD_WS)}, s{sT0} offen offset:{8*i}")
            e("s_nop 1")
    A.label("L_end")
    A.raw("    s_endpgm")
    A.raw(f""".section .rodata,"a"
.p2align 6
.amdhsa_kernel {NAME}
  .amdhsa_next_free_vgpr 256
  .amdhsa_next_free_sgpr 102
  .amdhsa_accum_offset 256
  .amdhsa_group_segment_fixed_size 0
  .amdhsa_kernarg_size 88
  .amdhsa_user_sgpr_count 2
  .amdhsa_user_sgpr_kernarg_segment_ptr 1
  .amdhsa_system_sgpr_workgroup_id_x 1
  .amdhsa_float_denorm_mode_32 3
.end_amdhsa_kernel""")
    return A.text()

if __name__ == "__main__":
    out = sys.argv[1] if len(sys.argv) > 1 else "sequential_preLN__mha_block_cached__dense_activation_silu__decode.s"
    kw = eval("dict(%s)" % sys.argv[2]) if len(sys.argv) > 2 else {}
    open(out, "w").write(gen(**kw))
```

```python
import sys, struct
from asmlib import Asm

NAME = "sequential_preLN__mha_block_cached__dense_activation_silu__decode_kernel"
HEADER = open(__file__.replace("gen_fused.py", "header.txt")).read()

def f32(x): return struct.unpack('<I', struct.pack('<f', x))[0]

WS_PART = 0x000000
WS_Y    = 0x040000
WS_H    = 0x068000
WS_Z    = 0x070000
WS_STAMP= 0x100000
WS_SIZE = 0x200000
L_RED  = 0
L_QS   = 6656
L_MX   = 7040
L_OB   = 7168
L_LN   = 8192
L_W    = 18432
LDS_BYTES = L_W + 53248

KVBYTES = 2*32*8192*384

def gen(depth=8, wpos=20, stamps=False, spin_limit=1 << 22, ring_tiles=13, kvflags="nt", wqflags="nt", wflags="nt", qlook=None, perturb=0.0):
    A = Asm(); e = A.e
    A.raw(HEADER.rstrip('\n'))
    A.raw(f"; @launch grid=(256,1,1) block=(512,1,1) lds={LDS_BYTES}")
    A.raw('.amdgcn_target "amdgcn-amd-amdhsa--gfx950"\n.text\n.globl %s\n.p2align 8\n.type %s,@function\n%s:' % (NAME, NAME, NAME))
    VT, VLANE, VKV, VQO = 0, 1, 2, 3
    T = list(range(4, 20))
    VG, VC, VX1, VX2 = 20, 21, 22, 23
    Q = 24; ACC = 36; SC = 60; RING = 92
    SP = list(range(RING + ring_tiles*12, 256))
    assert len(SP) >= 8
    VWG, VWL, VRED = SP[0], SP[1], SP[2]
    SRD_X, SRD_K, SRD_V, SRD_WQ, SRD_WT, SRD_OUT, SRD_DBG, SRD_WS = 28, 32, 36, 40, 44, 48, 52, 56
    sW, sH, sB, sSPL, sMEM, sKVB, sOFF = 60, 61, 62, 63, 64, 65, 66
    sMASK, sR, sRS, sT0, sT1, sT2, sT3, sSPIN, sF0 = 67, 68, 69, 70, 71, 72, 73, 74, 75
    sPLO, sPHI = 76, 77
    sST = 80
    def srd(s): return f"s[{s}:{s+3}]"
    nstamp = [0]
    def stamp():
        if not stamps: return
        i = nstamp[0]; nstamp[0] += 1
        assert i < 10
        e(f"s_memrealtime s[{sST+2*i}:{sST+2*i+1}]")
    e("s_cmp_ge_u32 s2, 256")
    e("s_cbranch_scc1 L_end")
    e("s_load_dwordx16 s[4:19], s[0:1], 0")
    e("s_load_dwordx4 s[20:23], s[0:1], 64")
    e("s_load_dwordx2 s[24:25], s[0:1], 80")
    stamp()
    e(f"v_lshrrev_b32 v{T[0]}, 6, v0")
    e(f"v_and_b32 v{VLANE}, 63, v0")
    e(f"v_readfirstlane_b32 s{sW}, v{T[0]}")
    e(f"v_lshrrev_b32 v{VG}, 3, v{VLANE}")
    e(f"v_and_b32 v{VC}, 7, v{VLANE}")
    e(f"s_and_b32 s{sT0}, s2, 7")
    e(f"s_lshr_b32 s{sT1}, s2, 3")
    e(f"s_lshr_b32 s{sT2}, s{sT1}, 3")
    e(f"s_lshl_b32 s{sH}, s{sT0}, 2")
    e(f"s_add_u32 s{sH}, s{sH}, s{sT2}")
    e(f"s_and_b32 s{sMEM}, s{sT1}, 7")
    e(f"s_lshr_b32 s{sB}, s{sMEM}, 2")
    e(f"s_and_b32 s{sSPL}, s{sMEM}, 3")
    e(f"s_lshl_b32 s{sT0}, s{sB}, 5")
    e(f"s_add_u32 s{sT0}, s{sT0}, s{sH}")
    e(f"s_lshl_b32 s{sT0}, s{sT0}, 2")
    e(f"s_add_u32 s{sT0}, s{sT0}, s{sSPL}")
    e(f"s_mul_i32 s{sKVB}, s{sT0}, 786432")
    e(f"s_mov_b32 s{sMASK}, 0xffff0000")
    e(f"s_mov_b32 s{sPLO}, 0x05040100")
    e(f"s_mov_b32 s{sPHI}, 0x07060302")
    e(f"s_mul_i32 s{sR}, s{sH}, 5")
    e(f"s_add_u32 s{sR}, s{sR}, s{sMEM}")
    e(f"s_mul_i32 s{sF0}, s{sH}, 3")
    e(f"s_add_u32 s{sF0}, s{sF0}, s{sMEM}")
    e(f"s_sub_u32 s{sF0}, s{sF0}, 5")
    e(f"s_lshl_b32 s{sF0}, s{sF0}, 4")
    e(f"v_mul_u32_u24 v{VKV}, 384, v{VG}")
    e(f"v_lshl_add_u32 v{VKV}, v{VC}, 4, v{VKV}")
    e(f"s_mul_i32 s{sT0}, s{sW}, 3072")
    e(f"v_add_u32 v{VKV}, s{sT0}, v{VKV}")
    e(f"s_lshl_b32 s{sT0}, s{sW}, 3")
    e(f"v_add_u32 v{T[0]}, s{sT0}, v{VG}")
    e(f"v_mul_u32_u24 v{VQO}, 122880, v{T[0]}")
    e(f"v_lshl_add_u32 v{VQO}, v{VC}, 4, v{VQO}")
    e(f"s_mul_i32 s{sT1}, s{sB}, 1280")
    e(f"v_mul_u32_u24 v{VX1}, 20, v{T[0]}")
    e(f"v_add_u32 v{VX1}, s{sT1}, v{VX1}")
    e(f"v_mul_u32_u24 v{VX2}, 20, v{VLANE}")
    e(f"v_add_u32 v{VX2}, s{sT1}, v{VX2}")
    e(f"s_lshl_b32 s{sT0}, s{sH}, 3")
    e(f"s_add_u32 s{sT0}, s{sT0}, s{sMEM}")
    e(f"s_lshl_b32 s{sT0}, s{sT0}, 10")
    e(f"s_mov_b32 s{sT2}, {WS_SIZE}")
    e(f"s_lshl_b32 s{sT1}, s{sR}, 10")
    e(f"s_add_u32 s{sT1}, s{sT1}, {WS_Y}")
    e(f"s_cmp_eq_u32 s{sW}, 1")
    e(f"s_cselect_b32 s{sT2}, s{sT1}, s{sT2}")
    e(f"s_mul_i32 s{sT1}, s{sR}, 3072")
    e(f"s_lshl_b32 s{sT3}, s{sW}, 10")
    e(f"s_add_u32 s{sT1}, s{sT1}, s{sT3}")
    e(f"s_add_u32 s{sT1}, s{sT1}, {WS_Z - 2048}")
    e(f"s_sub_u32 s{sT3}, s{sW}, 2")
    e(f"s_cmp_lt_u32 s{sT3}, 3")
    e(f"s_cselect_b32 s{sT2}, s{sT1}, s{sT2}")
    e(f"s_lshl_b32 s{sT1}, s{sR}, 5")
    e(f"s_add_u32 s{sT1}, s{sT1}, {WS_H}")
    e(f"s_cmp_eq_u32 s{sW}, 5")
    e(f"s_cselect_b32 s{sT2}, s{sT1}, s{sT2}")
    e(f"s_cmp_ge_u32 s{sMEM}, 5")
    e(f"s_cselect_b32 s{sT2}, {WS_SIZE}, s{sT2}")
    e(f"s_cmp_eq_u32 s{sW}, 0")
    e(f"s_cselect_b32 s{sT2}, s{sT0}, s{sT2}")
    e(f"v_lshlrev_b32 v{T[1]}, 4, v{VLANE}")
    e(f"v_add_u32 v{T[1]}, s{sT2}, v{T[1]}")
    e(f"s_cmp_eq_u32 s{sW}, 5")
    e(f"s_cselect_b32 s{sT3}, 2, 64")
    e(f"v_cmp_le_u32 vcc, s{sT3}, v{VLANE}")
    e(f"v_mov_b32 v{T[2]}, {WS_SIZE}")
    e(f"v_cndmask_b32 v{T[1]}, v{T[1]}, v{T[2]}, vcc")
    for i in range(4): e(f"v_mov_b32 v{T[4+i]}, -1")
    e("s_waitcnt lgkmcnt(0)")
    def mk(s, p, size):
        e(f"s_mov_b32 s{s}, s{p}"); e(f"s_mov_b32 s{s+1}, s{p+1}"); e(f"s_mov_b32 s{s+2}, {size}"); e(f"s_mov_b32 s{s+3}, 0x20000")
    mk(SRD_WS, 24, WS_SIZE)
    mk(SRD_X, 4, 2560)
    mk(SRD_WQ, 10, 640*6144*2)
    tk_clear = e(f"buffer_store_dwordx4 v[{T[4]}:{T[7]}], v{T[1]}, {srd(SRD_WS)}, 0 offen sc1")
    XS = T[8]; XO = SC + 16
    e(f"buffer_load_dwordx4 v[{XS}:{XS+3}], v{VX2}, {srd(SRD_X)}, 0 offen")
    e(f"buffer_load_dword v{XS+4}, v{VX2}, {srd(SRD_X)}, 0 offen offset:16")
    e(f"buffer_load_dwordx4 v[{XO}:{XO+3}], v{VX1}, {srd(SRD_X)}, 0 offen")
    tk_x = e(f"buffer_load_dword v{XO+4}, v{VX1}, {srd(SRD_X)}, 0 offen offset:16")
    mk(SRD_K, 6, KVBYTES); mk(SRD_V, 8, KVBYTES)
    items = [('Q', t) for t in range(10)] + [('K', t) for t in range(32)] + [('V', t) for t in range(32)]
    items.insert(10 + wpos, ('W', 0))
    free = list(range(ring_tiles))
    slot_of = {}; tick = {}
    nxt = [0]
    def issue(idx):
        kind, t = items[idx]
        if kind == 'W':
            sl = [free.pop(0) for _ in range(3)]
            slot_of[idx] = sl
            regs = [RING + s*12 + j*4 for s in sl for j in range(3)][:8]
            tk = []
            for kk in range(8):
                if kk == 0: so = "0"
                else:
                    e(f"s_mul_i32 s{sOFF}, s{sRS}, {kk}"); so = f"s{sOFF}"
                tk.append(e(f"buffer_load_dwordx4 v[{regs[kk]}:{regs[kk]+3}], v{VWG}, {srd(SRD_WT)}, {so} offen {wflags}"))
            tick[idx] = tk
            return
        s = free.pop(0); slot_of[idx] = [s]
        if kind == 'Q':
            e(f"s_mul_i32 s{sOFF}, s{sH}, 384")
            if t: e(f"s_add_u32 s{sOFF}, s{sOFF}, {t*12288}")
            sr, vo, fl = SRD_WQ, VQO, wqflags
        else:
            e(f"s_add_u32 s{sOFF}, s{sKVB}, {t*24576}")
            sr, vo, fl = (SRD_K if kind == 'K' else SRD_V), VKV, kvflags
        tk = []
        for j in range(3):
            r = RING + s*12 + j*4
            tk.append(e(f"buffer_load_dwordx4 v[{r}:{r+3}], v{vo}, {srd(sr)}, s{sOFF} offen offset:{j*128} {fl}"))
        tick[idx] = tk
    def refill(cur, limit):
        while nxt[0] < len(items) and nxt[0] <= cur + limit:
            need = 3 if items[nxt[0]][0] == 'W' else 1
            if len(free) < need: break
            issue(nxt[0]); nxt[0] += 1
    if qlook is None: qlook = ring_tiles
    def refill_q(cur):
        refill(9, qlook) if qlook < ring_tiles else refill(cur, ring_tiles)
    refill_q(-1)
    mk(SRD_OUT, 20, 2560); mk(SRD_DBG, 22, 256)
    n_, gq = T[0], T[1]
    e(f"v_and_b32 v{n_}, 15, v{VLANE}")
    e(f"v_lshrrev_b32 v{gq}, 4, v{VLANE}")
    e(f"s_lshl_b32 s{sT0}, s{sW}, 2")
    e(f"v_add_u32 v{T[2]}, s{sT0}, v{gq}")
    e(f"v_mul_u32_u24 v{T[3]}, 43, v{T[2]}")
    e(f"v_lshrrev_b32 v{T[3]}, 7, v{T[3]}")
    e(f"v_mul_u32_u24 v{T[4]}, 3, v{T[3]}")
    e(f"v_sub_u32 v{T[4]}, v{T[2]}, v{T[4]}")
    e(f"v_lshlrev_b32 v{T[4]}, 6, v{T[4]}")
    e(f"v_lshl_add_u32 v{T[4]}, v{T[3]}, 3, v{T[4]}")
    e(f"s_mul_i32 s{sT0}, s{sH}, 192")
    e(f"v_add_u32 v{T[4]}, s{sT0}, v{T[4]}")
    e(f"v_mul_u32_u24 v{T[4]}, 1280, v{T[4]}")
    e(f"v_lshl_add_u32 v{T[4]}, v{n_}, 4, v{T[4]}")
    e(f"s_lshl_b32 s{sT0}, s{sMEM}, 8")
    e(f"v_add_u32 v{T[4]}, s{sT0}, v{T[4]}")
    e(f"v_lshrrev_b32 v{T[5]}, 1, v{n_}")
    e(f"v_mul_u32_u24 v{T[5]}, 6144, v{T[5]}")
    e(f"v_lshl_add_u32 v{T[5]}, v{gq}, 8, v{T[5]}")
    e(f"v_and_b32 v{T[6]}, 1, v{n_}")
    e(f"v_lshl_add_u32 v{T[5]}, v{T[6]}, 7, v{T[5]}")
    e(f"s_lshl_b32 s{sT0}, s{sW}, 10")
    e(f"s_add_u32 s{sT0}, s{sT0}, {L_W}")
    e(f"v_add_u32 v{T[5]}, s{sT0}, v{T[5]}")
    e(f"s_lshl_b32 s{sT0}, s{sW}, 6")
    e(f"v_add_u32 v{T[6]}, s{sT0}, v{VLANE}")
    e(f"v_lshrrev_b32 v{T[7]}, 1, v{T[6]}")
    e(f"v_mul_u32_u24 v{T[7]}, 24576, v{T[7]}")
    e(f"v_and_b32 v{T[2]}, 1, v{T[6]}")
    e(f"v_lshl_add_u32 v{T[7]}, v{T[2]}, 4, v{T[7]}")
    e(f"s_lshl_b32 s{sT0}, s{sF0}, 1")
    e(f"v_add_u32 v{T[7]}, s{sT0}, v{T[7]}")
    e(f"v_lshlrev_b32 v{T[2]}, 7, v{T[6]}")
    e(f"v_add_u32 v{T[2]}, {L_W}, v{T[2]}")
    L_W2 = L_W + 24576
    e(f"v_subrev_u32 v{T[6]}, 192, v{T[6]}")
    e(f"v_cmp_le_u32 vcc, 80, v{T[6]}")
    e(f"v_cndmask_b32 v{T[3]}, 0, 1, vcc")
    e(f"v_mul_u32_u24 v{T[13]}, 80, v{T[3]}")
    e(f"v_sub_u32 v{T[13]}, v{T[6]}, v{T[13]}")
    e(f"v_mul_u32_u24 v{T[14]}, 10240, v{T[3]}")
    e(f"v_lshl_add_u32 v{T[14]}, v{T[13]}, 4, v{T[14]}")
    e(f"s_mul_i32 s{sT0}, s{sF0}, 1280")
    e(f"v_add_u32 v{T[14]}, s{sT0}, v{T[14]}")
    e(f"v_cmp_le_u32 vcc, 160, v{T[6]}")
    e(f"v_mov_b32 v{T[15]}, 0x7f000000")
    e(f"v_cndmask_b32 v{T[14]}, v{T[14]}, v{T[15]}, vcc")
    e(f"v_lshrrev_b32 v{T[15]}, 1, v{T[13]}")
    e(f"v_lshlrev_b32 v{T[15]}, 9, v{T[15]}")
    e(f"v_lshl_add_u32 v{T[15]}, v{T[3]}, 8, v{T[15]}")
    e(f"v_and_b32 v{T[13]}, 1, v{T[13]}")
    e(f"v_lshl_add_u32 v{T[15]}, v{T[13]}, 7, v{T[15]}")
    e(f"v_add_u32 v{T[15]}, {L_W2}, v{T[15]}")
    e(f"s_cmp_lt_u32 s{sW}, 3")
    e(f"s_cselect_b64 s[{sT2}:{sT3}], -1, 0")
    e(f"v_cndmask_b32 v{VWG}, v{T[14]}, v{T[7]}, s[{sT2}:{sT3}]")
    e(f"v_cndmask_b32 v{VWL}, v{T[15]}, v{T[2]}, s[{sT2}:{sT3}]")
    e(f"s_cselect_b32 s{SRD_WT}, s16, s18")
    e(f"s_cselect_b32 s{SRD_WT+1}, s17, s19")
    e(f"s_movk_i32 s{sRS}, 1280")
    e(f"s_cselect_b32 s{sRS}, 3072, s{sRS}")
    e(f"s_mov_b32 s{SRD_WT+2}, {640*1536*2}")
    e(f"s_cmp_lt_u32 s{sMEM}, 5")
    e(f"s_cselect_b64 s[{sT2}:{sT3}], -1, 0")
    e(f"v_cndmask_b32 v{VWG}, v{VWG}, v{T[4]}, s[{sT2}:{sT3}]")
    e(f"v_cndmask_b32 v{VWL}, v{VWL}, v{T[5]}, s[{sT2}:{sT3}]")
    e(f"s_cselect_b32 s{SRD_WT}, s12, s{SRD_WT}")
    e(f"s_cselect_b32 s{SRD_WT+1}, s13, s{SRD_WT+1}")
    e(f"s_cselect_b32 s{sRS}, 1280, s{sRS}")
    e(f"s_cselect_b32 s{SRD_WT+2}, {6144*640*2}, s{SRD_WT+2}")
    e(f"s_mov_b32 s{SRD_WT+3}, 0x20000")
    e(f"s_cmp_ge_u32 s{sW}, 6")
    e(f"s_cselect_b64 s[{sT2}:{sT3}], -1, 0")
    e(f"v_mov_b32 v{T[2]}, 0x7f000000")
    e(f"v_cndmask_b32 v{VWG}, v{VWG}, v{T[2]}, s[{sT2}:{sT3}]")
    e(f"v_mul_u32_u24 v{VRED}, 96, v{VC}")
    e(f"v_mul_u32_u24 v{T[2]}, 12, v{VG}")
    e(f"v_add_u32 v{VRED}, v{VRED}, v{T[2]}")
    e(f"s_mul_i32 s{sT0}, s{sW}, 832")
    e(f"v_add_u32 v{VRED}, s{sT0}, v{VRED}")

    def wave_reduce(v, op, tmp, full=True, n=64):
        for ctl in ("quad_perm:[1,0,3,2]", "quad_perm:[2,3,0,1]", "row_half_mirror", "row_mirror"):
            e(f"v_{op}_dpp v{v}, v{v}, v{v} {ctl} row_mask:0xf bank_mask:0xf")
        e(f"v_mov_b32 v{tmp}, v{v}")
        e(f"v_permlane16_swap_b32 v{v}, v{tmp}")
        e(f"v_{op} v{v}, v{v}, v{tmp}")
        if n == 64:
            e(f"v_mov_b32 v{tmp}, v{v}")
            e(f"v_permlane32_swap_b32 v{v}, v{tmp}")
            e(f"v_{op} v{v}, v{v}, v{tmp}")
    def group_reduce(v, op, tmp):
        e(f"v_{op}_dpp v{v}, v{v}, v{v} row_ror:8 row_mask:0xf bank_mask:0xf")
        e(f"v_mov_b32 v{tmp}, v{v}")
        e(f"v_permlane16_swap_b32 v{v}, v{tmp}")
        e(f"v_{op} v{v}, v{v}, v{tmp}")
        e(f"v_mov_b32 v{tmp}, v{v}")
        e(f"v_permlane32_swap_b32 v{v}, v{tmp}")
        e(f"v_{op} v{v}, v{v}, v{tmp}")
    def bf16r(v):
        e(f"v_cvt_pk_bf16_f32 v{v}, v{v}, v{v}")
        e(f"v_lshlrev_b32 v{v}, 16, v{v}")
    def acc_reduce_to_lds():
        a = ACC
        for k in range(12): e(f"v_permlane32_swap_b32 v{a+k}, v{a+k+12}")
        for k in range(12): e(f"v_add_f32 v{a+k}, v{a+k}, v{a+k+12}")
        for k in range(6): e(f"v_permlane16_swap_b32 v{a+k}, v{a+k+6}")
        for k in range(6): e(f"v_add_f32 v{a+k}, v{a+k}, v{a+k+6}")
        for k in range(3): e(f"v_add_f32_dpp v{a+12+k}, v{a+k}, v{a+k} row_ror:8 row_mask:0xf bank_mask:0x3")
        for k in range(3): e(f"v_add_f32_dpp v{a+12+k}, v{a+3+k}, v{a+3+k} row_ror:8 row_mask:0xf bank_mask:0xc")
        e(f"ds_write2_b32 v{VRED}, v{a+12}, v{a+13} offset0:0 offset1:1")
        e(f"ds_write_b32 v{VRED}, v{a+14} offset:8")
    def axpy_tile(idx, preg, first):
        s = slot_of[idx][0]
        for j in range(3):
            A.wait_vm(tick[idx][j])
            r = RING + s*12 + j*4
            for i in range(4):
                lo, hi = T[(2*i) % 8], T[(2*i+1) % 8]
                e(f"v_lshlrev_b32 v{lo}, 16, v{r+i}")
                e(f"v_and_b32 v{hi}, s{sMASK}, v{r+i}")
                k = ACC + 8*j + 2*i
                if first:
                    e(f"v_mul_f32 v{k}, v{preg}, v{lo}"); e(f"v_mul_f32 v{k+1}, v{preg}, v{hi}")
                else:
                    e(f"v_fmac_f32 v{k}, v{preg}, v{lo}"); e(f"v_fmac_f32 v{k+1}, v{preg}, v{hi}")
    def spin_begin(lbl):
        e(f"s_mov_b32 s{sSPIN}, 0")
        A.label(lbl); A.fence()
    def spin_end(lbl, done_lbl, sleep=1):
        e(f"s_cbranch_vccz {done_lbl}")
        e(f"s_add_u32 s{sSPIN}, s{sSPIN}, 1")
        e(f"s_cmp_ge_u32 s{sSPIN}, {spin_limit}")
        e(f"s_cbranch_scc1 {done_lbl}")
        if sleep: e(f"s_sleep {sleep}")
        e(f"s_branch {lbl}")
        A.label(done_lbl); A.fence()

    A.wait_vm(tk_x)
    xs = [T[i] for i in range(0, 8)] + [SC+24, SC+25]
    xs = [SC + i for i in range(0, 10)]
    for i in range(5):
        e(f"v_lshlrev_b32 v{xs[2*i]}, 16, v{XS+i}")
        e(f"v_and_b32 v{xs[2*i+1]}, s{sMASK}, v{XS+i}")
    s_, t_ = T[0], T[1]
    e(f"v_add_f32 v{s_}, v{xs[0]}, v{xs[1]}")
    for i in range(2, 10): e(f"v_add_f32 v{s_}, v{s_}, v{xs[i]}")
    wave_reduce(s_, "add_f32", t_)
    e(f"v_mul_f32 v{s_}, {hex(f32(1.0/640))}, v{s_}")
    q_ = T[2]
    for i in range(10):
        e(f"v_sub_f32 v{xs[i]}, v{xs[i]}, v{s_}")
        if i == 0: e(f"v_mul_f32 v{q_}, v{xs[i]}, v{xs[i]}")
        else: e(f"v_fmac_f32 v{q_}, v{xs[i]}, v{xs[i]}")
    wave_reduce(q_, "add_f32", t_)
    e(f"v_mul_f32 v{q_}, {hex(f32(1.0/640))}, v{q_}")
    bf16r(s_); bf16r(q_)
    e(f"v_add_f32 v{q_}, {hex(f32(1e-5))}, v{q_}")
    bf16r(q_)
    e(f"v_sqrt_f32 v{q_}, v{q_}")
    bf16r(q_)
    e(f"v_rcp_f32 v{q_}, v{q_}")
    for i in range(5):
        e(f"v_lshlrev_b32 v{SC+2*i}, 16, v{XO+i}")
        e(f"v_and_b32 v{SC+2*i+1}, s{sMASK}, v{XO+i}")
    for i in range(10):
        e(f"v_sub_f32 v{SC+i}, v{SC+i}, v{s_}")
        bf16r(SC+i)
        e(f"v_mul_f32 v{SC+i}, v{SC+i}, v{q_}")
        bf16r(SC+i)
    stamp()
    LOG2E = hex(f32(1.4426950408889634))
    SCALE = hex(f32(192 ** -0.5))
    for idx, (kind, t) in enumerate(items):
        if kind == 'Q':
            axpy_tile(idx, SC + t, t == 0)
            free.extend(slot_of[idx]); refill_q(idx)
            if t == 9:
                refill(idx, ring_tiles)
                acc_reduce_to_lds()
                e("s_waitcnt lgkmcnt(0)")
                e("s_barrier")
                e(f"s_cmp_lg_u32 s{sW}, 0")
                e("s_cbranch_scc1 L_q_skip")
                e(f"v_lshlrev_b32 v{T[0]}, 4, v{VLANE}")
                for w in range(8):
                    d = (ACC + 4*w) if w < 6 else (T[8] + 4*(w-6))
                    e(f"ds_read_b128 v[{d}:{d+3}], v{T[0]} offset:{L_RED + w*832}")
                e(f"v_mov_b32 v{T[1]}, 1")
                e(f"v_mov_b32 v{T[2]}, 0")
                e("s_mov_b64 exec, 1")
                A.vm_issued -= 0
                A.lines.append(f"    buffer_atomic_add v{T[1]}, v{T[2]}, {srd(SRD_DBG)}, 0 offen sc1")
                e("s_mov_b64 exec, -1")
                e("s_waitcnt lgkmcnt(0)")
                for w in range(1, 8):
                    d = (ACC + 4*w) if w < 6 else (T[8] + 4*(w-6))
                    for i in range(4): e(f"v_add_f32 v{ACC+i}, v{ACC+i}, v{d+i}")
                e(f"v_cvt_pk_bf16_f32 v{T[2]}, v{ACC}, v{ACC+1}")
                e(f"v_cvt_pk_bf16_f32 v{T[3]}, v{ACC+2}, v{ACC+3}")
                e(f"v_lshlrev_b32 v{T[0]}, 3, v{VLANE}")
                e(f"v_cmp_gt_u32 vcc, 48, v{VLANE}")
                e(f"s_and_saveexec_b64 s[{sT2}:{sT3}], vcc")
                e(f"ds_write_b64 v{T[0]}, v[{T[2]}:{T[3]}] offset:{L_QS}")
                e(f"s_mov_b64 exec, -1")
                e("s_waitcnt lgkmcnt(0)")
                A.label("L_q_skip"); A.fence()
                e("s_barrier")
                e(f"v_mul_u32_u24 v{T[0]}, 48, v{VC}")
                for j in range(3):
                    e(f"ds_read_b128 v[{Q+4*j}:{Q+4*j+3}], v{T[0]} offset:{L_QS + 16*j}")
                e("s_waitcnt lgkmcnt(0)")
                stamp()
        elif kind == 'K':
            s = slot_of[idx][0]
            for j in range(3):
                A.wait_vm(tick[idx][j])
                r = RING + s*12 + j*4
                for i in range(4):
                    c = "0" if i == 0 else f"v{T[j]}"
                    e(f"v_dot2_f32_bf16 v{T[j]}, v{r+i}, v{Q+4*j+i}, {c}")
            free.extend(slot_of[idx]); refill(idx, depth)
            sc = SC + t
            e(f"v_add_f32 v{sc}, v{T[0]}, v{T[1]}")
            e(f"v_add_f32 v{sc}, v{sc}, v{T[2]}")
            for ctl in ("quad_perm:[1,0,3,2]", "quad_perm:[2,3,0,1]", "row_half_mirror"):
                e(f"v_add_f32_dpp v{sc}, v{sc}, v{sc} {ctl} row_mask:0xf bank_mask:0xf")
            bf16r(sc)
            e(f"v_mul_f32 v{sc}, {SCALE}, v{sc}")
            bf16r(sc)
            if t == 31:
                stamp()
                m = T[0]
                e(f"v_max3_f32 v{m}, v{SC}, v{SC+1}, v{SC+2}")
                for i in range(3, 31, 2): e(f"v_max3_f32 v{m}, v{m}, v{SC+i}, v{SC+i+1}")
                e(f"v_max_f32 v{m}, v{m}, v{SC+31}")
                group_reduce(m, "max_f32", T[1])
                e(f"s_lshl_b32 s{sT0}, s{sW}, 2")
                e(f"v_mov_b32 v{T[1]}, s{sT0}")
                e(f"ds_write_b32 v{T[1]}, v{m} offset:{L_MX}")
                e("s_waitcnt lgkmcnt(0)")
                e("s_barrier")
                e(f"v_mov_b32 v{T[1]}, 0")
                e(f"ds_read_b128 v[{T[4]}:{T[7]}], v{T[1]} offset:{L_MX}")
                e(f"ds_read_b128 v[{T[8]}:{T[11]}], v{T[1]} offset:{L_MX+16}")
                e("s_waitcnt lgkmcnt(0)")
                e(f"v_max3_f32 v{m}, v{T[4]}, v{T[5]}, v{T[6]}")
                e(f"v_max3_f32 v{m}, v{m}, v{T[7]}, v{T[8]}")
                e(f"v_max3_f32 v{m}, v{m}, v{T[9]}, v{T[10]}")
                e(f"v_max_f32 v{m}, v{m}, v{T[11]}")
                for i in range(32):
                    e(f"v_sub_f32 v{SC+i}, v{SC+i}, v{m}")
                    e(f"v_mul_f32 v{SC+i}, {LOG2E}, v{SC+i}")
                    e(f"v_exp_f32 v{SC+i}, v{SC+i}")
                l = T[5]
                e(f"v_add_f32 v{l}, v{SC}, v{SC+1}")
                for i in range(2, 32): e(f"v_add_f32 v{l}, v{l}, v{SC+i}")
                group_reduce(l, "add_f32", T[1])
                e(f"s_cmp_eq_u32 s{sW}, 0")
                e(f"s_cselect_b64 s[{sT2}:{sT3}], -1, 0")
                e(f"v_cndmask_b32 v{T[4]}, 0, v{m}, s[{sT2}:{sT3}]")
                e(f"v_mov_b32 v{T[6]}, 0"); e(f"v_mov_b32 v{T[7]}, 0")
                e(f"s_mul_i32 s{sT0}, s{sW}, 832")
                e(f"v_mov_b32 v{T[1]}, s{sT0}")
                e(f"ds_write_b128 v{T[1]}, v[{T[4]}:{T[7]}] offset:{L_RED+768}")
        elif kind == 'V':
            if t == 8:
                e(f"v_mov_b32 v{SP[3]}, 0")
                tk_cnt = e(f"buffer_load_dword v{SP[4]}, v{SP[3]}, {srd(SRD_DBG)}, 0 offen sc1")
            axpy_tile(idx, SC + t, t == 0)
            free.extend(slot_of[idx]); refill(idx, depth)
        elif kind == 'W':
            sl = slot_of[idx]
            regs = [RING + s*12 + j*4 for s in sl for j in range(3)][:8]
            A.wait_vm(tick[idx][7])
            e(f"s_cmp_ge_u32 s{sW}, 6")
            e("s_cbranch_scc1 L_w_skip")
            for i in range(4):
                tb = T[0] if i % 2 == 0 else T[8]
                for kp in range(4):
                    e(f"v_perm_b32 v{tb+kp}, v{regs[2*kp+1]+i}, v{regs[2*kp]+i}, s{sPLO}")
                    e(f"v_perm_b32 v{tb+4+kp}, v{regs[2*kp+1]+i}, v{regs[2*kp]+i}, s{sPHI}")
                e(f"ds_write_b128 v{VWL}, v[{tb}:{tb+3}] offset:{32*i}")
                e(f"ds_write_b128 v{VWL}, v[{tb+4}:{tb+7}] offset:{32*i+16}")
            e("s_waitcnt lgkmcnt(0)")
            A.label("L_w_skip"); A.fence()
            free.extend(sl); refill(idx, depth)
    stamp()
    acc_reduce_to_lds()
    A.wait_vm(tk_cnt)
    e(f"v_cmp_gt_u32 vcc, 256, v{SP[4]}")
    e("s_cbranch_vccz L_cnt_ok")
    spin_begin("L_cnt_spin")
    e(f"buffer_load_dword v{SP[4]}, v{SP[3]}, {srd(SRD_DBG)}, 0 offen sc1")
    e("s_waitcnt vmcnt(0)")
    e(f"v_cmp_gt_u32 vcc, 256, v{SP[4]}")
    spin_end("L_cnt_spin", "L_cnt_ok")
    e("s_waitcnt lgkmcnt(0)")
    e("s_barrier")
    e(f"s_cmp_lg_u32 s{sW}, 0")
    e("s_cbranch_scc1 L_pub_skip")
    e(f"v_lshlrev_b32 v{T[0]}, 4, v{VLANE}")
    for w in range(8):
        d = (ACC + 4*w) if w < 6 else (T[8] + 4*(w-6))
        e(f"ds_read_b128 v[{d}:{d+3}], v{T[0]} offset:{L_RED + w*832}")
    e(f"s_lshl_b32 s{sT0}, s{sH}, 3")
    e(f"s_add_u32 s{sT0}, s{sT0}, s{sMEM}")
    e(f"s_lshl_b32 s{sT0}, s{sT0}, 10")
    e(f"v_cmp_gt_u32 vcc, 49, v{VLANE}")
    e(f"v_mov_b32 v{T[1]}, {WS_SIZE}")
    e(f"v_cndmask_b32 v{T[0+2]}, v{T[1]}, v{T[0]}, vcc")
    e("s_waitcnt lgkmcnt(0)")
    for w in range(1, 8):
        d = (ACC + 4*w) if w < 6 else (T[8] + 4*(w-6))
        for i in range(4): e(f"v_add_f32 v{ACC+i}, v{ACC+i}, v{d+i}")
    for i in range(4): e(f"v_min_u32 v{ACC+i}, -2, v{ACC+i}")
    e(f"buffer_store_dwordx4 v[{ACC}:{ACC+3}], v{T[2]}, {srd(SRD_WS)}, s{sT0} offen sc1")
    A.label("L_pub_skip"); A.fence()
    stamp()
    e(f"s_cmp_ge_u32 s{sMEM}, 5")
    e("s_cbranch_scc1 L_mlp")
    FR = RING
    e(f"v_lshlrev_b32 v{T[0]}, 4, v{VLANE}")
    e(f"s_mul_i32 s{sT0}, s{sW}, 6144")
    e(f"v_add_u32 v{T[0]}, s{sT0}, v{T[0]}")
    for ks in range(6):
        e(f"ds_read_b128 v[{FR+4*ks}:{FR+4*ks+3}], v{T[0]} offset:{L_W + ks*1024}")
    j_, g4 = T[1], T[2]
    e(f"v_and_b32 v{j_}, 15, v{VLANE}")
    e(f"v_lshrrev_b32 v{g4}, 4, v{VLANE}")
    VBA, VYA = SP[5], SP[6]
    e(f"v_and_b32 v{T[3]}, 1, v{j_}")
    e(f"v_mul_u32_u24 v{VBA}, 384, v{T[3]}")
    e(f"v_lshl_add_u32 v{VBA}, v{g4}, 4, v{VBA}")
    e(f"v_mul_u32_u24 v{VYA}, 80, v{j_}")
    e(f"v_lshrrev_b32 v{T[3]}, 1, v{g4}")
    e(f"v_add_u32 v{VYA}, v{VYA}, v{T[3]}")
    e(f"s_lshl_b32 s{sT0}, s{sMEM}, 4")
    e(f"s_lshl_b32 s{sT1}, s{sW}, 1")
    e(f"s_add_u32 s{sT0}, s{sT0}, s{sT1}")
    e(f"v_add_u32 v{VYA}, s{sT0}, v{VYA}")
    e(f"v_lshlrev_b32 v{VYA}, 10, v{VYA}")
    e(f"v_and_b32 v{T[3]}, 1, v{g4}")
    e(f"v_lshl_add_u32 v{VYA}, v{T[3]}, 4, v{VYA}")
    e(f"s_lshl_b32 s{sT0}, s{sH}, 5")
    e(f"s_add_u32 s{sT0}, s{sT0}, {WS_Y}")
    e(f"v_add_u32 v{VYA}, s{sT0}, v{VYA}")
    e(f"v_cmp_lt_u32 vcc, 1, v{j_}")
    e(f"v_mov_b32 v{T[3]}, {WS_SIZE}")
    e(f"v_cndmask_b32 v{VYA}, v{VYA}, v{T[3]}, vcc")
    e(f"s_cmp_ge_u32 s{sW}, 4")
    e("s_cbranch_scc1 L_wo_bar")
    PO = ACC
    PM = ACC + 8
    e(f"s_lshr_b32 s{sT0}, s{sW}, 1")
    e(f"s_lshl_b32 s{sT0}, s{sT0}, 2")
    e(f"s_lshl_b32 s{sT1}, s{sH}, 3")
    e(f"s_add_u32 s{sT0}, s{sT0}, s{sT1}")
    e(f"s_lshl_b32 s{sT0}, s{sT0}, 10")
    e(f"s_and_b32 s{sT1}, s{sW}, 1")
    e(f"s_mul_i32 s{sT1}, s{sT1}, 384")
    e(f"v_lshlrev_b32 v{T[4]}, 3, v{VLANE}")
    e(f"v_add_u32 v{T[4]}, s{sT1}, v{T[4]}")
    e(f"v_cmp_gt_u32 vcc, 48, v{VLANE}")
    e(f"v_cndmask_b32 v{T[4]}, v{T[3]}, v{T[4]}, vcc")
    e(f"v_mov_b32 v{T[5]}, 768")
    spin_begin("L_a_spin")
    for s in range(4):
        e(f"buffer_load_dwordx2 v[{PO+2*s}:{PO+2*s+1}], v{T[4]}, {srd(SRD_WS)}, s{sT0} offen offset:{1024*s} sc1")
        e(f"buffer_load_dwordx2 v[{PM+2*s}:{PM+2*s+1}], v{T[5]}, {srd(SRD_WS)}, s{sT0} offen offset:{1024*s} sc1")
    e("s_waitcnt vmcnt(0)")
    e(f"v_max3_u32 v{T[6]}, v{PO}, v{PO+1}, v{PO+2}")
    for i in range(3, 15, 2): e(f"v_max3_u32 v{T[6]}, v{T[6]}, v{PO+i}, v{PO+i+1}")
    e(f"v_max_u32 v{T[6]}, v{T[6]}, v{PO+15}")
    e(f"v_cmp_eq_u32 vcc, -1, v{T[6]}")
    spin_end("L_a_spin", "L_a_done")
    M = T[6]
    e(f"v_max3_f32 v{M}, v{PM}, v{PM+2}, v{PM+4}")
    e(f"v_max_f32 v{M}, v{M}, v{PM+6}")
    for s in range(4):
        e(f"v_sub_f32 v{PM+2*s}, v{PM+2*s}, v{M}")
        e(f"v_mul_f32 v{PM+2*s}, {LOG2E}, v{PM+2*s}")
        e(f"v_exp_f32 v{PM+2*s}, v{PM+2*s}")
    Ls = T[7]
    e(f"v_mul_f32 v{Ls}, v{PM}, v{PM+1}")
    for s in range(1, 4): e(f"v_fmac_f32 v{Ls}, v{PM+2*s}, v{PM+2*s+1}")
    e(f"v_rcp_f32 v{Ls}, v{Ls}")
    e(f"v_mul_f32 v{T[8]}, v{PM}, v{PO}")
    e(f"v_mul_f32 v{T[9]}, v{PM}, v{PO+1}")
    for s in range(1, 4):
        e(f"v_fmac_f32 v{T[8]}, v{PM+2*s}, v{PO+2*s}")
        e(f"v_fmac_f32 v{T[9]}, v{PM+2*s}, v{PO+2*s+1}")
    e(f"v_mul_f32 v{T[8]}, v{T[8]}, v{Ls}")
    e(f"v_mul_f32 v{T[9]}, v{T[9]}, v{Ls}")
    e(f"v_cvt_pk_bf16_f32 v{T[8]}, v{T[8]}, v{T[9]}")
    e(f"s_mul_i32 s{sT0}, s{sW}, 192")
    e(f"v_lshlrev_b32 v{T[9]}, 2, v{VLANE}")
    e(f"v_add_u32 v{T[9]}, s{sT0}, v{T[9]}")
    e(f"v_cmp_gt_u32 vcc, 48, v{VLANE}")
    e(f"s_and_saveexec_b64 s[{sT2}:{sT3}], vcc")
    e(f"ds_write_b32 v{T[9]}, v{T[8]} offset:{L_OB}")
    e("s_mov_b64 exec, -1")
    A.label("L_wo_bar"); A.fence()
    e("s_waitcnt lgkmcnt(0)")
    e("s_barrier")
    BF = RING + 24
    for ks in range(6):
        e(f"ds_read_b128 v[{BF+4*ks}:{BF+4*ks+3}], v{VBA} offset:{L_OB + 64*ks}")
    D = T[8]
    for ks in range(6):
        e(f"s_waitcnt lgkmcnt({5-ks})")
        c = "0" if ks == 0 else f"v[{D}:{D+3}]"
        e(f"v_mfma_f32_16x16x32_bf16 v[{D}:{D+3}], v[{FR+4*ks}:{FR+4*ks+3}], v[{BF+4*ks}:{BF+4*ks+3}], {c}")
    for i in range(4): e(f"v_min_u32 v{D+i}, -2, v{D+i}")
    e(f"buffer_store_dwordx4 v[{D}:{D+3}], v{VYA}, {srd(SRD_WS)}, 0 offen sc1")
    e(f"s_cmp_lg_u32 s{sW}, 0")
    e("s_cbranch_scc1 L_end")
    stamp()
    col = T[0]
    e(f"v_and_b32 v{col}, 1, v{VLANE}")
    e(f"v_lshlrev_b32 v{col}, 2, v{col}")
    e(f"v_lshrrev_b32 v{T[1]}, 5, v{VLANE}")
    e(f"v_lshl_add_u32 v{col}, v{T[1]}, 1, v{col}")
    e(f"v_bfe_u32 v{T[1]}, v{VLANE}, 4, 1")
    e(f"v_add_u32 v{col}, v{col}, v{T[1]}")
    e(f"s_lshl_b32 s{sT0}, s{sR}, 3")
    e(f"v_add_u32 v{col}, s{sT0}, v{col}")
    e(f"v_lshlrev_b32 v{T[1]}, 1, v{col}")
    e(f"buffer_load_ushort v{T[2]}, v{T[1]}, {srd(SRD_X)}, 0 offen")
    e(f"v_and_b32 v{T[3]}, 14, v{VLANE}")
    e(f"v_cmp_ne_u32 vcc, 0, v{T[3]}")
    e(f"v_mov_b32 v{T[3]}, {WS_SIZE}")
    e(f"v_lshlrev_b32 v{T[4]}, 2, v{col}")
    e(f"v_add_u32 v{T[4]}, {WS_H}, v{T[4]}")
    e(f"v_cndmask_b32 v{T[4]}, v{T[4]}, v{T[3]}, vcc")
    e(f"v_cndmask_b32 v{T[1]}, v{T[1]}, v{T[3]}, vcc")
    e(f"v_lshlrev_b32 v{T[5]}, 4, v{VLANE}")
    e(f"s_lshl_b32 s{sT0}, s{sR}, 10")
    e(f"s_add_u32 s{sT0}, s{sT0}, {WS_Y}")
    Yr = ACC
    def red8(y):
        e(f"v_permlane32_swap_b32 v{y}, v{y+2}")
        e(f"v_permlane32_swap_b32 v{y+1}, v{y+3}")
        e(f"v_add_f32 v{y}, v{y}, v{y+2}")
        e(f"v_add_f32 v{y+1}, v{y+1}, v{y+3}")
        e(f"v_permlane16_swap_b32 v{y}, v{y+1}")
        e(f"v_add_f32 v{y}, v{y}, v{y+1}")
        for k in (8, 4, 2):
            e(f"v_add_f32_dpp v{y}, v{y}, v{y} row_ror:{k} row_mask:0xf bank_mask:0xf")
    spin_begin("L_b_spin")
    e(f"buffer_load_dwordx4 v[{Yr}:{Yr+3}], v{T[5]}, {srd(SRD_WS)}, s{sT0} offen sc1")
    e("s_waitcnt vmcnt(0)")
    e(f"v_max3_u32 v{T[6]}, v{Yr}, v{Yr+1}, v{Yr+2}")
    e(f"v_max_u32 v{T[6]}, v{T[6]}, v{Yr+3}")
    e(f"v_cmp_eq_u32 vcc, -1, v{T[6]}")
    spin_end("L_b_spin", "L_b_done")
    red8(Yr)
    bf16r(Yr)
    e(f"v_lshlrev_b32 v{T[2]}, 16, v{T[2]}")
    e(f"v_add_f32 v{T[2]}, v{T[2]}, v{Yr}")
    bf16r(T[2])
    e(f"buffer_store_dword v{T[2]}, v{T[4]}, {srd(SRD_WS)}, 0 offen sc1")
    stamp()
    e(f"s_mul_i32 s{sT0}, s{sR}, 3072")
    e(f"s_add_u32 s{sT0}, s{sT0}, {WS_Z}")
    spin_begin("L_c_spin")
    for i in range(3):
        e(f"buffer_load_dwordx4 v[{Yr+4*i}:{Yr+4*i+3}], v{T[5]}, {srd(SRD_WS)}, s{sT0} offen offset:{1024*i} sc1")
    e("s_waitcnt vmcnt(0)")
    e(f"v_max3_u32 v{T[6]}, v{Yr}, v{Yr+1}, v{Yr+2}")
    for i in range(3, 11, 2): e(f"v_max3_u32 v{T[6]}, v{T[6]}, v{Yr+i}, v{Yr+i+1}")
    e(f"v_max_u32 v{T[6]}, v{T[6]}, v{Yr+11}")
    e(f"v_cmp_eq_u32 vcc, -1, v{T[6]}")
    spin_end("L_c_spin", "L_c_done")
    for i in range(4):
        e(f"v_add_f32 v{Yr+i}, v{Yr+i}, v{Yr+4+i}")
        e(f"v_add_f32 v{Yr+i}, v{Yr+i}, v{Yr+8+i}")
    red8(Yr)
    bf16r(Yr)
    e(f"v_add_f32 v{Yr}, v{Yr}, v{T[2]}")
    if perturb:
        e(f"v_cmp_eq_u32 vcc, 0, v{col}")
        e(f"v_mov_b32 v{T[6]}, {hex(f32(perturb))}")
        e(f"v_cndmask_b32 v{T[6]}, 0, v{T[6]}, vcc")
        e(f"v_add_f32 v{Yr}, v{Yr}, v{T[6]}")
    e(f"v_cvt_pk_bf16_f32 v{Yr}, v{Yr}, v{Yr}")
    e(f"buffer_store_short v{Yr}, v{T[1]}, {srd(SRD_OUT)}, 0 offen")
    stamp()
    e("s_branch L_fin")
    A.label("L_mlp"); A.fence()
    nstamp_save = nstamp[0]; nstamp[0] = 6 if stamps else 0
    e(f"s_cmp_ge_u32 s{sW}, 4")
    e("s_cbranch_scc1 L_end")
    F1 = RING
    F2 = RING + 80
    HB = ACC
    BFm = SC
    e(f"v_lshlrev_b32 v{T[0]}, 4, v{VLANE}")
    for ks in range(20):
        e(f"ds_read_b128 v[{F1+4*ks}:{F1+4*ks+3}], v{T[0]} offset:{L_W + ks*1024}")
        if ks % 8 == 7: e("s_waitcnt lgkmcnt(4)")
    i_, g4 = T[1], T[2]
    e(f"v_and_b32 v{i_}, 15, v{VLANE}")
    e(f"v_lshrrev_b32 v{g4}, 4, v{VLANE}")
    e(f"v_lshrrev_b32 v{T[3]}, 1, v{g4}")
    e(f"v_lshlrev_b32 v{T[3]}, 8, v{T[3]}")
    e(f"v_lshl_add_u32 v{T[3]}, v{i_}, 4, v{T[3]}")
    e(f"v_and_b32 v{T[4]}, 1, v{g4}")
    e(f"v_lshl_add_u32 v{T[3]}, v{T[4]}, 3, v{T[3]}")
    e(f"s_mul_i32 s{sT0}, s{sW}, 5120")
    e(f"v_add_u32 v{T[3]}, s{sT0}, v{T[3]}")
    e("s_waitcnt lgkmcnt(4)")
    for tt in range(10):
        e(f"ds_read_b64 v[{F2+2*tt}:{F2+2*tt+1}], v{T[3]} offset:{L_W2 + tt*512}")
    VLW, VLR, VZA = SP[5], SP[6], SP[7]
    e(f"s_mul_i32 s{sT0}, s{sW}, 2560")
    e(f"s_add_u32 s{sT0}, s{sT0}, {L_LN}")
    e(f"v_mul_u32_u24 v{VLW}, 40, v{VLANE}")
    e(f"v_add_u32 v{VLW}, s{sT0}, v{VLW}")
    e(f"v_and_b32 v{T[4]}, 1, v{i_}")
    e(f"v_mul_u32_u24 v{VLR}, 1280, v{T[4]}")
    e(f"v_lshl_add_u32 v{VLR}, v{g4}, 4, v{VLR}")
    e(f"v_add_u32 v{VLR}, s{sT0}, v{VLR}")
    e(f"v_mul_u32_u24 v{VZA}, 80, v{i_}")
    e(f"v_lshrrev_b32 v{T[4]}, 1, v{g4}")
    e(f"v_add_u32 v{VZA}, v{VZA}, v{T[4]}")
    e(f"s_mul_i32 s{sT0}, s{sW}, 20")
    e(f"v_add_u32 v{VZA}, s{sT0}, v{VZA}")
    e(f"v_mul_u32_u24 v{VZA}, 3072, v{VZA}")
    e(f"v_and_b32 v{T[4]}, 1, v{g4}")
    e(f"v_lshl_add_u32 v{VZA}, v{T[4]}, 4, v{VZA}")
    e(f"s_lshl_b32 s{sT0}, s{sF0}, 1")
    e(f"s_add_u32 s{sT0}, s{sT0}, {WS_Z}")
    e(f"v_add_u32 v{VZA}, s{sT0}, v{VZA}")
    e(f"v_cmp_lt_u32 vcc, 1, v{i_}")
    e(f"v_mov_b32 v{T[4]}, {WS_SIZE}")
    e(f"v_cndmask_b32 v{VZA}, v{VZA}, v{T[4]}, vcc")
    e(f"v_mul_u32_u24 v{T[5]}, 80, v{VLANE}")
    e(f"s_mov_b32 s{sT0}, {WS_H}")
    spin_begin("L_h_spin")
    for i in range(5):
        e(f"buffer_load_dwordx4 v[{HB+4*i}:{HB+4*i+3}], v{T[5]}, {srd(SRD_WS)}, s{sT0} offen offset:{16*i} sc1")
    e("s_waitcnt vmcnt(0)")
    e(f"v_max3_u32 v{T[6]}, v{HB}, v{HB+1}, v{HB+2}")
    for i in range(3, 19, 2): e(f"v_max3_u32 v{T[6]}, v{T[6]}, v{HB+i}, v{HB+i+1}")
    e(f"v_max_u32 v{T[6]}, v{T[6]}, v{HB+19}")
    e(f"v_cmp_eq_u32 vcc, -1, v{T[6]}")
    spin_end("L_h_spin", "L_h_done")
    stamp()
    s_, t_, q_ = T[0], T[1], T[2]
    e(f"v_pk_add_f32 v[{T[4]}:{T[5]}], v[{HB}:{HB+1}], v[{HB+2}:{HB+3}]")
    for i in range(4, 20, 2): e(f"v_pk_add_f32 v[{T[4]}:{T[5]}], v[{T[4]}:{T[5]}], v[{HB+i}:{HB+i+1}]")
    e(f"v_add_f32 v{s_}, v{T[4]}, v{T[5]}")
    wave_reduce(s_, "add_f32", t_, n=32)
    e(f"v_mul_f32 v{s_}, {hex(f32(-1.0/640))}, v{s_}")
    for i in range(0, 20, 2):
        e(f"v_pk_add_f32 v[{T[6]}:{T[7]}], v[{HB+i}:{HB+i+1}], v[{s_}:{s_+1}] op_sel_hi:[1,0]")
        if i == 0: e(f"v_pk_mul_f32 v[{T[4]}:{T[5]}], v[{T[6]}:{T[7]}], v[{T[6]}:{T[7]}]")
        else: e(f"v_pk_fma_f32 v[{T[4]}:{T[5]}], v[{T[6]}:{T[7]}], v[{T[6]}:{T[7]}], v[{T[4]}:{T[5]}]")
    e(f"v_add_f32 v{q_}, v{T[4]}, v{T[5]}")
    wave_reduce(q_, "add_f32", T[3], n=32)
    e(f"v_mul_f32 v{q_}, {hex(f32(1.0/640))}, v{q_}")
    bf16r(s_); bf16r(q_)
    e(f"v_add_f32 v{q_}, {hex(f32(1e-5))}, v{q_}")
    bf16r(q_)
    e(f"v_sqrt_f32 v{q_}, v{q_}")
    bf16r(q_)
    e(f"v_rcp_f32 v{q_}, v{q_}")
    for i in range(0, 20, 2):
        a = HB + i
        e(f"v_pk_add_f32 v[{a}:{a+1}], v[{a}:{a+1}], v[{s_}:{s_+1}] op_sel_hi:[1,0]")
        e(f"v_cvt_pk_bf16_f32 v{a+1}, v{a}, v{a+1}")
        e(f"v_lshlrev_b32 v{a}, 16, v{a+1}")
        e(f"v_and_b32 v{a+1}, s{sMASK}, v{a+1}")
        e(f"v_pk_mul_f32 v[{a}:{a+1}], v[{a}:{a+1}], v[{q_}:{q_+1}] op_sel_hi:[1,0]")
        e(f"v_cvt_pk_bf16_f32 v{Q + i//2}, v{a}, v{a+1}")
    for i in range(5):
        e(f"ds_write_b64 v{VLW}, v[{Q+2*i}:{Q+2*i+1}] offset:{8*i}")
    e("s_waitcnt lgkmcnt(0)")
    bregs = [SC + 4*i for i in range(8)] + [ACC + 4*i for i in range(6)] + [RING + 100 + 4*i for i in range(6)]
    for ks in range(15):
        e(f"ds_read_b128 v[{bregs[ks]}:{bregs[ks]+3}], v{VLR} offset:{64*ks}")
    D = T[8]
    outstanding = 15
    for ks in range(20):
        issued = min(20, 15 + ks)
        e(f"s_waitcnt lgkmcnt({issued - ks - 1})")
        c = "0" if ks == 0 else f"v[{D}:{D+3}]"
        e(f"v_mfma_f32_16x16x32_bf16 v[{D}:{D+3}], v[{F1+4*ks}:{F1+4*ks+3}], v[{bregs[ks]}:{bregs[ks]+3}], {c}")
        if 15 + ks < 20:
            k2 = 15 + ks
            e(f"ds_read_b128 v[{bregs[k2]}:{bregs[k2]+3}], v{VLR} offset:{64*k2}")
    for i in range(4):
        bf16r(D+i)
        e(f"v_mul_f32 v{T[i]}, {hex(f32(-1.4426950408889634))}, v{D+i}")
        e(f"v_exp_f32 v{T[i]}, v{T[i]}")
        e(f"v_add_f32 v{T[i]}, 1.0, v{T[i]}")
        e(f"v_rcp_f32 v{T[i]}, v{T[i]}")
        e(f"v_mul_f32 v{D+i}, v{D+i}, v{T[i]}")
    e(f"v_cvt_pk_bf16_f32 v{T[4]}, v{D}, v{D+1}")
    e(f"v_cvt_pk_bf16_f32 v{T[5]}, v{D+2}, v{D+3}")
    ZD = F1
    for tt in range(10):
        e(f"v_mfma_f32_16x16x16_bf16 v[{ZD+4*tt}:{ZD+4*tt+3}], v[{F2+2*tt}:{F2+2*tt+1}], v[{T[4]}:{T[5]}], 0")
    for tt in range(10):
        for i in range(4): e(f"v_min_u32 v{ZD+4*tt+i}, -2, v{ZD+4*tt+i}")
        if tt: e(f"s_mov_b32 s{sT0}, {tt*6144}")
        so = f"s{sT0}" if tt else "0"
        e(f"buffer_store_dwordx4 v[{ZD+4*tt}:{ZD+4*tt+3}], v{VZA}, {srd(SRD_WS)}, {so} offen sc1")
    stamp()
    if stamps:
        e(f"s_cmp_lg_u32 s{sW}, 0")
        e("s_cbranch_scc1 L_end")
        e(f"s_mov_b64 s[{sST+16}:{sST+17}], 0")
    A.label("L_fin"); A.fence()
    if stamps:
        e("s_waitcnt lgkmcnt(0)")
        e(f"s_lshl_b32 s{sT0}, s2, 7")
        e(f"s_add_u32 s{sT0}, s{sT0}, {WS_STAMP}")
        e(f"v_mov_b32 v{T[0]}, 0")
        e("s_mov_b64 exec, 1")
        for i in range(9):
            e(f"v_mov_b32 v{T[2]}, s{sST+2*i}")
            e(f"v_mov_b32 v{T[3]}, s{sST+2*i+1}")
            e(f"buffer_store_dwordx2 v[{T[2]}:{T[3]}], v{T[0]}, {srd(SRD_WS)}, s{sT0} offen offset:{8*i}")
            e("s_nop 1")
    A.label("L_end")
    A.raw("    s_endpgm")
    A.raw(f""".section .rodata,"a"
.p2align 6
.amdhsa_kernel {NAME}
  .amdhsa_next_free_vgpr 256
  .amdhsa_next_free_sgpr 102
  .amdhsa_accum_offset 256
  .amdhsa_group_segment_fixed_size 0
  .amdhsa_kernarg_size 88
  .amdhsa_user_sgpr_count 2
  .amdhsa_user_sgpr_kernarg_segment_ptr 1
  .amdhsa_system_sgpr_workgroup_id_x 1
  .amdhsa_float_denorm_mode_32 3
.end_amdhsa_kernel""")
    return A.text()

if __name__ == "__main__":
    out = sys.argv[1] if len(sys.argv) > 1 else "sequential_preLN__mha_block_cached__dense_activation_silu__decode.s"
    kw = eval("dict(%s)" % sys.argv[2]) if len(sys.argv) > 2 else {}
    open(out, "w").write(gen(**kw))
```

```python
import sys, struct
from asmlib import Asm

NAME = "sequential_preLN__mha_block_cached__dense_activation_silu__decode_kernel"
HEADER = open(__file__.replace("gen_fused.py", "header.txt")).read()

def f32(x): return struct.unpack('<I', struct.pack('<f', x))[0]

WS_PART = 0x000000
WS_Y    = 0x040000
WS_H    = 0x068000
WS_Z    = 0x070000
WS_STAMP= 0x100000
WS_SIZE = 0x200000
L_RED  = 0
L_QS   = 6656
L_MX   = 7040
L_OB   = 7168
L_LN   = 8192
L_W    = 18432
LDS_BYTES = L_W + 53248

KVBYTES = 2*32*8192*384

def gen(depth=8, wpos=20, stamps=False, spin_limit=1 << 22, ring_tiles=13, kvflags="nt", wqflags="nt", wflags="nt", qlook=None, perturb=0.0, dbgstamps=False):
    stamps = stamps or dbgstamps
    A = Asm(); e = A.e
    A.raw(HEADER.rstrip('\n'))
    A.raw(f"; @launch grid=(256,1,1) block=(512,1,1) lds={LDS_BYTES}")
    A.raw('.amdgcn_target "amdgcn-amd-amdhsa--gfx950"\n.text\n.globl %s\n.p2align 8\n.type %s,@function\n%s:' % (NAME, NAME, NAME))
    VT, VLANE, VKV, VQO = 0, 1, 2, 3
    T = list(range(4, 20))
    VG, VC, VX1, VX2 = 20, 21, 22, 23
    Q = 24; ACC = 36; SC = 60; RING = 92
    SP = list(range(RING + ring_tiles*12, 256))
    assert len(SP) >= 8
    VWG, VWL, VRED = SP[0], SP[1], SP[2]
    SRD_X, SRD_K, SRD_V, SRD_WQ, SRD_WT, SRD_OUT, SRD_DBG, SRD_WS = 28, 32, 36, 40, 44, 48, 52, 56
    sW, sH, sB, sSPL, sMEM, sKVB, sOFF = 60, 61, 62, 63, 64, 65, 66
    sMASK, sR, sRS, sT0, sT1, sT2, sT3, sSPIN, sF0 = 67, 68, 69, 70, 71, 72, 73, 74, 75
    sPLO, sPHI = 76, 77
    sST = 80
    def srd(s): return f"s[{s}:{s+3}]"
    nstamp = [0]
    def stamp():
        if not stamps: return
        i = nstamp[0]; nstamp[0] += 1
        assert i < 10
        e(f"s_memrealtime s[{sST+2*i}:{sST+2*i+1}]")
    e("s_cmp_ge_u32 s2, 256")
    e("s_cbranch_scc1 L_end")
    e("s_load_dwordx16 s[4:19], s[0:1], 0")
    e("s_load_dwordx4 s[20:23], s[0:1], 64")
    e("s_load_dwordx2 s[24:25], s[0:1], 80")
    stamp()
    e(f"v_lshrrev_b32 v{T[0]}, 6, v0")
    e(f"v_and_b32 v{VLANE}, 63, v0")
    e(f"v_readfirstlane_b32 s{sW}, v{T[0]}")
    e(f"v_lshrrev_b32 v{VG}, 3, v{VLANE}")
    e(f"v_and_b32 v{VC}, 7, v{VLANE}")
    e(f"s_and_b32 s{sT0}, s2, 7")
    e(f"s_lshr_b32 s{sT1}, s2, 3")
    e(f"s_lshr_b32 s{sT2}, s{sT1}, 3")
    e(f"s_lshl_b32 s{sH}, s{sT0}, 2")
    e(f"s_add_u32 s{sH}, s{sH}, s{sT2}")
    e(f"s_and_b32 s{sMEM}, s{sT1}, 7")
    e(f"s_lshr_b32 s{sB}, s{sMEM}, 2")
    e(f"s_and_b32 s{sSPL}, s{sMEM}, 3")
    e(f"s_lshl_b32 s{sT0}, s{sB}, 5")
    e(f"s_add_u32 s{sT0}, s{sT0}, s{sH}")
    e(f"s_lshl_b32 s{sT0}, s{sT0}, 2")
    e(f"s_add_u32 s{sT0}, s{sT0}, s{sSPL}")
    e(f"s_mul_i32 s{sKVB}, s{sT0}, 786432")
    e(f"s_mov_b32 s{sMASK}, 0xffff0000")
    e(f"s_mov_b32 s{sPLO}, 0x05040100")
    e(f"s_mov_b32 s{sPHI}, 0x07060302")
    e(f"s_mul_i32 s{sR}, s{sH}, 5")
    e(f"s_add_u32 s{sR}, s{sR}, s{sMEM}")
    e(f"s_mul_i32 s{sF0}, s{sH}, 3")
    e(f"s_add_u32 s{sF0}, s{sF0}, s{sMEM}")
    e(f"s_sub_u32 s{sF0}, s{sF0}, 5")
    e(f"s_lshl_b32 s{sF0}, s{sF0}, 4")
    e(f"v_mul_u32_u24 v{VKV}, 384, v{VG}")
    e(f"v_lshl_add_u32 v{VKV}, v{VC}, 4, v{VKV}")
    e(f"s_mul_i32 s{sT0}, s{sW}, 3072")
    e(f"v_add_u32 v{VKV}, s{sT0}, v{VKV}")
    e(f"s_lshl_b32 s{sT0}, s{sW}, 3")
    e(f"v_add_u32 v{T[0]}, s{sT0}, v{VG}")
    e(f"v_mul_u32_u24 v{VQO}, 122880, v{T[0]}")
    e(f"v_lshl_add_u32 v{VQO}, v{VC}, 4, v{VQO}")
    e(f"s_mul_i32 s{sT1}, s{sB}, 1280")
    e(f"v_mul_u32_u24 v{VX1}, 20, v{T[0]}")
    e(f"v_add_u32 v{VX1}, s{sT1}, v{VX1}")
    e(f"v_mul_u32_u24 v{VX2}, 20, v{VLANE}")
    e(f"v_add_u32 v{VX2}, s{sT1}, v{VX2}")
    e(f"s_lshl_b32 s{sT0}, s{sH}, 3")
    e(f"s_add_u32 s{sT0}, s{sT0}, s{sMEM}")
    e(f"s_lshl_b32 s{sT0}, s{sT0}, 10")
    e(f"s_mov_b32 s{sT2}, {WS_SIZE}")
    e(f"s_lshl_b32 s{sT1}, s{sR}, 10")
    e(f"s_add_u32 s{sT1}, s{sT1}, {WS_Y}")
    e(f"s_cmp_eq_u32 s{sW}, 1")
    e(f"s_cselect_b32 s{sT2}, s{sT1}, s{sT2}")
    e(f"s_mul_i32 s{sT1}, s{sR}, 3072")
    e(f"s_lshl_b32 s{sT3}, s{sW}, 10")
    e(f"s_add_u32 s{sT1}, s{sT1}, s{sT3}")
    e(f"s_add_u32 s{sT1}, s{sT1}, {WS_Z - 2048}")
    e(f"s_sub_u32 s{sT3}, s{sW}, 2")
    e(f"s_cmp_lt_u32 s{sT3}, 3")
    e(f"s_cselect_b32 s{sT2}, s{sT1}, s{sT2}")
    e(f"s_lshl_b32 s{sT1}, s{sR}, 5")
    e(f"s_add_u32 s{sT1}, s{sT1}, {WS_H}")
    e(f"s_cmp_eq_u32 s{sW}, 5")
    e(f"s_cselect_b32 s{sT2}, s{sT1}, s{sT2}")
    e(f"s_cmp_ge_u32 s{sMEM}, 5")
    e(f"s_cselect_b32 s{sT2}, {WS_SIZE}, s{sT2}")
    e(f"s_cmp_eq_u32 s{sW}, 0")
    e(f"s_cselect_b32 s{sT2}, s{sT0}, s{sT2}")
    e(f"v_lshlrev_b32 v{T[1]}, 4, v{VLANE}")
    e(f"v_add_u32 v{T[1]}, s{sT2}, v{T[1]}")
    e(f"s_cmp_eq_u32 s{sW}, 5")
    e(f"s_cselect_b32 s{sT3}, 2, 64")
    e(f"v_cmp_le_u32 vcc, s{sT3}, v{VLANE}")
    e(f"v_mov_b32 v{T[2]}, {WS_SIZE}")
    e(f"v_cndmask_b32 v{T[1]}, v{T[1]}, v{T[2]}, vcc")
    for i in range(4): e(f"v_mov_b32 v{T[4+i]}, -1")
    e("s_waitcnt lgkmcnt(0)")
    def mk(s, p, size):
        e(f"s_mov_b32 s{s}, s{p}"); e(f"s_mov_b32 s{s+1}, s{p+1}"); e(f"s_mov_b32 s{s+2}, {size}"); e(f"s_mov_b32 s{s+3}, 0x20000")
    mk(SRD_WS, 24, WS_SIZE)
    mk(SRD_X, 4, 2560)
    mk(SRD_WQ, 10, 640*6144*2)
    tk_clear = e(f"buffer_store_dwordx4 v[{T[4]}:{T[7]}], v{T[1]}, {srd(SRD_WS)}, 0 offen sc1")
    XS = T[8]; XO = SC + 16
    e(f"buffer_load_dwordx4 v[{XS}:{XS+3}], v{VX2}, {srd(SRD_X)}, 0 offen")
    e(f"buffer_load_dword v{XS+4}, v{VX2}, {srd(SRD_X)}, 0 offen offset:16")
    e(f"buffer_load_dwordx4 v[{XO}:{XO+3}], v{VX1}, {srd(SRD_X)}, 0 offen")
    tk_x = e(f"buffer_load_dword v{XO+4}, v{VX1}, {srd(SRD_X)}, 0 offen offset:16")
    mk(SRD_K, 6, KVBYTES); mk(SRD_V, 8, KVBYTES)
    items = [('Q', t) for t in range(10)] + [('K', t) for t in range(32)] + [('V', t) for t in range(32)]
    items.insert(10 + wpos, ('W', 0))
    free = list(range(ring_tiles))
    slot_of = {}; tick = {}
    nxt = [0]
    def issue(idx):
        kind, t = items[idx]
        if kind == 'W':
            sl = [free.pop(0) for _ in range(3)]
            slot_of[idx] = sl
            regs = [RING + s*12 + j*4 for s in sl for j in range(3)][:8]
            tk = []
            for kk in range(8):
                if kk == 0: so = "0"
                else:
                    e(f"s_mul_i32 s{sOFF}, s{sRS}, {kk}"); so = f"s{sOFF}"
                tk.append(e(f"buffer_load_dwordx4 v[{regs[kk]}:{regs[kk]+3}], v{VWG}, {srd(SRD_WT)}, {so} offen {wflags}"))
            tick[idx] = tk
            return
        s = free.pop(0); slot_of[idx] = [s]
        if kind == 'Q':
            e(f"s_mul_i32 s{sOFF}, s{sH}, 384")
            if t: e(f"s_add_u32 s{sOFF}, s{sOFF}, {t*12288}")
            sr, vo, fl = SRD_WQ, VQO, wqflags
        else:
            e(f"s_add_u32 s{sOFF}, s{sKVB}, {t*24576}")
            sr, vo, fl = (SRD_K if kind == 'K' else SRD_V), VKV, kvflags
        tk = []
        for j in range(3):
            r = RING + s*12 + j*4
            tk.append(e(f"buffer_load_dwordx4 v[{r}:{r+3}], v{vo}, {srd(sr)}, s{sOFF} offen offset:{j*128} {fl}"))
        tick[idx] = tk
    def refill(cur, limit):
        while nxt[0] < len(items) and nxt[0] <= cur + limit:
            need = 3 if items[nxt[0]][0] == 'W' else 1
            if len(free) < need: break
            issue(nxt[0]); nxt[0] += 1
    if qlook is None: qlook = ring_tiles
    def refill_q(cur):
        refill(9, qlook) if qlook < ring_tiles else refill(cur, ring_tiles)
    refill_q(-1)
    mk(SRD_OUT, 20, 2560); mk(SRD_DBG, 22, 256)
    n_, gq = T[0], T[1]
    e(f"v_and_b32 v{n_}, 15, v{VLANE}")
    e(f"v_lshrrev_b32 v{gq}, 4, v{VLANE}")
    e(f"s_lshl_b32 s{sT0}, s{sW}, 2")
    e(f"v_add_u32 v{T[2]}, s{sT0}, v{gq}")
    e(f"v_mul_u32_u24 v{T[3]}, 43, v{T[2]}")
    e(f"v_lshrrev_b32 v{T[3]}, 7, v{T[3]}")
    e(f"v_mul_u32_u24 v{T[4]}, 3, v{T[3]}")
    e(f"v_sub_u32 v{T[4]}, v{T[2]}, v{T[4]}")
    e(f"v_lshlrev_b32 v{T[4]}, 6, v{T[4]}")
    e(f"v_lshl_add_u32 v{T[4]}, v{T[3]}, 3, v{T[4]}")
    e(f"s_mul_i32 s{sT0}, s{sH}, 192")
    e(f"v_add_u32 v{T[4]}, s{sT0}, v{T[4]}")
    e(f"v_mul_u32_u24 v{T[4]}, 1280, v{T[4]}")
    e(f"v_lshl_add_u32 v{T[4]}, v{n_}, 4, v{T[4]}")
    e(f"s_lshl_b32 s{sT0}, s{sMEM}, 8")
    e(f"v_add_u32 v{T[4]}, s{sT0}, v{T[4]}")
    e(f"v_lshrrev_b32 v{T[5]}, 1, v{n_}")
    e(f"v_mul_u32_u24 v{T[5]}, 6144, v{T[5]}")
    e(f"v_lshl_add_u32 v{T[5]}, v{gq}, 8, v{T[5]}")
    e(f"v_and_b32 v{T[6]}, 1, v{n_}")
    e(f"v_lshl_add_u32 v{T[5]}, v{T[6]}, 7, v{T[5]}")
    e(f"s_lshl_b32 s{sT0}, s{sW}, 10")
    e(f"s_add_u32 s{sT0}, s{sT0}, {L_W}")
    e(f"v_add_u32 v{T[5]}, s{sT0}, v{T[5]}")
    e(f"s_lshl_b32 s{sT0}, s{sW}, 6")
    e(f"v_add_u32 v{T[6]}, s{sT0}, v{VLANE}")
    e(f"v_lshrrev_b32 v{T[7]}, 1, v{T[6]}")
    e(f"v_mul_u32_u24 v{T[7]}, 24576, v{T[7]}")
    e(f"v_and_b32 v{T[2]}, 1, v{T[6]}")
    e(f"v_lshl_add_u32 v{T[7]}, v{T[2]}, 4, v{T[7]}")
    e(f"s_lshl_b32 s{sT0}, s{sF0}, 1")
    e(f"v_add_u32 v{T[7]}, s{sT0}, v{T[7]}")
    e(f"v_lshlrev_b32 v{T[2]}, 7, v{T[6]}")
    e(f"v_add_u32 v{T[2]}, {L_W}, v{T[2]}")
    L_W2 = L_W + 24576
    e(f"v_subrev_u32 v{T[6]}, 192, v{T[6]}")
    e(f"v_cmp_le_u32 vcc, 80, v{T[6]}")
    e(f"v_cndmask_b32 v{T[3]}, 0, 1, vcc")
    e(f"v_mul_u32_u24 v{T[13]}, 80, v{T[3]}")
    e(f"v_sub_u32 v{T[13]}, v{T[6]}, v{T[13]}")
    e(f"v_mul_u32_u24 v{T[14]}, 10240, v{T[3]}")
    e(f"v_lshl_add_u32 v{T[14]}, v{T[13]}, 4, v{T[14]}")
    e(f"s_mul_i32 s{sT0}, s{sF0}, 1280")
    e(f"v_add_u32 v{T[14]}, s{sT0}, v{T[14]}")
    e(f"v_cmp_le_u32 vcc, 160, v{T[6]}")
    e(f"v_mov_b32 v{T[15]}, 0x7f000000")
    e(f"v_cndmask_b32 v{T[14]}, v{T[14]}, v{T[15]}, vcc")
    e(f"v_lshrrev_b32 v{T[15]}, 1, v{T[13]}")
    e(f"v_lshlrev_b32 v{T[15]}, 9, v{T[15]}")
    e(f"v_lshl_add_u32 v{T[15]}, v{T[3]}, 8, v{T[15]}")
    e(f"v_and_b32 v{T[13]}, 1, v{T[13]}")
    e(f"v_lshl_add_u32 v{T[15]}, v{T[13]}, 7, v{T[15]}")
    e(f"v_add_u32 v{T[15]}, {L_W2}, v{T[15]}")
    e(f"s_cmp_lt_u32 s{sW}, 3")
    e(f"s_cselect_b64 s[{sT2}:{sT3}], -1, 0")
    e(f"v_cndmask_b32 v{VWG}, v{T[14]}, v{T[7]}, s[{sT2}:{sT3}]")
    e(f"v_cndmask_b32 v{VWL}, v{T[15]}, v{T[2]}, s[{sT2}:{sT3}]")
    e(f"s_cselect_b32 s{SRD_WT}, s16, s18")
    e(f"s_cselect_b32 s{SRD_WT+1}, s17, s19")
    e(f"s_movk_i32 s{sRS}, 1280")
    e(f"s_cselect_b32 s{sRS}, 3072, s{sRS}")
    e(f"s_mov_b32 s{SRD_WT+2}, {640*1536*2}")
    e(f"s_cmp_lt_u32 s{sMEM}, 5")
    e(f"s_cselect_b64 s[{sT2}:{sT3}], -1, 0")
    e(f"v_cndmask_b32 v{VWG}, v{VWG}, v{T[4]}, s[{sT2}:{sT3}]")
    e(f"v_cndmask_b32 v{VWL}, v{VWL}, v{T[5]}, s[{sT2}:{sT3}]")
    e(f"s_cselect_b32 s{SRD_WT}, s12, s{SRD_WT}")
    e(f"s_cselect_b32 s{SRD_WT+1}, s13, s{SRD_WT+1}")
    e(f"s_cselect_b32 s{sRS}, 1280, s{sRS}")
    e(f"s_cselect_b32 s{SRD_WT+2}, {6144*640*2}, s{SRD_WT+2}")
    e(f"s_mov_b32 s{SRD_WT+3}, 0x20000")
    e(f"s_cmp_ge_u32 s{sW}, 6")
    e(f"s_cselect_b64 s[{sT2}:{sT3}], -1, 0")
    e(f"v_mov_b32 v{T[2]}, 0x7f000000")
    e(f"v_cndmask_b32 v{VWG}, v{VWG}, v{T[2]}, s[{sT2}:{sT3}]")
    e(f"v_mul_u32_u24 v{VRED}, 96, v{VC}")
    e(f"v_mul_u32_u24 v{T[2]}, 12, v{VG}")
    e(f"v_add_u32 v{VRED}, v{VRED}, v{T[2]}")
    e(f"s_mul_i32 s{sT0}, s{sW}, 832")
    e(f"v_add_u32 v{VRED}, s{sT0}, v{VRED}")

    def wave_reduce(v, op, tmp, full=True, n=64):
        for ctl in ("quad_perm:[1,0,3,2]", "quad_perm:[2,3,0,1]", "row_half_mirror", "row_mirror"):
            e(f"v_{op}_dpp v{v}, v{v}, v{v} {ctl} row_mask:0xf bank_mask:0xf")
        e(f"v_mov_b32 v{tmp}, v{v}")
        e(f"v_permlane16_swap_b32 v{v}, v{tmp}")
        e(f"v_{op} v{v}, v{v}, v{tmp}")
        if n == 64:
            e(f"v_mov_b32 v{tmp}, v{v}")
            e(f"v_permlane32_swap_b32 v{v}, v{tmp}")
            e(f"v_{op} v{v}, v{v}, v{tmp}")
    def group_reduce(v, op, tmp):
        e(f"v_{op}_dpp v{v}, v{v}, v{v} row_ror:8 row_mask:0xf bank_mask:0xf")
        e(f"v_mov_b32 v{tmp}, v{v}")
        e(f"v_permlane16_swap_b32 v{v}, v{tmp}")
        e(f"v_{op} v{v}, v{v}, v{tmp}")
        e(f"v_mov_b32 v{tmp}, v{v}")
        e(f"v_permlane32_swap_b32 v{v}, v{tmp}")
        e(f"v_{op} v{v}, v{v}, v{tmp}")
    def bf16r(v):
        e(f"v_cvt_pk_bf16_f32 v{v}, v{v}, v{v}")
        e(f"v_lshlrev_b32 v{v}, 16, v{v}")
    def acc_reduce_to_lds():
        a = ACC
        for k in range(12): e(f"v_permlane32_swap_b32 v{a+k}, v{a+k+12}")
        for k in range(12): e(f"v_add_f32 v{a+k}, v{a+k}, v{a+k+12}")
        for k in range(6): e(f"v_permlane16_swap_b32 v{a+k}, v{a+k+6}")
        for k in range(6): e(f"v_add_f32 v{a+k}, v{a+k}, v{a+k+6}")
        for k in range(3): e(f"v_add_f32_dpp v{a+12+k}, v{a+k}, v{a+k} row_ror:8 row_mask:0xf bank_mask:0x3")
        for k in range(3): e(f"v_add_f32_dpp v{a+12+k}, v{a+3+k}, v{a+3+k} row_ror:8 row_mask:0xf bank_mask:0xc")
        e(f"ds_write2_b32 v{VRED}, v{a+12}, v{a+13} offset0:0 offset1:1")
        e(f"ds_write_b32 v{VRED}, v{a+14} offset:8")
    def axpy_tile(idx, preg, first):
        s = slot_of[idx][0]
        for j in range(3):
            A.wait_vm(tick[idx][j])
            r = RING + s*12 + j*4
            for i in range(4):
                lo, hi = T[(2*i) % 8], T[(2*i+1) % 8]
                e(f"v_lshlrev_b32 v{lo}, 16, v{r+i}")
                e(f"v_and_b32 v{hi}, s{sMASK}, v{r+i}")
                k = ACC + 8*j + 2*i
                if first:
                    e(f"v_mul_f32 v{k}, v{preg}, v{lo}"); e(f"v_mul_f32 v{k+1}, v{preg}, v{hi}")
                else:
                    e(f"v_fmac_f32 v{k}, v{preg}, v{lo}"); e(f"v_fmac_f32 v{k+1}, v{preg}, v{hi}")
    def spin_begin(lbl):
        e(f"s_mov_b32 s{sSPIN}, 0")
        A.label(lbl); A.fence()
    def spin_end(lbl, done_lbl, sleep=1):
        e(f"s_cbranch_vccz {done_lbl}")
        e(f"s_add_u32 s{sSPIN}, s{sSPIN}, 1")
        e(f"s_cmp_ge_u32 s{sSPIN}, {spin_limit}")
        e(f"s_cbranch_scc1 {done_lbl}")
        if sleep: e(f"s_sleep {sleep}")
        e(f"s_branch {lbl}")
        A.label(done_lbl); A.fence()

    A.wait_vm(tk_x)
    xs = [T[i] for i in range(0, 8)] + [SC+24, SC+25]
    xs = [SC + i for i in range(0, 10)]
    for i in range(5):
        e(f"v_lshlrev_b32 v{xs[2*i]}, 16, v{XS+i}")
        e(f"v_and_b32 v{xs[2*i+1]}, s{sMASK}, v{XS+i}")
    s_, t_ = T[0], T[1]
    e(f"v_add_f32 v{s_}, v{xs[0]}, v{xs[1]}")
    for i in range(2, 10): e(f"v_add_f32 v{s_}, v{s_}, v{xs[i]}")
    wave_reduce(s_, "add_f32", t_)
    e(f"v_mul_f32 v{s_}, {hex(f32(1.0/640))}, v{s_}")
    q_ = T[2]
    for i in range(10):
        e(f"v_sub_f32 v{xs[i]}, v{xs[i]}, v{s_}")
        if i == 0: e(f"v_mul_f32 v{q_}, v{xs[i]}, v{xs[i]}")
        else: e(f"v_fmac_f32 v{q_}, v{xs[i]}, v{xs[i]}")
    wave_reduce(q_, "add_f32", t_)
    e(f"v_mul_f32 v{q_}, {hex(f32(1.0/640))}, v{q_}")
    bf16r(s_); bf16r(q_)
    e(f"v_add_f32 v{q_}, {hex(f32(1e-5))}, v{q_}")
    bf16r(q_)
    e(f"v_sqrt_f32 v{q_}, v{q_}")
    bf16r(q_)
    e(f"v_rcp_f32 v{q_}, v{q_}")
    for i in range(5):
        e(f"v_lshlrev_b32 v{SC+2*i}, 16, v{XO+i}")
        e(f"v_and_b32 v{SC+2*i+1}, s{sMASK}, v{XO+i}")
    for i in range(10):
        e(f"v_sub_f32 v{SC+i}, v{SC+i}, v{s_}")
        bf16r(SC+i)
        e(f"v_mul_f32 v{SC+i}, v{SC+i}, v{q_}")
        bf16r(SC+i)
    stamp()
    LOG2E = hex(f32(1.4426950408889634))
    SCALE = hex(f32(192 ** -0.5))
    for idx, (kind, t) in enumerate(items):
        if kind == 'Q':
            axpy_tile(idx, SC + t, t == 0)
            free.extend(slot_of[idx]); refill_q(idx)
            if t == 9:
                refill(idx, ring_tiles)
                acc_reduce_to_lds()
                e("s_waitcnt lgkmcnt(0)")
                e("s_barrier")
                e(f"s_cmp_lg_u32 s{sW}, 0")
                e("s_cbranch_scc1 L_q_skip")
                e(f"v_lshlrev_b32 v{T[0]}, 4, v{VLANE}")
                for w in range(8):
                    d = (ACC + 4*w) if w < 6 else (T[8] + 4*(w-6))
                    e(f"ds_read_b128 v[{d}:{d+3}], v{T[0]} offset:{L_RED + w*832}")
                e(f"v_mov_b32 v{T[1]}, 1")
                e(f"v_mov_b32 v{T[2]}, 0")
                e("s_mov_b64 exec, 1")
                A.vm_issued -= 0
                A.lines.append(f"    buffer_atomic_add v{T[1]}, v{T[2]}, {srd(SRD_DBG)}, 0 offen sc1")
                e("s_mov_b64 exec, -1")
                e("s_waitcnt lgkmcnt(0)")
                for w in range(1, 8):
                    d = (ACC + 4*w) if w < 6 else (T[8] + 4*(w-6))
                    for i in range(4): e(f"v_add_f32 v{ACC+i}, v{ACC+i}, v{d+i}")
                e(f"v_cvt_pk_bf16_f32 v{T[2]}, v{ACC}, v{ACC+1}")
                e(f"v_cvt_pk_bf16_f32 v{T[3]}, v{ACC+2}, v{ACC+3}")
                e(f"v_lshlrev_b32 v{T[0]}, 3, v{VLANE}")
                e(f"v_cmp_gt_u32 vcc, 48, v{VLANE}")
                e(f"s_and_saveexec_b64 s[{sT2}:{sT3}], vcc")
                e(f"ds_write_b64 v{T[0]}, v[{T[2]}:{T[3]}] offset:{L_QS}")
                e(f"s_mov_b64 exec, -1")
                e("s_waitcnt lgkmcnt(0)")
                A.label("L_q_skip"); A.fence()
                e("s_barrier")
                e(f"v_mul_u32_u24 v{T[0]}, 48, v{VC}")
                for j in range(3):
                    e(f"ds_read_b128 v[{Q+4*j}:{Q+4*j+3}], v{T[0]} offset:{L_QS + 16*j}")
                e("s_waitcnt lgkmcnt(0)")
                stamp()
        elif kind == 'K':
            s = slot_of[idx][0]
            for j in range(3):
                A.wait_vm(tick[idx][j])
                r = RING + s*12 + j*4
                for i in range(4):
                    c = "0" if i == 0 else f"v{T[j]}"
                    e(f"v_dot2_f32_bf16 v{T[j]}, v{r+i}, v{Q+4*j+i}, {c}")
            free.extend(slot_of[idx]); refill(idx, depth)
            sc = SC + t
            e(f"v_add_f32 v{sc}, v{T[0]}, v{T[1]}")
            e(f"v_add_f32 v{sc}, v{sc}, v{T[2]}")
            for ctl in ("quad_perm:[1,0,3,2]", "quad_perm:[2,3,0,1]", "row_half_mirror"):
                e(f"v_add_f32_dpp v{sc}, v{sc}, v{sc} {ctl} row_mask:0xf bank_mask:0xf")
            bf16r(sc)
            e(f"v_mul_f32 v{sc}, {SCALE}, v{sc}")
            bf16r(sc)
            if t == 31:
                stamp()
                m = T[0]
                e(f"v_max3_f32 v{m}, v{SC}, v{SC+1}, v{SC+2}")
                for i in range(3, 31, 2): e(f"v_max3_f32 v{m}, v{m}, v{SC+i}, v{SC+i+1}")
                e(f"v_max_f32 v{m}, v{m}, v{SC+31}")
                group_reduce(m, "max_f32", T[1])
                e(f"s_lshl_b32 s{sT0}, s{sW}, 2")
                e(f"v_mov_b32 v{T[1]}, s{sT0}")
                e(f"ds_write_b32 v{T[1]}, v{m} offset:{L_MX}")
                e("s_waitcnt lgkmcnt(0)")
                e("s_barrier")
                e(f"v_mov_b32 v{T[1]}, 0")
                e(f"ds_read_b128 v[{T[4]}:{T[7]}], v{T[1]} offset:{L_MX}")
                e(f"ds_read_b128 v[{T[8]}:{T[11]}], v{T[1]} offset:{L_MX+16}")
                e("s_waitcnt lgkmcnt(0)")
                e(f"v_max3_f32 v{m}, v{T[4]}, v{T[5]}, v{T[6]}")
                e(f"v_max3_f32 v{m}, v{m}, v{T[7]}, v{T[8]}")
                e(f"v_max3_f32 v{m}, v{m}, v{T[9]}, v{T[10]}")
                e(f"v_max_f32 v{m}, v{m}, v{T[11]}")
                for i in range(32):
                    e(f"v_sub_f32 v{SC+i}, v{SC+i}, v{m}")
                    e(f"v_mul_f32 v{SC+i}, {LOG2E}, v{SC+i}")
                    e(f"v_exp_f32 v{SC+i}, v{SC+i}")
                l = T[5]
                e(f"v_add_f32 v{l}, v{SC}, v{SC+1}")
                for i in range(2, 32): e(f"v_add_f32 v{l}, v{l}, v{SC+i}")
                group_reduce(l, "add_f32", T[1])
                e(f"s_cmp_eq_u32 s{sW}, 0")
                e(f"s_cselect_b64 s[{sT2}:{sT3}], -1, 0")
                e(f"v_cndmask_b32 v{T[4]}, 0, v{m}, s[{sT2}:{sT3}]")
                e(f"v_mov_b32 v{T[6]}, 0"); e(f"v_mov_b32 v{T[7]}, 0")
                e(f"s_mul_i32 s{sT0}, s{sW}, 832")
                e(f"v_mov_b32 v{T[1]}, s{sT0}")
                e(f"ds_write_b128 v{T[1]}, v[{T[4]}:{T[7]}] offset:{L_RED+768}")
        elif kind == 'V':
            if t == 8:
                e(f"v_mov_b32 v{SP[3]}, 0")
                tk_cnt = e(f"buffer_load_dword v{SP[4]}, v{SP[3]}, {srd(SRD_DBG)}, 0 offen sc1")
            axpy_tile(idx, SC + t, t == 0)
            free.extend(slot_of[idx]); refill(idx, depth)
        elif kind == 'W':
            sl = slot_of[idx]
            regs = [RING + s*12 + j*4 for s in sl for j in range(3)][:8]
            A.wait_vm(tick[idx][7])
            e(f"s_cmp_ge_u32 s{sW}, 6")
            e("s_cbranch_scc1 L_w_skip")
            for i in range(4):
                tb = T[0] if i % 2 == 0 else T[8]
                for kp in range(4):
                    e(f"v_perm_b32 v{tb+kp}, v{regs[2*kp+1]+i}, v{regs[2*kp]+i}, s{sPLO}")
                    e(f"v_perm_b32 v{tb+4+kp}, v{regs[2*kp+1]+i}, v{regs[2*kp]+i}, s{sPHI}")
                e(f"ds_write_b128 v{VWL}, v[{tb}:{tb+3}] offset:{32*i}")
                e(f"ds_write_b128 v{VWL}, v[{tb+4}:{tb+7}] offset:{32*i+16}")
            e("s_waitcnt lgkmcnt(0)")
            A.label("L_w_skip"); A.fence()
            free.extend(sl); refill(idx, depth)
    stamp()
    acc_reduce_to_lds()
    A.wait_vm(tk_cnt)
    e(f"v_cmp_gt_u32 vcc, 256, v{SP[4]}")
    e("s_cbranch_vccz L_cnt_ok")
    spin_begin("L_cnt_spin")
    e(f"buffer_load_dword v{SP[4]}, v{SP[3]}, {srd(SRD_DBG)}, 0 offen sc1")
    e("s_waitcnt vmcnt(0)")
    e(f"v_cmp_gt_u32 vcc, 256, v{SP[4]}")
    spin_end("L_cnt_spin", "L_cnt_ok")
    e("s_waitcnt lgkmcnt(0)")
    e("s_barrier")
    e(f"s_cmp_lg_u32 s{sW}, 0")
    e("s_cbranch_scc1 L_pub_skip")
    e(f"v_lshlrev_b32 v{T[0]}, 4, v{VLANE}")
    for w in range(8):
        d = (ACC + 4*w) if w < 6 else (T[8] + 4*(w-6))
        e(f"ds_read_b128 v[{d}:{d+3}], v{T[0]} offset:{L_RED + w*832}")
    e(f"s_lshl_b32 s{sT0}, s{sH}, 3")
    e(f"s_add_u32 s{sT0}, s{sT0}, s{sMEM}")
    e(f"s_lshl_b32 s{sT0}, s{sT0}, 10")
    e(f"v_cmp_gt_u32 vcc, 49, v{VLANE}")
    e(f"v_mov_b32 v{T[1]}, {WS_SIZE}")
    e(f"v_cndmask_b32 v{T[0+2]}, v{T[1]}, v{T[0]}, vcc")
    e("s_waitcnt lgkmcnt(0)")
    for w in range(1, 8):
        d = (ACC + 4*w) if w < 6 else (T[8] + 4*(w-6))
        for i in range(4): e(f"v_add_f32 v{ACC+i}, v{ACC+i}, v{d+i}")
    for i in range(4): e(f"v_min_u32 v{ACC+i}, -2, v{ACC+i}")
    e(f"buffer_store_dwordx4 v[{ACC}:{ACC+3}], v{T[2]}, {srd(SRD_WS)}, s{sT0} offen sc1")
    A.label("L_pub_skip"); A.fence()
    stamp()
    e(f"s_cmp_ge_u32 s{sMEM}, 5")
    e("s_cbranch_scc1 L_mlp")
    FR = RING
    e(f"v_lshlrev_b32 v{T[0]}, 4, v{VLANE}")
    e(f"s_mul_i32 s{sT0}, s{sW}, 6144")
    e(f"v_add_u32 v{T[0]}, s{sT0}, v{T[0]}")
    for ks in range(6):
        e(f"ds_read_b128 v[{FR+4*ks}:{FR+4*ks+3}], v{T[0]} offset:{L_W + ks*1024}")
    j_, g4 = T[1], T[2]
    e(f"v_and_b32 v{j_}, 15, v{VLANE}")
    e(f"v_lshrrev_b32 v{g4}, 4, v{VLANE}")
    VBA, VYA = SP[5], SP[6]
    e(f"v_and_b32 v{T[3]}, 1, v{j_}")
    e(f"v_mul_u32_u24 v{VBA}, 384, v{T[3]}")
    e(f"v_lshl_add_u32 v{VBA}, v{g4}, 4, v{VBA}")
    e(f"v_mul_u32_u24 v{VYA}, 80, v{j_}")
    e(f"v_lshrrev_b32 v{T[3]}, 1, v{g4}")
    e(f"v_add_u32 v{VYA}, v{VYA}, v{T[3]}")
    e(f"s_lshl_b32 s{sT0}, s{sMEM}, 4")
    e(f"s_lshl_b32 s{sT1}, s{sW}, 1")
    e(f"s_add_u32 s{sT0}, s{sT0}, s{sT1}")
    e(f"v_add_u32 v{VYA}, s{sT0}, v{VYA}")
    e(f"v_lshlrev_b32 v{VYA}, 10, v{VYA}")
    e(f"v_and_b32 v{T[3]}, 1, v{g4}")
    e(f"v_lshl_add_u32 v{VYA}, v{T[3]}, 4, v{VYA}")
    e(f"s_lshl_b32 s{sT0}, s{sH}, 5")
    e(f"s_add_u32 s{sT0}, s{sT0}, {WS_Y}")
    e(f"v_add_u32 v{VYA}, s{sT0}, v{VYA}")
    e(f"v_cmp_lt_u32 vcc, 1, v{j_}")
    e(f"v_mov_b32 v{T[3]}, {WS_SIZE}")
    e(f"v_cndmask_b32 v{VYA}, v{VYA}, v{T[3]}, vcc")
    e(f"s_cmp_ge_u32 s{sW}, 4")
    e("s_cbranch_scc1 L_wo_bar")
    PO = ACC
    PM = ACC + 8
    e(f"s_lshr_b32 s{sT0}, s{sW}, 1")
    e(f"s_lshl_b32 s{sT0}, s{sT0}, 2")
    e(f"s_lshl_b32 s{sT1}, s{sH}, 3")
    e(f"s_add_u32 s{sT0}, s{sT0}, s{sT1}")
    e(f"s_lshl_b32 s{sT0}, s{sT0}, 10")
    e(f"s_and_b32 s{sT1}, s{sW}, 1")
    e(f"s_mul_i32 s{sT1}, s{sT1}, 384")
    e(f"v_lshlrev_b32 v{T[4]}, 3, v{VLANE}")
    e(f"v_add_u32 v{T[4]}, s{sT1}, v{T[4]}")
    e(f"v_cmp_gt_u32 vcc, 48, v{VLANE}")
    e(f"v_cndmask_b32 v{T[4]}, v{T[3]}, v{T[4]}, vcc")
    e(f"v_mov_b32 v{T[5]}, 768")
    spin_begin("L_a_spin")
    for s in range(4):
        e(f"buffer_load_dwordx2 v[{PO+2*s}:{PO+2*s+1}], v{T[4]}, {srd(SRD_WS)}, s{sT0} offen offset:{1024*s} sc1")
        e(f"buffer_load_dwordx2 v[{PM+2*s}:{PM+2*s+1}], v{T[5]}, {srd(SRD_WS)}, s{sT0} offen offset:{1024*s} sc1")
    e("s_waitcnt vmcnt(0)")
    e(f"v_max3_u32 v{T[6]}, v{PO}, v{PO+1}, v{PO+2}")
    for i in range(3, 15, 2): e(f"v_max3_u32 v{T[6]}, v{T[6]}, v{PO+i}, v{PO+i+1}")
    e(f"v_max_u32 v{T[6]}, v{T[6]}, v{PO+15}")
    e(f"v_cmp_eq_u32 vcc, -1, v{T[6]}")
    spin_end("L_a_spin", "L_a_done")
    M = T[6]
    e(f"v_max3_f32 v{M}, v{PM}, v{PM+2}, v{PM+4}")
    e(f"v_max_f32 v{M}, v{M}, v{PM+6}")
    for s in range(4):
        e(f"v_sub_f32 v{PM+2*s}, v{PM+2*s}, v{M}")
        e(f"v_mul_f32 v{PM+2*s}, {LOG2E}, v{PM+2*s}")
        e(f"v_exp_f32 v{PM+2*s}, v{PM+2*s}")
    Ls = T[7]
    e(f"v_mul_f32 v{Ls}, v{PM}, v{PM+1}")
    for s in range(1, 4): e(f"v_fmac_f32 v{Ls}, v{PM+2*s}, v{PM+2*s+1}")
    e(f"v_rcp_f32 v{Ls}, v{Ls}")
    e(f"v_mul_f32 v{T[8]}, v{PM}, v{PO}")
    e(f"v_mul_f32 v{T[9]}, v{PM}, v{PO+1}")
    for s in range(1, 4):
        e(f"v_fmac_f32 v{T[8]}, v{PM+2*s}, v{PO+2*s}")
        e(f"v_fmac_f32 v{T[9]}, v{PM+2*s}, v{PO+2*s+1}")
    e(f"v_mul_f32 v{T[8]}, v{T[8]}, v{Ls}")
    e(f"v_mul_f32 v{T[9]}, v{T[9]}, v{Ls}")
    e(f"v_cvt_pk_bf16_f32 v{T[8]}, v{T[8]}, v{T[9]}")
    e(f"s_mul_i32 s{sT0}, s{sW}, 192")
    e(f"v_lshlrev_b32 v{T[9]}, 2, v{VLANE}")
    e(f"v_add_u32 v{T[9]}, s{sT0}, v{T[9]}")
    e(f"v_cmp_gt_u32 vcc, 48, v{VLANE}")
    e(f"s_and_saveexec_b64 s[{sT2}:{sT3}], vcc")
    e(f"ds_write_b32 v{T[9]}, v{T[8]} offset:{L_OB}")
    e("s_mov_b64 exec, -1")
    A.label("L_wo_bar"); A.fence()
    e("s_waitcnt lgkmcnt(0)")
    e("s_barrier")
    BF = RING + 24
    for ks in range(6):
        e(f"ds_read_b128 v[{BF+4*ks}:{BF+4*ks+3}], v{VBA} offset:{L_OB + 64*ks}")
    D = T[8]
    for ks in range(6):
        e(f"s_waitcnt lgkmcnt({5-ks})")
        c = "0" if ks == 0 else f"v[{D}:{D+3}]"
        e(f"v_mfma_f32_16x16x32_bf16 v[{D}:{D+3}], v[{FR+4*ks}:{FR+4*ks+3}], v[{BF+4*ks}:{BF+4*ks+3}], {c}")
    for i in range(4): e(f"v_min_u32 v{D+i}, -2, v{D+i}")
    e(f"buffer_store_dwordx4 v[{D}:{D+3}], v{VYA}, {srd(SRD_WS)}, 0 offen sc1")
    e(f"s_cmp_lg_u32 s{sW}, 0")
    e("s_cbranch_scc1 L_end")
    stamp()
    col = T[0]
    e(f"v_and_b32 v{col}, 1, v{VLANE}")
    e(f"v_lshlrev_b32 v{col}, 2, v{col}")
    e(f"v_lshrrev_b32 v{T[1]}, 5, v{VLANE}")
    e(f"v_lshl_add_u32 v{col}, v{T[1]}, 1, v{col}")
    e(f"v_bfe_u32 v{T[1]}, v{VLANE}, 4, 1")
    e(f"v_add_u32 v{col}, v{col}, v{T[1]}")
    e(f"s_lshl_b32 s{sT0}, s{sR}, 3")
    e(f"v_add_u32 v{col}, s{sT0}, v{col}")
    e(f"v_lshlrev_b32 v{T[1]}, 1, v{col}")
    e(f"buffer_load_ushort v{T[2]}, v{T[1]}, {srd(SRD_X)}, 0 offen")
    e(f"v_and_b32 v{T[3]}, 14, v{VLANE}")
    e(f"v_cmp_ne_u32 vcc, 0, v{T[3]}")
    e(f"v_mov_b32 v{T[3]}, {WS_SIZE}")
    e(f"v_lshlrev_b32 v{T[4]}, 2, v{col}")
    e(f"v_add_u32 v{T[4]}, {WS_H}, v{T[4]}")
    e(f"v_cndmask_b32 v{T[4]}, v{T[4]}, v{T[3]}, vcc")
    e(f"v_cndmask_b32 v{T[1]}, v{T[1]}, v{T[3]}, vcc")
    e(f"v_lshlrev_b32 v{T[5]}, 4, v{VLANE}")
    e(f"s_lshl_b32 s{sT0}, s{sR}, 10")
    e(f"s_add_u32 s{sT0}, s{sT0}, {WS_Y}")
    Yr = ACC
    def red8(y):
        e(f"v_permlane32_swap_b32 v{y}, v{y+2}")
        e(f"v_permlane32_swap_b32 v{y+1}, v{y+3}")
        e(f"v_add_f32 v{y}, v{y}, v{y+2}")
        e(f"v_add_f32 v{y+1}, v{y+1}, v{y+3}")
        e(f"v_permlane16_swap_b32 v{y}, v{y+1}")
        e(f"v_add_f32 v{y}, v{y}, v{y+1}")
        for k in (8, 4, 2):
            e(f"v_add_f32_dpp v{y}, v{y}, v{y} row_ror:{k} row_mask:0xf bank_mask:0xf")
    spin_begin("L_b_spin")
    e(f"buffer_load_dwordx4 v[{Yr}:{Yr+3}], v{T[5]}, {srd(SRD_WS)}, s{sT0} offen sc1")
    e("s_waitcnt vmcnt(0)")
    e(f"v_max3_u32 v{T[6]}, v{Yr}, v{Yr+1}, v{Yr+2}")
    e(f"v_max_u32 v{T[6]}, v{T[6]}, v{Yr+3}")
    e(f"v_cmp_eq_u32 vcc, -1, v{T[6]}")
    spin_end("L_b_spin", "L_b_done")
    red8(Yr)
    bf16r(Yr)
    e(f"v_lshlrev_b32 v{T[2]}, 16, v{T[2]}")
    e(f"v_add_f32 v{T[2]}, v{T[2]}, v{Yr}")
    bf16r(T[2])
    e(f"buffer_store_dword v{T[2]}, v{T[4]}, {srd(SRD_WS)}, 0 offen sc1")
    stamp()
    e(f"s_mul_i32 s{sT0}, s{sR}, 3072")
    e(f"s_add_u32 s{sT0}, s{sT0}, {WS_Z}")
    spin_begin("L_c_spin")
    for i in range(3):
        e(f"buffer_load_dwordx4 v[{Yr+4*i}:{Yr+4*i+3}], v{T[5]}, {srd(SRD_WS)}, s{sT0} offen offset:{1024*i} sc1")
    e("s_waitcnt vmcnt(0)")
    e(f"v_max3_u32 v{T[6]}, v{Yr}, v{Yr+1}, v{Yr+2}")
    for i in range(3, 11, 2): e(f"v_max3_u32 v{T[6]}, v{T[6]}, v{Yr+i}, v{Yr+i+1}")
    e(f"v_max_u32 v{T[6]}, v{T[6]}, v{Yr+11}")
    e(f"v_cmp_eq_u32 vcc, -1, v{T[6]}")
    spin_end("L_c_spin", "L_c_done")
    for i in range(4):
        e(f"v_add_f32 v{Yr+i}, v{Yr+i}, v{Yr+4+i}")
        e(f"v_add_f32 v{Yr+i}, v{Yr+i}, v{Yr+8+i}")
    red8(Yr)
    bf16r(Yr)
    e(f"v_add_f32 v{Yr}, v{Yr}, v{T[2]}")
    if perturb:
        e(f"v_cmp_eq_u32 vcc, 0, v{col}")
        e(f"v_mov_b32 v{T[6]}, {hex(f32(perturb))}")
        e(f"v_cndmask_b32 v{T[6]}, 0, v{T[6]}, vcc")
        e(f"v_add_f32 v{Yr}, v{Yr}, v{T[6]}")
    e(f"v_cvt_pk_bf16_f32 v{Yr}, v{Yr}, v{Yr}")
    e(f"buffer_store_short v{Yr}, v{T[1]}, {srd(SRD_OUT)}, 0 offen")
    stamp()
    e("s_branch L_fin")
    A.label("L_mlp"); A.fence()
    nstamp_save = nstamp[0]; nstamp[0] = 6 if stamps else 0
    e(f"s_cmp_ge_u32 s{sW}, 4")
    e("s_cbranch_scc1 L_end")
    F1 = RING
    F2 = RING + 80
    HB = ACC
    BFm = SC
    e(f"v_lshlrev_b32 v{T[0]}, 4, v{VLANE}")
    for ks in range(20):
        e(f"ds_read_b128 v[{F1+4*ks}:{F1+4*ks+3}], v{T[0]} offset:{L_W + ks*1024}")
        if ks % 8 == 7: e("s_waitcnt lgkmcnt(4)")
    i_, g4 = T[1], T[2]
    e(f"v_and_b32 v{i_}, 15, v{VLANE}")
    e(f"v_lshrrev_b32 v{g4}, 4, v{VLANE}")
    e(f"v_lshrrev_b32 v{T[3]}, 1, v{g4}")
    e(f"v_lshlrev_b32 v{T[3]}, 8, v{T[3]}")
    e(f"v_lshl_add_u32 v{T[3]}, v{i_}, 4, v{T[3]}")
    e(f"v_and_b32 v{T[4]}, 1, v{g4}")
    e(f"v_lshl_add_u32 v{T[3]}, v{T[4]}, 3, v{T[3]}")
    e(f"s_mul_i32 s{sT0}, s{sW}, 5120")
    e(f"v_add_u32 v{T[3]}, s{sT0}, v{T[3]}")
    e("s_waitcnt lgkmcnt(4)")
    for tt in range(10):
        e(f"ds_read_b64 v[{F2+2*tt}:{F2+2*tt+1}], v{T[3]} offset:{L_W2 + tt*512}")
    VLW, VLR, VZA = SP[5], SP[6], SP[7]
    e(f"s_mul_i32 s{sT0}, s{sW}, 2560")
    e(f"s_add_u32 s{sT0}, s{sT0}, {L_LN}")
    e(f"v_mul_u32_u24 v{VLW}, 40, v{VLANE}")
    e(f"v_add_u32 v{VLW}, s{sT0}, v{VLW}")
    e(f"v_and_b32 v{T[4]}, 1, v{i_}")
    e(f"v_mul_u32_u24 v{VLR}, 1280, v{T[4]}")
    e(f"v_lshl_add_u32 v{VLR}, v{g4}, 4, v{VLR}")
    e(f"v_add_u32 v{VLR}, s{sT0}, v{VLR}")
    e(f"v_mul_u32_u24 v{VZA}, 80, v{i_}")
    e(f"v_lshrrev_b32 v{T[4]}, 1, v{g4}")
    e(f"v_add_u32 v{VZA}, v{VZA}, v{T[4]}")
    e(f"s_mul_i32 s{sT0}, s{sW}, 20")
    e(f"v_add_u32 v{VZA}, s{sT0}, v{VZA}")
    e(f"v_mul_u32_u24 v{VZA}, 3072, v{VZA}")
    e(f"v_and_b32 v{T[4]}, 1, v{g4}")
    e(f"v_lshl_add_u32 v{VZA}, v{T[4]}, 4, v{VZA}")
    e(f"s_lshl_b32 s{sT0}, s{sF0}, 1")
    e(f"s_add_u32 s{sT0}, s{sT0}, {WS_Z}")
    e(f"v_add_u32 v{VZA}, s{sT0}, v{VZA}")
    e(f"v_cmp_lt_u32 vcc, 1, v{i_}")
    e(f"v_mov_b32 v{T[4]}, {WS_SIZE}")
    e(f"v_cndmask_b32 v{VZA}, v{VZA}, v{T[4]}, vcc")
    e(f"v_mul_u32_u24 v{T[5]}, 80, v{VLANE}")
    e(f"s_mov_b32 s{sT0}, {WS_H}")
    spin_begin("L_h_spin")
    for i in range(5):
        e(f"buffer_load_dwordx4 v[{HB+4*i}:{HB+4*i+3}], v{T[5]}, {srd(SRD_WS)}, s{sT0} offen offset:{16*i} sc1")
    e("s_waitcnt vmcnt(0)")
    e(f"v_max3_u32 v{T[6]}, v{HB}, v{HB+1}, v{HB+2}")
    for i in range(3, 19, 2): e(f"v_max3_u32 v{T[6]}, v{T[6]}, v{HB+i}, v{HB+i+1}")
    e(f"v_max_u32 v{T[6]}, v{T[6]}, v{HB+19}")
    e(f"v_cmp_eq_u32 vcc, -1, v{T[6]}")
    spin_end("L_h_spin", "L_h_done")
    stamp()
    s_, t_, q_ = T[0], T[1], T[2]
    e(f"v_pk_add_f32 v[{T[4]}:{T[5]}], v[{HB}:{HB+1}], v[{HB+2}:{HB+3}]")
    for i in range(4, 20, 2): e(f"v_pk_add_f32 v[{T[4]}:{T[5]}], v[{T[4]}:{T[5]}], v[{HB+i}:{HB+i+1}]")
    e(f"v_add_f32 v{s_}, v{T[4]}, v{T[5]}")
    wave_reduce(s_, "add_f32", t_, n=32)
    e(f"v_mul_f32 v{s_}, {hex(f32(-1.0/640))}, v{s_}")
    for i in range(0, 20, 2):
        e(f"v_pk_add_f32 v[{T[6]}:{T[7]}], v[{HB+i}:{HB+i+1}], v[{s_}:{s_+1}] op_sel_hi:[1,0]")
        if i == 0: e(f"v_pk_mul_f32 v[{T[4]}:{T[5]}], v[{T[6]}:{T[7]}], v[{T[6]}:{T[7]}]")
        else: e(f"v_pk_fma_f32 v[{T[4]}:{T[5]}], v[{T[6]}:{T[7]}], v[{T[6]}:{T[7]}], v[{T[4]}:{T[5]}]")
    e(f"v_add_f32 v{q_}, v{T[4]}, v{T[5]}")
    wave_reduce(q_, "add_f32", T[3], n=32)
    e(f"v_mul_f32 v{q_}, {hex(f32(1.0/640))}, v{q_}")
    bf16r(s_); bf16r(q_)
    e(f"v_add_f32 v{q_}, {hex(f32(1e-5))}, v{q_}")
    bf16r(q_)
    e(f"v_sqrt_f32 v{q_}, v{q_}")
    bf16r(q_)
    e(f"v_rcp_f32 v{q_}, v{q_}")
    for i in range(0, 20, 2):
        a = HB + i
        e(f"v_pk_add_f32 v[{a}:{a+1}], v[{a}:{a+1}], v[{s_}:{s_+1}] op_sel_hi:[1,0]")
        e(f"v_cvt_pk_bf16_f32 v{a+1}, v{a}, v{a+1}")
        e(f"v_lshlrev_b32 v{a}, 16, v{a+1}")
        e(f"v_and_b32 v{a+1}, s{sMASK}, v{a+1}")
        e(f"v_pk_mul_f32 v[{a}:{a+1}], v[{a}:{a+1}], v[{q_}:{q_+1}] op_sel_hi:[1,0]")
        e(f"v_cvt_pk_bf16_f32 v{Q + i//2}, v{a}, v{a+1}")
    for i in range(5):
        e(f"ds_write_b64 v{VLW}, v[{Q+2*i}:{Q+2*i+1}] offset:{8*i}")
    e("s_waitcnt lgkmcnt(0)")
    bregs = [SC + 4*i for i in range(8)] + [ACC + 4*i for i in range(6)] + [RING + 100 + 4*i for i in range(6)]
    for ks in range(15):
        e(f"ds_read_b128 v[{bregs[ks]}:{bregs[ks]+3}], v{VLR} offset:{64*ks}")
    D = T[8]
    outstanding = 15
    for ks in range(20):
        issued = min(20, 15 + ks)
        e(f"s_waitcnt lgkmcnt({issued - ks - 1})")
        c = "0" if ks == 0 else f"v[{D}:{D+3}]"
        e(f"v_mfma_f32_16x16x32_bf16 v[{D}:{D+3}], v[{F1+4*ks}:{F1+4*ks+3}], v[{bregs[ks]}:{bregs[ks]+3}], {c}")
        if 15 + ks < 20:
            k2 = 15 + ks
            e(f"ds_read_b128 v[{bregs[k2]}:{bregs[k2]+3}], v{VLR} offset:{64*k2}")
    for i in range(4):
        bf16r(D+i)
        e(f"v_mul_f32 v{T[i]}, {hex(f32(-1.4426950408889634))}, v{D+i}")
        e(f"v_exp_f32 v{T[i]}, v{T[i]}")
        e(f"v_add_f32 v{T[i]}, 1.0, v{T[i]}")
        e(f"v_rcp_f32 v{T[i]}, v{T[i]}")
        e(f"v_mul_f32 v{D+i}, v{D+i}, v{T[i]}")
    e(f"v_cvt_pk_bf16_f32 v{T[4]}, v{D}, v{D+1}")
    e(f"v_cvt_pk_bf16_f32 v{T[5]}, v{D+2}, v{D+3}")
    ZD = F1
    for tt in range(10):
        e(f"v_mfma_f32_16x16x16_bf16 v[{ZD+4*tt}:{ZD+4*tt+3}], v[{F2+2*tt}:{F2+2*tt+1}], v[{T[4]}:{T[5]}], 0")
    for tt in range(10):
        for i in range(4): e(f"v_min_u32 v{ZD+4*tt+i}, -2, v{ZD+4*tt+i}")
        if tt: e(f"s_mov_b32 s{sT0}, {tt*6144}")
        so = f"s{sT0}" if tt else "0"
        e(f"buffer_store_dwordx4 v[{ZD+4*tt}:{ZD+4*tt+3}], v{VZA}, {srd(SRD_WS)}, {so} offen sc1")
    stamp()
    if stamps:
        e(f"s_cmp_lg_u32 s{sW}, 0")
        e("s_cbranch_scc1 L_end")
        e(f"s_mov_b64 s[{sST+16}:{sST+17}], 0")
    A.label("L_fin"); A.fence()
    if stamps:
        e("s_waitcnt lgkmcnt(0)")
        e(f"s_lshl_b32 s{sT0}, s2, 7")
        e(f"s_add_u32 s{sT0}, s{sT0}, {WS_STAMP}")
        e(f"v_mov_b32 v{T[0]}, 0")
        e("s_mov_b64 exec, 1")
        if dbgstamps:
            e(f"s_not_b32 s{sT1}, s{sST}")
            e(f"v_mov_b32 v{T[2]}, s{sT1}")
            e(f"buffer_atomic_umax v{T[2]}, v{T[0]}, {srd(SRD_DBG)}, 0 offen offset:16 sc1")
            for i in range(9):
                e(f"v_mov_b32 v{T[4+i]}, s{sST+2*i}")
                e(f"buffer_atomic_umax v{T[4+i]}, v{T[0]}, {srd(SRD_DBG)}, 0 offen offset:{20+4*i} sc1")
        for i in range(9):
            e(f"v_mov_b32 v{T[2]}, s{sST+2*i}")
            e(f"v_mov_b32 v{T[3]}, s{sST+2*i+1}")
            e(f"buffer_store_dwordx2 v[{T[2]}:{T[3]}], v{T[0]}, {srd(SRD_WS)}, s{sT0} offen offset:{8*i}")
            e("s_nop 1")
    A.label("L_end")
    A.raw("    s_endpgm")
    A.raw(f""".section .rodata,"a"
.p2align 6
.amdhsa_kernel {NAME}
  .amdhsa_next_free_vgpr 256
  .amdhsa_next_free_sgpr 102
  .amdhsa_accum_offset 256
  .amdhsa_group_segment_fixed_size 0
  .amdhsa_kernarg_size 88
  .amdhsa_user_sgpr_count 2
  .amdhsa_user_sgpr_kernarg_segment_ptr 1
  .amdhsa_system_sgpr_workgroup_id_x 1
  .amdhsa_float_denorm_mode_32 3
.end_amdhsa_kernel""")
    return A.text()

if __name__ == "__main__":
    out = sys.argv[1] if len(sys.argv) > 1 else "sequential_preLN__mha_block_cached__dense_activation_silu__decode.s"
    kw = eval("dict(%s)" % sys.argv[2]) if len(sys.argv) > 2 else {}
    open(out, "w").write(gen(**kw))
```

```python
import sys, struct, os
from asmlib import Asm

NAME = "sequential_preLN__mha_block_cached__dense_activation_silu__decode_kernel"
HEADER = open(os.path.join(os.path.dirname(os.path.abspath(__file__)), "header.txt")).read()

def f32(x): return struct.unpack('<I', struct.pack('<f', x))[0]

WS_PART = 0x000000
WS_Y    = 0x040000
WS_Z    = 0x070000
WS_QP   = 0x100000
WS_STAMP= 0x180000
WS_SIZE = 0x200000
L_RED  = 0
L_QS   = 6656
L_MX   = 7040
L_OB   = 7168
L_YR   = 10240
L_H    = 11264
L_LN   = 16384
L_RED2 = 16384
L_W    = 26624
LDS_BYTES = L_W + 53248

KVBYTES = 2*32*8192*384

def gen(depth=5, n1=10, n1b=4, n2=12, n3=8, wpos=40, wgap=4, stamps=False, spin_limit=1 << 20, kvflags="nt", wqflags="nt", wflags="nt",
        sleep=1, stampq=False):
    A = Asm(); e = A.e
    A.raw(HEADER.rstrip('\n'))
    A.raw(f"; @launch grid=(256,1,1) block=(512,1,1) lds={LDS_BYTES}")
    A.raw('.amdgcn_target "amdgcn-amd-amdhsa--gfx950"\n.text\n.globl %s\n.p2align 8\n.type %s,@function\n%s:' % (NAME, NAME, NAME))
    VLANE, VKV, VQO = 1, 2, 3
    T = list(range(4, 20))
    VG, VC, VX1, VX2 = 20, 21, 22, 23
    VMW, VLW_ = 22, 23
    Q = 24; ACC = 36; SC = 60; RING = 92
    NSLOT = 39
    SP = list(range(RING + NSLOT*4, 256))
    VWG, VWL, VRED = SP[0], SP[1], SP[2]
    SRD_X, SRD_K, SRD_V, SRD_WQ, SRD_WT, SRD_OUT, SRD_DBG, SRD_WS = 28, 32, 36, 40, 44, 48, 52, 56
    sW, sH, sB, sSPL, sMEM, sKVB, sOFF = 60, 61, 62, 63, 64, 65, 66
    sMASK, sR, sRS, sT0, sT1, sT2, sT3, sSPIN, sF0 = 67, 68, 69, 70, 71, 72, 73, 74, 75
    sPLO, sPHI, sXG, sCS = 76, 77, 78, 79
    sST = 80
    def srd(s): return f"s[{s}:{s+3}]"
    nstamp = [0]
    def stamp():
        if not stamps: return
        i = nstamp[0]; nstamp[0] += 1
        assert i < 10
        e(f"s_memrealtime s[{sST+2*i}:{sST+2*i+1}]")
    e("s_cmp_ge_u32 s2, 256")
    e("s_cbranch_scc1 L_end")
    e("s_load_dwordx16 s[4:19], s[0:1], 0")
    e("s_load_dwordx4 s[20:23], s[0:1], 64")
    e("s_load_dwordx2 s[24:25], s[0:1], 80")
    stamp()
    e(f"v_lshrrev_b32 v{T[0]}, 6, v0")
    e(f"v_and_b32 v{VLANE}, 63, v0")
    e(f"v_readfirstlane_b32 s{sW}, v{T[0]}")
    e(f"v_lshrrev_b32 v{VG}, 3, v{VLANE}")
    e(f"v_and_b32 v{VC}, 7, v{VLANE}")
    e(f"s_and_b32 s{sXG}, s2, 7")
    e(f"s_lshr_b32 s{sT1}, s2, 3")
    e(f"s_lshr_b32 s{sT2}, s{sT1}, 3")
    e(f"s_lshl_b32 s{sH}, s{sXG}, 2")
    e(f"s_add_u32 s{sH}, s{sH}, s{sT2}")
    e(f"s_and_b32 s{sMEM}, s{sT1}, 7")
    e(f"s_lshr_b32 s{sB}, s{sMEM}, 2")
    e(f"s_and_b32 s{sSPL}, s{sMEM}, 3")
    e(f"s_mul_i32 s{sCS}, s{sT2}, 5")
    e(f"s_add_u32 s{sCS}, s{sCS}, s{sMEM}")
    e(f"s_lshl_b32 s{sT0}, s{sB}, 5")
    e(f"s_add_u32 s{sT0}, s{sT0}, s{sH}")
    e(f"s_lshl_b32 s{sT0}, s{sT0}, 2")
    e(f"s_add_u32 s{sT0}, s{sT0}, s{sSPL}")
    e(f"s_mul_i32 s{sKVB}, s{sT0}, 786432")
    e(f"s_mov_b32 s{sMASK}, 0xffff0000")
    e(f"s_mov_b32 s{sPLO}, 0x05040100")
    e(f"s_mov_b32 s{sPHI}, 0x07060302")
    e(f"s_mul_i32 s{sR}, s{sH}, 5")
    e(f"s_add_u32 s{sR}, s{sR}, s{sMEM}")
    e(f"s_mul_i32 s{sF0}, s{sH}, 3")
    e(f"s_add_u32 s{sF0}, s{sF0}, s{sMEM}")
    e(f"s_sub_u32 s{sF0}, s{sF0}, 5")
    e(f"s_lshl_b32 s{sF0}, s{sF0}, 4")
    e(f"v_mul_u32_u24 v{VKV}, 384, v{VG}")
    e(f"v_lshl_add_u32 v{VKV}, v{VC}, 4, v{VKV}")
    e(f"s_mul_i32 s{sT0}, s{sW}, 3072")
    e(f"v_add_u32 v{VKV}, s{sT0}, v{VKV}")
    e(f"s_mul_i32 s{sT0}, s{sMEM}, 80")
    e(f"s_lshl_b32 s{sT1}, s{sW}, 4")
    e(f"s_add_u32 s{sT0}, s{sT0}, s{sT1}")
    e(f"v_lshlrev_b32 v{T[0]}, 1, v{VG}")
    e(f"v_add_u32 v{T[0]}, s{sT0}, v{T[0]}")
    e(f"v_mul_u32_u24 v{VQO}, 12288, v{T[0]}")
    e(f"v_lshl_add_u32 v{VQO}, v{VC}, 4, v{VQO}")
    e(f"s_mul_i32 s{sT0}, s{sH}, 384")
    e(f"s_cmp_ge_u32 s{sW}, 5")
    e(f"s_cselect_b32 s{sT0}, 0x7f000000, s{sT0}")
    e(f"v_add_u32 v{VQO}, s{sT0}, v{VQO}")
    e(f"v_lshlrev_b32 v{VX1}, 1, v{T[0]}")
    e(f"v_mul_u32_u24 v{VX2}, 40, v{VLANE}")
    e(f"s_lshl_b32 s{sT0}, s{sH}, 3")
    e(f"s_add_u32 s{sT0}, s{sT0}, s{sMEM}")
    e(f"s_lshl_b32 s{sT0}, s{sT0}, 10")
    e(f"s_mov_b32 s{sT2}, {WS_SIZE}")
    e(f"s_mul_i32 s{sT1}, s{sR}, 3072")
    e(f"s_lshl_b32 s{sT3}, s{sW}, 10")
    e(f"s_add_u32 s{sT1}, s{sT1}, s{sT3}")
    e(f"s_add_u32 s{sT1}, s{sT1}, {WS_Z - 2048}")
    e(f"s_sub_u32 s{sT3}, s{sW}, 2")
    e(f"s_cmp_lt_u32 s{sT3}, 3")
    e(f"s_cselect_b32 s{sT2}, s{sT1}, s{sT2}")
    e(f"s_cmp_ge_u32 s{sMEM}, 5")
    e(f"s_cselect_b32 s{sT2}, {WS_SIZE}, s{sT2}")
    e(f"s_cmp_eq_u32 s{sW}, 0")
    e(f"s_cselect_b32 s{sT2}, s{sT0}, s{sT2}")
    e(f"v_lshlrev_b32 v{T[1]}, 4, v{VLANE}")
    e(f"v_add_u32 v{T[1]}, s{sT2}, v{T[1]}")
    VYA = SP[5]
    e(f"v_mul_u32_u24 v{VYA}, 2560, v{VG}")
    e(f"v_lshl_add_u32 v{VYA}, v{VC}, 4, v{VYA}")
    e(f"s_mul_i32 s{sT0}, s{sXG}, 5120")
    e(f"s_lshl_b32 s{sT1}, s{sCS}, 7")
    e(f"s_add_u32 s{sT0}, s{sT0}, s{sT1}")
    e(f"s_add_u32 s{sT0}, s{sT0}, {WS_Y}")
    e(f"s_cmp_ge_u32 s{sMEM}, 5")
    e(f"s_cselect_b32 s{sT0}, {WS_SIZE}, s{sT0}")
    e(f"v_add_u32 v{VYA}, s{sT0}, v{VYA}")
    e(f"v_cmp_le_u32 vcc, 16, v{VLANE}")
    e(f"v_mov_b32 v{T[2]}, {WS_SIZE}")
    e(f"v_cndmask_b32 v{VYA}, v{VYA}, v{T[2]}, vcc")
    e(f"s_cmp_eq_u32 s{sW}, 1")
    e(f"s_cselect_b64 s[{sT2}:{sT3}], -1, 0")
    e(f"v_cndmask_b32 v{T[1]}, v{T[1]}, v{VYA}, s[{sT2}:{sT3}]")
    for i in range(4): e(f"v_mov_b32 v{T[4+i]}, -1")
    e("s_waitcnt lgkmcnt(0)")
    def mk(s, p, size):
        e(f"s_mov_b32 s{s}, s{p}"); e(f"s_mov_b32 s{s+1}, s{p+1}"); e(f"s_mov_b32 s{s+2}, {size}"); e(f"s_mov_b32 s{s+3}, 0x20000")
    mk(SRD_X, 4, 2560)
    XS = Q; XO = Q + 10
    e(f"buffer_load_dwordx4 v[{XS}:{XS+3}], v{VX2}, {srd(SRD_X)}, 0 offen")
    e(f"buffer_load_dwordx4 v[{XS+4}:{XS+7}], v{VX2}, {srd(SRD_X)}, 0 offen offset:16")
    e(f"buffer_load_dwordx2 v[{XS+8}:{XS+9}], v{VX2}, {srd(SRD_X)}, 0 offen offset:32")
    e(f"buffer_load_dword v{XO}, v{VX1}, {srd(SRD_X)}, 0 offen")
    tk_x = e(f"buffer_load_dword v{XO+1}, v{VX1}, {srd(SRD_X)}, 0 offen offset:1280")
    mk(SRD_WQ, 10, 640*6144*2)
    mk(SRD_K, 6, KVBYTES)
    QL = [('Q', t, j) for t in range(2) for j in range(3)]
    KL = [('K', t, j) for t in range(32) for j in range(3)]
    VL = [('V', t, j) for t in range(32) for j in range(3)]
    WL = [('W', 0, j) for j in range(8)]
    rest = KL + VL
    for i, wl in enumerate(WL): rest.insert(wpos + i*(wgap+1), wl)
    order = QL + rest
    free = list(range(NSLOT))
    slot = {}; tick = {}
    m = [0]
    last_off = [None]
    def issue_one():
        L = order[m[0]]; m[0] += 1
        kind, t, j = L
        s = free.pop(0); slot[L] = s
        r = RING + 4*s
        if kind == 'W':
            if j == 0: so = "0"
            else:
                e(f"s_mul_i32 s{sOFF}, s{sRS}, {j}"); so = f"s{sOFF}"; last_off[0] = None
            tick[L] = e(f"buffer_load_dwordx4 v[{r}:{r+3}], v{VWG}, {srd(SRD_WT)}, {so} offen {wflags}")
            return
        if kind == 'Q':
            if last_off[0] != ('Q', t):
                e(f"s_mov_b32 s{sOFF}, {t*12288}"); last_off[0] = ('Q', t)
            sr, vo, fl = SRD_WQ, VQO, wqflags
        else:
            if last_off[0] != ('KV', t):
                e(f"s_add_u32 s{sOFF}, s{sKVB}, {t*24576}"); last_off[0] = ('KV', t)
            sr, vo, fl = (SRD_K if kind == 'K' else SRD_V), VKV, kvflags
        tick[L] = e(f"buffer_load_dwordx4 v[{r}:{r+3}], v{vo}, {srd(sr)}, s{sOFF} offen offset:{j*128} {fl}")
    landed = [0]
    def can_issue(): return m[0] < len(order) and free
    def wait_for(L):
        while L not in tick:
            assert can_issue(), L
            issue_one()
        if tick[L] > landed[0]:
            A.wait_vm(tick[L]); landed[0] = tick[L]
    def top_up(d):
        while can_issue() and A.vm_issued - landed[0] < d: issue_one()
    def pump(d):
        if not can_issue(): return
        if A.vm_issued - landed[0] >= d:
            tk = A.vm_issued - (d - 1)
            A.wait_vm(tk); landed[0] = tk
        issue_one()
    def release(L): free.append(slot[L])
    landed[0] = 0
    for _ in range(6): issue_one()
    mk(SRD_WS, 24, WS_SIZE)
    tk_clear = e(f"buffer_store_dwordx4 v[{T[4]}:{T[7]}], v{T[1]}, {srd(SRD_WS)}, 0 offen sc1")
    for _ in range(n1): issue_one()
    mk(SRD_V, 8, KVBYTES)
    mk(SRD_OUT, 20, 2560); mk(SRD_DBG, 22, 256)
    LB = T[0]
    e(f"s_lshl_b32 s{sT0}, s{sW}, 6")
    e(f"v_add_u32 v{LB}, s{sT0}, v{VLANE}")
    rbk, cb, hh, u, u3 = T[1], T[2], T[3], T[4], T[5]
    e(f"v_lshrrev_b32 v{rbk}, 2, v{LB}")
    e(f"v_and_b32 v{cb}, 3, v{LB}")
    e(f"v_mul_u32_u24 v{hh}, 171, v{rbk}")
    e(f"v_lshrrev_b32 v{hh}, 12, v{hh}")
    e(f"v_mul_u32_u24 v{u}, 24, v{hh}")
    e(f"v_sub_u32 v{u}, v{rbk}, v{u}")
    e(f"v_mul_u32_u24 v{u3}, 43, v{u}")
    e(f"v_lshrrev_b32 v{u3}, 7, v{u3}")
    e(f"v_mul_u32_u24 v{T[6]}, 3, v{u3}")
    e(f"v_sub_u32 v{T[6]}, v{u}, v{T[6]}")
    e(f"v_lshlrev_b32 v{T[6]}, 6, v{T[6]}")
    e(f"v_lshl_add_u32 v{T[6]}, v{u3}, 3, v{T[6]}")
    e(f"v_mul_u32_u24 v{T[7]}, 192, v{hh}")
    e(f"v_add_u32 v{T[6]}, v{T[6]}, v{T[7]}")
    e(f"s_mul_i32 s{sT0}, s{sXG}, 768")
    e(f"v_add_u32 v{T[6]}, s{sT0}, v{T[6]}")
    e(f"v_mul_u32_u24 v{T[6]}, 1280, v{T[6]}")
    e(f"v_lshl_add_u32 v{T[6]}, v{cb}, 4, v{T[6]}")
    e(f"s_lshl_b32 s{sT0}, s{sCS}, 6")
    e(f"v_add_u32 v{T[6]}, s{sT0}, v{T[6]}")
    e(f"v_lshrrev_b32 v{T[7]}, 1, v{cb}")
    e(f"v_lshl_add_u32 v{T[7]}, v{hh}, 1, v{T[7]}")
    e(f"v_mul_u32_u24 v{T[7]}, 6, v{T[7]}")
    e(f"v_lshrrev_b32 v{u3}, 2, v{u}")
    e(f"v_add_u32 v{T[7]}, v{T[7]}, v{u3}")
    e(f"v_lshlrev_b32 v{T[7]}, 10, v{T[7]}")
    e(f"v_and_b32 v{u3}, 3, v{u}")
    e(f"v_lshl_add_u32 v{T[7]}, v{u3}, 8, v{T[7]}")
    e(f"v_and_b32 v{u3}, 1, v{cb}")
    e(f"v_lshl_add_u32 v{T[7]}, v{u3}, 7, v{T[7]}")
    e(f"v_add_u32 v{T[7]}, {L_W}, v{T[7]}")
    e(f"v_lshrrev_b32 v{T[1]}, 1, v{LB}")
    e(f"v_mul_u32_u24 v{T[1]}, 24576, v{T[1]}")
    e(f"v_and_b32 v{T[2]}, 1, v{LB}")
    e(f"v_lshl_add_u32 v{T[1]}, v{T[2]}, 4, v{T[1]}")
    e(f"s_lshl_b32 s{sT0}, s{sF0}, 1")
    e(f"v_add_u32 v{T[1]}, s{sT0}, v{T[1]}")
    e(f"v_lshlrev_b32 v{T[2]}, 7, v{LB}")
    e(f"v_add_u32 v{T[2]}, {L_W}, v{T[2]}")
    L_W2 = L_W + 24576
    e(f"v_subrev_u32 v{LB}, 192, v{LB}")
    e(f"v_cmp_le_u32 vcc, 80, v{LB}")
    e(f"v_cndmask_b32 v{T[3]}, 0, 1, vcc")
    e(f"v_mul_u32_u24 v{T[13]}, 80, v{T[3]}")
    e(f"v_sub_u32 v{T[13]}, v{LB}, v{T[13]}")
    e(f"v_mul_u32_u24 v{T[14]}, 10240, v{T[3]}")
    e(f"v_lshl_add_u32 v{T[14]}, v{T[13]}, 4, v{T[14]}")
    e(f"s_mul_i32 s{sT0}, s{sF0}, 1280")
    e(f"v_add_u32 v{T[14]}, s{sT0}, v{T[14]}")
    e(f"v_cmp_le_u32 vcc, 160, v{LB}")
    e(f"v_mov_b32 v{T[15]}, 0x7f000000")
    e(f"v_cndmask_b32 v{T[14]}, v{T[14]}, v{T[15]}, vcc")
    e(f"v_lshrrev_b32 v{T[15]}, 1, v{T[13]}")
    e(f"v_lshlrev_b32 v{T[15]}, 9, v{T[15]}")
    e(f"v_lshl_add_u32 v{T[15]}, v{T[3]}, 8, v{T[15]}")
    e(f"v_and_b32 v{T[13]}, 1, v{T[13]}")
    e(f"v_lshl_add_u32 v{T[15]}, v{T[13]}, 7, v{T[15]}")
    e(f"v_add_u32 v{T[15]}, {L_W2}, v{T[15]}")
    e(f"s_cmp_lt_u32 s{sW}, 3")
    e(f"s_cselect_b64 s[{sT2}:{sT3}], -1, 0")
    e(f"v_cndmask_b32 v{VWG}, v{T[14]}, v{T[1]}, s[{sT2}:{sT3}]")
    e(f"v_cndmask_b32 v{VWL}, v{T[15]}, v{T[2]}, s[{sT2}:{sT3}]")
    e(f"s_cselect_b32 s{SRD_WT}, s16, s18")
    e(f"s_cselect_b32 s{SRD_WT+1}, s17, s19")
    e(f"s_movk_i32 s{sRS}, 1280")
    e(f"s_cselect_b32 s{sRS}, 3072, s{sRS}")
    e(f"s_mov_b32 s{SRD_WT+2}, {640*1536*2}")
    e(f"s_cmp_lt_u32 s{sMEM}, 5")
    e(f"s_cselect_b64 s[{sT2}:{sT3}], -1, 0")
    e(f"v_cndmask_b32 v{VWG}, v{VWG}, v{T[6]}, s[{sT2}:{sT3}]")
    e(f"v_cndmask_b32 v{VWL}, v{VWL}, v{T[7]}, s[{sT2}:{sT3}]")
    e(f"s_cselect_b32 s{SRD_WT}, s12, s{SRD_WT}")
    e(f"s_cselect_b32 s{SRD_WT+1}, s13, s{SRD_WT+1}")
    e(f"s_cselect_b32 s{sRS}, 1280, s{sRS}")
    e(f"s_cselect_b32 s{SRD_WT+2}, {6144*640*2}, s{SRD_WT+2}")
    e(f"s_mov_b32 s{SRD_WT+3}, 0x20000")
    e(f"s_cmp_ge_u32 s{sW}, 6")
    e(f"s_cselect_b64 s[{sT2}:{sT3}], -1, 0")
    e(f"v_mov_b32 v{T[2]}, 0x7f000000")
    e(f"v_cndmask_b32 v{VWG}, v{VWG}, v{T[2]}, s[{sT2}:{sT3}]")
    for r_ in SP[3:5] + SP[6:8]: e(f"v_mov_b32 v{r_}, {WS_SIZE}")
    e(f"v_mul_u32_u24 v{VRED}, 96, v{VC}")
    e(f"v_mul_u32_u24 v{T[2]}, 12, v{VG}")
    e(f"v_add_u32 v{VRED}, v{VRED}, v{T[2]}")
    e(f"s_mul_i32 s{sT0}, s{sW}, 832")
    e(f"v_add_u32 v{VRED}, s{sT0}, v{VRED}")

    def wave_reduce(v, op, tmp, n=64):
        for ctl in ("quad_perm:[1,0,3,2]", "quad_perm:[2,3,0,1]", "row_half_mirror", "row_mirror"):
            e(f"v_{op}_dpp v{v}, v{v}, v{v} {ctl} row_mask:0xf bank_mask:0xf")
        e(f"v_mov_b32 v{tmp}, v{v}")
        e(f"v_permlane16_swap_b32 v{v}, v{tmp}")
        e(f"v_{op} v{v}, v{v}, v{tmp}")
        if n == 64:
            e(f"v_mov_b32 v{tmp}, v{v}")
            e(f"v_permlane32_swap_b32 v{v}, v{tmp}")
            e(f"v_{op} v{v}, v{v}, v{tmp}")
    def group_reduce(v, op, tmp):
        e(f"v_{op}_dpp v{v}, v{v}, v{v} row_ror:8 row_mask:0xf bank_mask:0xf")
        e(f"v_mov_b32 v{tmp}, v{v}")
        e(f"v_permlane16_swap_b32 v{v}, v{tmp}")
        e(f"v_{op} v{v}, v{v}, v{tmp}")
        e(f"v_mov_b32 v{tmp}, v{v}")
        e(f"v_permlane32_swap_b32 v{v}, v{tmp}")
        e(f"v_{op} v{v}, v{v}, v{tmp}")
    def bf16r(v):
        e(f"v_cvt_pk_bf16_f32 v{v}, v{v}, v{v}")
        e(f"v_lshlrev_b32 v{v}, 16, v{v}")
    def acc_reduce_to_lds(scale=None, base=None, off=0):
        a = ACC if base is None else base
        for k in range(12): e(f"v_permlane32_swap_b32 v{a+k}, v{a+k+12}")
        for k in range(12): e(f"v_add_f32 v{a+k}, v{a+k}, v{a+k+12}")
        for k in range(6): e(f"v_permlane16_swap_b32 v{a+k}, v{a+k+6}")
        for k in range(6): e(f"v_add_f32 v{a+k}, v{a+k}, v{a+k+6}")
        for k in range(3): e(f"v_add_f32_dpp v{a+12+k}, v{a+k}, v{a+k} row_ror:8 row_mask:0xf bank_mask:0x3")
        for k in range(3): e(f"v_add_f32_dpp v{a+12+k}, v{a+3+k}, v{a+3+k} row_ror:8 row_mask:0xf bank_mask:0xc")
        if scale is not None:
            for k in range(3): e(f"v_mul_f32 v{a+12+k}, v{a+12+k}, v{scale}")
        for k in range(3): e(f"ds_write_b32 v{VRED}, v{a+12+k} offset:{off+4*k}")
    def axpy_load(L, preg, first):
        r = RING + 4*slot[L]; j = L[2]
        for i in range(4):
            lo, hi = T[(2*i) % 8], T[(2*i+1) % 8]
            e(f"v_lshlrev_b32 v{lo}, 16, v{r+i}")
            e(f"v_and_b32 v{hi}, s{sMASK}, v{r+i}")
            k = ACC + 8*j + 2*i
            if first:
                e(f"v_mul_f32 v{k}, v{preg}, v{lo}"); e(f"v_mul_f32 v{k+1}, v{preg}, v{hi}")
            else:
                e(f"v_fmac_f32 v{k}, v{preg}, v{lo}"); e(f"v_fmac_f32 v{k+1}, v{preg}, v{hi}")
    def spin_begin(lbl):
        e(f"s_mov_b32 s{sSPIN}, 0")
        A.label(lbl); A.fence()
    def spin_end(lbl, done_lbl):
        e(f"s_cbranch_vccz {done_lbl}")
        e(f"s_add_u32 s{sSPIN}, s{sSPIN}, 1")
        e(f"s_cmp_ge_u32 s{sSPIN}, {spin_limit}")
        e(f"s_cbranch_scc1 {done_lbl}")
        if sleep: e(f"s_sleep {sleep}")
        e(f"s_branch {lbl}")
        A.label(done_lbl); A.fence()
    def sentinel_check(first, n, tmp):
        regs = list(range(first, first+n))
        e(f"v_max3_u32 v{tmp}, v{regs[0]}, v{regs[1]}, v{regs[2]}")
        i = 3
        while i + 1 < n:
            e(f"v_max3_u32 v{tmp}, v{tmp}, v{regs[i]}, v{regs[i+1]}"); i += 2
        if i < n: e(f"v_max_u32 v{tmp}, v{tmp}, v{regs[i]}")
        e(f"v_cmp_eq_u32 vcc, -1, v{tmp}")

    LOG2E = hex(f32(1.4426950408889634))
    SCALE = hex(f32(192 ** -0.5))
    A.wait_vm(tk_x); landed[0] = tk_x
    HB_ = SC
    for i in range(10):
        e(f"v_lshlrev_b32 v{HB_+2*i}, 16, v{XS+i}")
        e(f"v_and_b32 v{HB_+2*i+1}, s{sMASK}, v{XS+i}")
    s_, t_, q_ = T[0], T[1], T[2]
    def ln_stats(HBx):
        e(f"v_pk_add_f32 v[{T[4]}:{T[5]}], v[{HBx}:{HBx+1}], v[{HBx+2}:{HBx+3}]")
        for i in range(4, 20, 2): e(f"v_pk_add_f32 v[{T[4]}:{T[5]}], v[{T[4]}:{T[5]}], v[{HBx+i}:{HBx+i+1}]")
        e(f"v_add_f32 v{s_}, v{T[4]}, v{T[5]}")
        wave_reduce(s_, "add_f32", t_, n=32)
        e(f"v_mul_f32 v{s_}, {hex(f32(-1.0/640))}, v{s_}")
        for i in range(0, 20, 2):
            e(f"v_pk_add_f32 v[{T[6]}:{T[7]}], v[{HBx+i}:{HBx+i+1}], v[{s_}:{s_+1}] op_sel_hi:[1,0]")
            if i == 0: e(f"v_pk_mul_f32 v[{T[4]}:{T[5]}], v[{T[6]}:{T[7]}], v[{T[6]}:{T[7]}]")
            else: e(f"v_pk_fma_f32 v[{T[4]}:{T[5]}], v[{T[6]}:{T[7]}], v[{T[6]}:{T[7]}], v[{T[4]}:{T[5]}]")
        e(f"v_add_f32 v{q_}, v{T[4]}, v{T[5]}")
        wave_reduce(q_, "add_f32", T[3], n=32)
        e(f"v_mul_f32 v{q_}, {hex(f32(1.0/640))}, v{q_}")
        bf16r(s_); bf16r(q_)
        e(f"v_add_f32 v{q_}, {hex(f32(1e-5))}, v{q_}")
        bf16r(q_)
        e(f"v_sqrt_f32 v{q_}, v{q_}")
        bf16r(q_)
        e(f"v_rcp_f32 v{q_}, v{q_}")
    ln_stats(HB_)
    e(f"v_mov_b32 v{T[1]}, v{T[0]}")
    e(f"v_mov_b32 v{T[3]}, v{T[2]}")
    e(f"v_permlane32_swap_b32 v{T[0]}, v{T[1]}")
    e(f"v_permlane32_swap_b32 v{T[2]}, v{T[3]}")
    LNV = T[8]
    for b_ in range(2):
        e(f"v_lshlrev_b32 v{LNV+2*b_}, 16, v{XO+b_}")
        e(f"v_and_b32 v{LNV+2*b_+1}, s{sMASK}, v{XO+b_}")
        for i in range(2):
            r_ = LNV + 2*b_ + i
            e(f"v_add_f32 v{r_}, v{r_}, v{T[b_]}")
            bf16r(r_)
            e(f"v_mul_f32 v{r_}, v{r_}, v{T[2+b_]}")
            bf16r(r_)
    if not stampq: stamp()
    ACC2 = SC
    for L in QL:
        wait_for(L)
        _, t, j = L
        r = RING + 4*slot[L]
        for i in range(4):
            lo, hi = T[(2*i) % 8], T[(2*i+1) % 8]
            e(f"v_lshlrev_b32 v{lo}, 16, v{r+i}")
            e(f"v_and_b32 v{hi}, s{sMASK}, v{r+i}")
            for b_, base in ((0, ACC), (1, ACC2)):
                k = base + 8*j + 2*i; p = LNV + 2*b_ + t
                op = "v_mul_f32" if t == 0 else "v_fmac_f32"
                e(f"{op} v{k}, v{p}, v{lo}"); e(f"{op} v{k+1}, v{p}, v{hi}")
        release(L)
    for _ in range(n1b): issue_one()
    acc_reduce_to_lds()
    acc_reduce_to_lds(base=ACC2, off=L_RED2)
    A.wait_vm(tk_clear); landed[0] = max(landed[0], tk_clear)
    e(f"v_lshlrev_b32 v{T[1]}, 3, v{VLANE}")
    e(f"v_mov_b32 v{T[2]}, -1")
    e(f"v_mov_b32 v{T[3]}, -1")
    e(f"ds_write_b64 v{T[1]}, v[{T[2]}:{T[3]}] offset:{L_QS}")
    e("s_waitcnt lgkmcnt(0)")
    e("s_barrier")
    e(f"s_cmp_lg_u32 s{sW}, 0")
    e("s_cbranch_scc1 L_qp_skip")
    e(f"v_lshlrev_b32 v{T[0]}, 4, v{VLANE}")
    for b_, off in ((0, L_RED), (1, L_RED2)):
        for w in range(5):
            d = ACC + 20*b_ + 4*w
            e(f"ds_read_b128 v[{d}:{d+3}], v{T[0]} offset:{off + w*832}")
    e(f"s_lshl_b32 s{sT0}, s{sH}, 3")
    e(f"s_add_u32 s{sT0}, s{sT0}, s{sMEM}")
    e(f"v_mov_b32 v{T[4]}, s{sT0}")
    e(f"s_mul_i32 s{sT0}, s{sT0}, 1536")
    e(f"s_add_u32 s{sT0}, s{sT0}, {WS_QP}")
    e(f"v_cmp_gt_u32 vcc, 48, v{VLANE}")
    e(f"v_mov_b32 v{T[1]}, {WS_SIZE}")
    e(f"v_cndmask_b32 v{T[2]}, v{T[1]}, v{T[0]}, vcc")
    e(f"v_mov_b32 v{T[3]}, 1")
    e("s_waitcnt lgkmcnt(0)")
    for b_ in range(2):
        for w in range(1, 5):
            for i in range(4): e(f"v_add_f32 v{ACC+20*b_+i}, v{ACC+20*b_+i}, v{ACC+20*b_+4*w+i}")
    save = A.vm_issued
    e(f"buffer_store_dwordx4 v[{ACC}:{ACC+3}], v{T[2]}, {srd(SRD_WS)}, s{sT0} offen sc1")
    e(f"buffer_store_dwordx4 v[{ACC+20}:{ACC+23}], v{T[2]}, {srd(SRD_WS)}, s{sT0} offen offset:768 sc1")
    e("s_waitcnt vmcnt(0)")
    e("s_mov_b64 exec, 1")
    e(f"buffer_store_byte v{T[3]}, v{T[4]}, {srd(SRD_DBG)}, 0 offen sc1")
    e("s_mov_b64 exec, -1")
    A.vm_issued = save
    A.label("L_qp_skip"); A.fence()
    if stampq: stamp()
    for _ in range(n2): pump(depth)
    e(f"s_cmp_lg_u32 s{sW}, 0")
    e("s_cbranch_scc1 L_qg_skip")
    save = A.vm_issued
    e(f"s_lshl_b32 s{sT0}, s{sH}, 3")
    e(f"v_mov_b32 v{T[4]}, s{sT0}")
    e(f"s_mov_b32 s{sT1}, 0x01010101")
    spin_begin("L_qf_spin")
    e(f"buffer_load_dwordx2 v[{T[6]}:{T[7]}], v{T[4]}, {srd(SRD_DBG)}, 0 offen sc1")
    e("s_waitcnt vmcnt(0)")
    e(f"v_and_b32 v{T[6]}, v{T[6]}, v{T[7]}")
    e(f"v_cmp_ne_u32 vcc, s{sT1}, v{T[6]}")
    spin_end("L_qf_spin", "L_qf_done")
    e(f"s_mul_i32 s{sT0}, s{sH}, {8*1536}")
    e(f"s_mul_i32 s{sT1}, s{sB}, 768")
    e(f"s_add_u32 s{sT0}, s{sT0}, s{sT1}")
    e(f"s_add_u32 s{sT0}, s{sT0}, {WS_QP}")
    for mm_ in range(8):
        d = ACC + 4*mm_
        if mm_: e(f"s_add_u32 s{sT0}, s{sT0}, 1536")
        e(f"buffer_load_dwordx4 v[{d}:{d+3}], v{T[2]}, {srd(SRD_WS)}, s{sT0} offen sc1")
    e("s_waitcnt vmcnt(0)")
    for mm_ in range(1, 8):
        for i in range(4): e(f"v_add_f32 v{ACC+i}, v{ACC+i}, v{ACC+4*mm_+i}")
    e(f"v_cvt_pk_bf16_f32 v{T[4]}, v{ACC}, v{ACC+1}")
    e(f"v_cvt_pk_bf16_f32 v{T[5]}, v{ACC+2}, v{ACC+3}")
    e(f"v_min_u32 v{T[4]}, -2, v{T[4]}")
    e(f"v_min_u32 v{T[5]}, -2, v{T[5]}")
    e(f"v_lshlrev_b32 v{T[0]}, 3, v{VLANE}")
    e(f"v_cmp_gt_u32 vcc, 48, v{VLANE}")
    e(f"s_and_saveexec_b64 s[{sT2}:{sT3}], vcc")
    e(f"ds_write_b64 v{T[0]}, v[{T[4]}:{T[5]}] offset:{L_QS}")
    e(f"s_mov_b64 exec, -1")
    e("s_waitcnt lgkmcnt(0)")
    A.vm_issued = save
    A.label("L_qg_skip"); A.fence()
    for _ in range(n3): pump(depth)
    e(f"v_mul_u32_u24 v{T[0]}, 48, v{VC}")
    spin_begin("L_ql_spin")
    for j in range(3):
        e(f"ds_read_b128 v[{Q+4*j}:{Q+4*j+3}], v{T[0]} offset:{L_QS + 16*j}")
    e("s_waitcnt lgkmcnt(0)")
    sentinel_check(Q, 12, T[1])
    spin_end("L_ql_spin", "L_ql_done")
    stamp()
    cons = [L for L in order if L[0] != 'Q']
    ncons = 0
    def step(L):
        nonlocal ncons
        ncons += 1
        behind = (L in tick) and (A.vm_issued - tick[L] >= depth)
        wait_for(L)
        if behind:
            if ncons % 2 == 0: pump(depth)
        else:
            top_up(depth)
    for L in cons:
        kind, t, j = L
        if kind == 'K':
            step(L)
            r = RING + 4*slot[L]
            for i in range(4):
                c = "0" if i == 0 else f"v{T[j]}"
                e(f"v_dot2_f32_bf16 v{T[j]}, v{r+i}, v{Q+4*j+i}, {c}")
            release(L)
            if j == 2:
                sc = SC + t
                e(f"v_add_f32 v{sc}, v{T[0]}, v{T[1]}")
                e(f"v_add_f32 v{sc}, v{sc}, v{T[2]}")
                for ctl in ("quad_perm:[1,0,3,2]", "quad_perm:[2,3,0,1]", "row_half_mirror"):
                    e(f"v_add_f32_dpp v{sc}, v{sc}, v{sc} {ctl} row_mask:0xf bank_mask:0xf")
                bf16r(sc)
                e(f"v_mul_f32 v{sc}, {SCALE}, v{sc}")
                bf16r(sc)
            if t == 31 and j == 2:
                stamp()
                mm = T[0]
                e(f"v_max3_f32 v{mm}, v{SC}, v{SC+1}, v{SC+2}")
                for i in range(3, 31, 2): e(f"v_max3_f32 v{mm}, v{mm}, v{SC+i}, v{SC+i+1}")
                e(f"v_max_f32 v{mm}, v{mm}, v{SC+31}")
                group_reduce(mm, "max_f32", T[1])
                e(f"s_lshl_b32 s{sT0}, s{sW}, 2")
                e(f"v_mov_b32 v{T[1]}, s{sT0}")
                e(f"v_min_u32 v{mm}, -2, v{mm}")
                e(f"ds_write_b32 v{T[1]}, v{mm} offset:{L_MX}")
                e(f"v_mov_b32 v{VMW}, v{mm}")
                for i in range(32):
                    e(f"v_sub_f32 v{SC+i}, v{SC+i}, v{mm}")
                    e(f"v_mul_f32 v{SC+i}, {LOG2E}, v{SC+i}")
                    e(f"v_exp_f32 v{SC+i}, v{SC+i}")
                pump(depth)
                l = T[5]
                e(f"v_add_f32 v{l}, v{SC}, v{SC+1}")
                for i in range(2, 32): e(f"v_add_f32 v{l}, v{l}, v{SC+i}")
                group_reduce(l, "add_f32", T[1])
                e(f"v_mov_b32 v{VLW_}, v{l}")
        elif kind == 'V':
            if t == 8 and j == 0:
                e(f"v_lshlrev_b32 v{SP[3]}, 2, v{VLANE}")
                tk_cnt = e(f"buffer_load_dword v{SP[4]}, v{SP[3]}, {srd(SRD_DBG)}, 0 offen sc1")
            if t == 28 and j == 0:
                e(f"v_mov_b32 v{T[8]}, 0")
                spin_begin("L_mx_spin")
                e(f"ds_read_b128 v[{T[0]}:{T[3]}], v{T[8]} offset:{L_MX}")
                e(f"ds_read_b128 v[{T[4]}:{T[7]}], v{T[8]} offset:{L_MX+16}")
                e("s_waitcnt lgkmcnt(0)")
                sentinel_check(T[0], 8, T[9])
                spin_end("L_mx_spin", "L_mx_done")
                e(f"v_max3_f32 v{T[9]}, v{T[0]}, v{T[1]}, v{T[2]}")
                e(f"v_max3_f32 v{T[9]}, v{T[9]}, v{T[3]}, v{T[4]}")
                e(f"v_max3_f32 v{T[9]}, v{T[9]}, v{T[5]}, v{T[6]}")
                e(f"v_max_f32 v{T[9]}, v{T[9]}, v{T[7]}")
                e(f"v_sub_f32 v{VMW}, v{VMW}, v{T[9]}")
                e(f"v_mul_f32 v{VMW}, {LOG2E}, v{VMW}")
                e(f"v_exp_f32 v{VMW}, v{VMW}")
                e(f"s_cmp_eq_u32 s{sW}, 0")
                e(f"s_cselect_b64 s[{sT2}:{sT3}], -1, 0")
                e(f"v_cndmask_b32 v{T[4]}, 0, v{T[9]}, s[{sT2}:{sT3}]")
                e(f"v_mul_f32 v{T[5]}, v{VLW_}, v{VMW}")
                e(f"v_mov_b32 v{T[6]}, 0"); e(f"v_mov_b32 v{T[7]}, 0")
                e(f"s_mul_i32 s{sT0}, s{sW}, 832")
                e(f"v_mov_b32 v{T[1]}, s{sT0}")
                e(f"ds_write_b128 v{T[1]}, v[{T[4]}:{T[7]}] offset:{L_RED+768}")
                e("s_waitcnt lgkmcnt(0)")
            step(L)
            axpy_load(L, SC + t, t == 0)
            release(L)
        elif kind == 'W':
            step(L)
            if j < 7: continue
            regs = [RING + 4*slot[x] for x in WL]
            e(f"s_cmp_ge_u32 s{sW}, 6")
            e("s_cbranch_scc1 L_w_skip")
            for i in range(4):
                tb = T[4] if i % 2 == 0 else ACC
                for kp in range(4):
                    e(f"v_perm_b32 v{tb+kp}, v{regs[2*kp+1]+i}, v{regs[2*kp]+i}, s{sPLO}")
                    e(f"v_perm_b32 v{tb+4+kp}, v{regs[2*kp+1]+i}, v{regs[2*kp]+i}, s{sPHI}")
                e(f"ds_write_b128 v{VWL}, v[{tb}:{tb+3}] offset:{32*i}")
                e(f"ds_write_b128 v{VWL}, v[{tb+4}:{tb+7}] offset:{32*i+16}")
            e("s_waitcnt lgkmcnt(0)")
            A.label("L_w_skip"); A.fence()
            for x in WL: release(x)
    assert order.index(WL[-1]) < order.index(KL[-1])
    stamp()
    acc_reduce_to_lds(VMW)
    A.wait_vm(tk_cnt)
    e(f"v_cmp_ne_u32 vcc, 0x01010101, v{SP[4]}")
    e("s_cbranch_vccz L_cnt_ok")
    spin_begin("L_cnt_spin")
    e(f"buffer_load_dword v{SP[4]}, v{SP[3]}, {srd(SRD_DBG)}, 0 offen sc1")
    e("s_waitcnt vmcnt(0)")
    e(f"v_cmp_ne_u32 vcc, 0x01010101, v{SP[4]}")
    spin_end("L_cnt_spin", "L_cnt_ok")
    e("s_waitcnt lgkmcnt(0)")
    e("s_barrier")
    e(f"s_cmp_lg_u32 s{sW}, 0")
    e("s_cbranch_scc1 L_pub_skip")
    e(f"v_lshlrev_b32 v{T[0]}, 4, v{VLANE}")
    for w in range(8):
        d = (ACC + 4*w) if w < 6 else (T[8] + 4*(w-6))
        e(f"ds_read_b128 v[{d}:{d+3}], v{T[0]} offset:{L_RED + w*832}")
    e(f"s_lshl_b32 s{sT0}, s{sH}, 3")
    e(f"s_add_u32 s{sT0}, s{sT0}, s{sMEM}")
    e(f"s_lshl_b32 s{sT0}, s{sT0}, 10")
    e(f"v_cmp_gt_u32 vcc, 49, v{VLANE}")
    e(f"v_mov_b32 v{T[1]}, {WS_SIZE}")
    e(f"v_cndmask_b32 v{T[2]}, v{T[1]}, v{T[0]}, vcc")
    e("s_waitcnt lgkmcnt(0)")
    for w in range(1, 8):
        d = (ACC + 4*w) if w < 6 else (T[8] + 4*(w-6))
        for i in range(4): e(f"v_add_f32 v{ACC+i}, v{ACC+i}, v{d+i}")
    for i in range(4): e(f"v_min_u32 v{ACC+i}, -2, v{ACC+i}")
    e(f"buffer_store_dwordx4 v[{ACC}:{ACC+3}], v{T[2]}, {srd(SRD_WS)}, s{sT0} offen sc1")
    A.label("L_pub_skip"); A.fence()
    stamp()
    e(f"s_cmp_ge_u32 s{sMEM}, 5")
    e("s_cbranch_scc1 L_mlp")
    FR = RING
    e(f"v_lshlrev_b32 v{T[0]}, 4, v{VLANE}")
    e(f"s_lshr_b32 s{sT0}, s{sW}, 1")
    e(f"s_mul_i32 s{sT1}, s{sT0}, 12288")
    e(f"v_add_u32 v{T[1]}, s{sT1}, v{T[0]}")
    for f in range(12):
        e(f"ds_read_b128 v[{FR+4*f}:{FR+4*f+3}], v{T[1]} offset:{L_W + f*1024}")
    e(f"s_lshl_b32 s{sT0}, s{sXG}, 5")
    e(f"s_lshl_b32 s{sT1}, s{sW}, 2")
    e(f"s_add_u32 s{sT0}, s{sT0}, s{sT1}")
    e(f"s_lshl_b32 s{sT0}, s{sT0}, 10")
    e(f"v_cmp_gt_u32 vcc, 48, v{VLANE}")
    e(f"v_mov_b32 v{T[3]}, {WS_SIZE}")
    e(f"v_cndmask_b32 v{T[4]}, v{T[3]}, v{T[0]}, vcc")
    e(f"v_mov_b32 v{T[5]}, 768")
    g4 = T[2]
    e(f"v_lshrrev_b32 v{g4}, 4, v{VLANE}")
    VOW, VBA, VYW = SP[6], SP[7], SP[3]
    e(f"s_mul_i32 s{sT1}, s{sW}, 384")
    e(f"v_lshlrev_b32 v{VOW}, 3, v{VLANE}")
    e(f"v_add_u32 v{VOW}, s{sT1}, v{VOW}")
    e(f"v_lshlrev_b32 v{VBA}, 4, v{g4}")
    e(f"s_lshl_b32 s{sT2}, s{sW}, 7")
    e(f"v_add_u32 v{VYW}, s{sT2}, v{VBA}")
    e(f"v_add_u32 v{VBA}, s{sT1}, v{VBA}")
    PO = ACC; PM = ACC + 16
    spin_begin("L_a_spin")
    for s in range(4):
        e(f"buffer_load_dwordx4 v[{PO+4*s}:{PO+4*s+3}], v{T[4]}, {srd(SRD_WS)}, s{sT0} offen offset:{1024*s} sc1")
        e(f"buffer_load_dwordx2 v[{PM+2*s}:{PM+2*s+1}], v{T[5]}, {srd(SRD_WS)}, s{sT0} offen offset:{1024*s} sc1")
    e("s_waitcnt vmcnt(0)")
    sentinel_check(PO, 24, T[6])
    spin_end("L_a_spin", "L_a_done")
    M = T[6]
    e(f"v_max3_f32 v{M}, v{PM}, v{PM+2}, v{PM+4}")
    e(f"v_max_f32 v{M}, v{M}, v{PM+6}")
    for s in range(4): e(f"v_sub_f32 v{PM+2*s}, v{PM+2*s}, v{M}")
    for s in range(4): e(f"v_mul_f32 v{PM+2*s}, {LOG2E}, v{PM+2*s}")
    for s in range(4): e(f"v_exp_f32 v{PM+2*s}, v{PM+2*s}")
    Ls = T[7]
    e(f"v_mul_f32 v{Ls}, v{PM}, v{PM+1}")
    for s in range(1, 4): e(f"v_fmac_f32 v{Ls}, v{PM+2*s}, v{PM+2*s+1}")
    e(f"v_rcp_f32 v{Ls}, v{Ls}")
    for i in range(4): e(f"v_mul_f32 v{T[8+i]}, v{PM}, v{PO+i}")
    for s in range(1, 4):
        for i in range(4): e(f"v_fmac_f32 v{T[8+i]}, v{PM+2*s}, v{PO+4*s+i}")
    for i in range(4): e(f"v_mul_f32 v{T[8+i]}, v{T[8+i]}, v{Ls}")
    e(f"v_cvt_pk_bf16_f32 v{T[8]}, v{T[8]}, v{T[9]}")
    e(f"v_cvt_pk_bf16_f32 v{T[9]}, v{T[10]}, v{T[11]}")
    e(f"v_cmp_gt_u32 vcc, 48, v{VLANE}")
    e(f"s_and_saveexec_b64 s[{sT2}:{sT3}], vcc")
    e(f"ds_write_b64 v{VOW}, v[{T[8]}:{T[9]}] offset:{L_OB}")
    e("s_mov_b64 exec, -1")
    BF = RING + 48
    for ks in range(6):
        e(f"ds_read_b128 v[{BF+4*ks}:{BF+4*ks+3}], v{VBA} offset:{L_OB + 64*ks}")
    D0, D1 = T[8], T[12]
    for ks in range(6):
        e(f"s_waitcnt lgkmcnt({5-ks})")
        for tl, D in ((0, D0), (1, D1)):
            c = "0" if ks == 0 else f"v[{D}:{D+3}]"
            f = FR + 4*(6*tl + ks)
            e(f"v_mfma_f32_16x16x32_bf16 v[{D}:{D+3}], v[{f}:{f+3}], v[{BF+4*ks}:{BF+4*ks+3}], {c}")
    e("s_mov_b32 exec_lo, 0x00010001")
    e("s_mov_b32 exec_hi, 0x00010001")
    e(f"ds_write_b128 v{VYW}, v[{D0}:{D0+3}] offset:{L_YR}")
    e(f"ds_write_b128 v{VYW}, v[{D1}:{D1+3}] offset:{L_YR+64}")
    e("s_mov_b64 exec, -1")
    e("s_waitcnt lgkmcnt(0)")
    e("s_barrier")
    e(f"s_cmp_lg_u32 s{sW}, 0")
    e("s_cbranch_scc1 L_end")
    e(f"v_and_b32 v{T[0]}, 15, v{VLANE}")
    e(f"v_lshlrev_b32 v{T[0]}, 4, v{T[0]}")
    for hh_ in range(4):
        e(f"ds_read_b128 v[{ACC+4*hh_}:{ACC+4*hh_+3}], v{T[0]} offset:{L_YR + 256*hh_}")
    e("s_waitcnt lgkmcnt(0)")
    for i in range(4):
        e(f"v_add_f32 v{ACC+i}, v{ACC+i}, v{ACC+4+i}")
        e(f"v_add_f32 v{ACC+8+i}, v{ACC+8+i}, v{ACC+12+i}")
    for i in range(4): e(f"v_add_f32 v{ACC+i}, v{ACC+i}, v{ACC+8+i}")
    for i in range(4): e(f"v_min_u32 v{ACC+i}, -2, v{ACC+i}")
    e(f"buffer_store_dwordx4 v[{ACC}:{ACC+3}], v{VYA}, {srd(SRD_WS)}, 0 offen sc1")
    stamp()
    col = T[0]
    e(f"v_and_b32 v{col}, 1, v{VLANE}")
    e(f"v_lshlrev_b32 v{col}, 2, v{col}")
    e(f"v_lshrrev_b32 v{T[1]}, 5, v{VLANE}")
    e(f"v_lshl_add_u32 v{col}, v{T[1]}, 1, v{col}")
    e(f"v_bfe_u32 v{T[1]}, v{VLANE}, 4, 1")
    e(f"v_add_u32 v{col}, v{col}, v{T[1]}")
    e(f"s_lshl_b32 s{sT0}, s{sR}, 3")
    e(f"v_add_u32 v{col}, s{sT0}, v{col}")
    e(f"v_lshlrev_b32 v{T[1]}, 1, v{col}")
    e(f"buffer_load_ushort v{T[2]}, v{T[1]}, {srd(SRD_X)}, 0 offen")
    e(f"v_bfe_u32 v{T[3]}, v{VLANE}, 1, 3")
    e(f"v_mul_u32_u24 v{T[4]}, 5120, v{T[3]}")
    e(f"v_lshl_add_u32 v{T[4]}, v{col}, 2, v{T[4]}")
    e(f"v_cmp_ne_u32 vcc, 0, v{T[3]}")
    e(f"v_mov_b32 v{T[3]}, {WS_SIZE}")
    e(f"v_cndmask_b32 v{T[1]}, v{T[1]}, v{T[3]}, vcc")
    e(f"v_lshlrev_b32 v{T[5]}, 4, v{VLANE}")
    e(f"s_mov_b32 s{sT0}, {WS_Y}")
    Yr = SC
    spin_begin("L_b_spin")
    e(f"buffer_load_dword v{Yr}, v{T[4]}, {srd(SRD_WS)}, s{sT0} offen sc1")
    e("s_waitcnt vmcnt(0)")
    e(f"v_cmp_eq_u32 vcc, -1, v{Yr}")
    spin_end("L_b_spin", "L_b_done")
    e(f"v_add_f32_dpp v{Yr}, v{Yr}, v{Yr} quad_perm:[2,3,0,1] row_mask:0xf bank_mask:0xf")
    e(f"v_mov_b32 v{T[6]}, v{Yr}")
    e(f"v_add_f32_dpp v{Yr}, v{T[6]}, v{T[6]} row_shr:4 row_mask:0xf bank_mask:0xa")
    e(f"v_add_f32_dpp v{Yr}, v{T[6]}, v{T[6]} row_shl:4 row_mask:0xf bank_mask:0x5")
    e(f"v_add_f32_dpp v{Yr}, v{Yr}, v{Yr} row_ror:8 row_mask:0xf bank_mask:0xf")
    bf16r(Yr)
    e(f"v_lshlrev_b32 v{T[2]}, 16, v{T[2]}")
    e(f"v_add_f32 v{T[2]}, v{T[2]}, v{Yr}")
    bf16r(T[2])
    stamp()
    Zr = ACC
    e(f"s_mul_i32 s{sT0}, s{sR}, 3072")
    e(f"s_add_u32 s{sT0}, s{sT0}, {WS_Z}")
    spin_begin("L_c_spin")
    for i in range(3):
        e(f"buffer_load_dwordx4 v[{Zr+4*i}:{Zr+4*i+3}], v{T[5]}, {srd(SRD_WS)}, s{sT0} offen offset:{1024*i} sc1")
    e("s_waitcnt vmcnt(0)")
    sentinel_check(Zr, 12, T[6])
    spin_end("L_c_spin", "L_c_done")
    for i in range(4):
        e(f"v_add_f32 v{Zr+i}, v{Zr+i}, v{Zr+4+i}")
        e(f"v_add_f32 v{Zr+i}, v{Zr+i}, v{Zr+8+i}")
    y = Zr
    e(f"v_permlane32_swap_b32 v{y}, v{y+2}")
    e(f"v_permlane32_swap_b32 v{y+1}, v{y+3}")
    e(f"v_add_f32 v{y}, v{y}, v{y+2}")
    e(f"v_add_f32 v{y+1}, v{y+1}, v{y+3}")
    e(f"v_permlane16_swap_b32 v{y}, v{y+1}")
    e(f"v_add_f32 v{y}, v{y}, v{y+1}")
    for k in (8, 4, 2):
        e(f"v_add_f32_dpp v{y}, v{y}, v{y} row_ror:{k} row_mask:0xf bank_mask:0xf")
    bf16r(y)
    e(f"v_add_f32 v{y}, v{y}, v{T[2]}")
    e(f"v_cvt_pk_bf16_f32 v{y}, v{y}, v{y}")
    e(f"buffer_store_short v{y}, v{T[1]}, {srd(SRD_OUT)}, 0 offen")
    stamp()
    e("s_branch L_fin")
    A.label("L_mlp"); A.fence()
    nstamp[0] = 6 if stamps else 0
    F1 = RING; F2 = RING + 80; HB = ACC
    e(f"s_mul_i32 s{sT0}, s{sW}, 320")
    e(f"v_lshlrev_b32 v{T[0]}, 3, v{VLANE}")
    e(f"v_add_u32 v{T[0]}, s{sT0}, v{T[0]}")
    e(f"v_cmp_gt_u32 vcc, 40, v{VLANE}")
    e(f"v_mov_b32 v{T[1]}, {WS_SIZE}")
    e(f"v_cndmask_b32 v{T[0]}, v{T[1]}, v{T[0]}, vcc")
    e(f"buffer_load_dwordx2 v[{T[14]}:{T[15]}], v{T[0]}, {srd(SRD_X)}, 0 offen")
    e(f"v_lshlrev_b32 v{T[13]}, 1, v{T[0]}")
    e(f"s_cmp_ge_u32 s{sW}, 4")
    e("s_cbranch_scc1 L_mlp_poll")
    e(f"v_lshlrev_b32 v{T[0]}, 4, v{VLANE}")
    for ks in range(20):
        e(f"ds_read_b128 v[{F1+4*ks}:{F1+4*ks+3}], v{T[0]} offset:{L_W + ks*1024}")
        if ks % 8 == 7: e("s_waitcnt lgkmcnt(4)")
    i_, g4 = T[1], T[2]
    e(f"v_and_b32 v{i_}, 15, v{VLANE}")
    e(f"v_lshrrev_b32 v{g4}, 4, v{VLANE}")
    e(f"v_lshrrev_b32 v{T[3]}, 1, v{g4}")
    e(f"v_lshlrev_b32 v{T[3]}, 8, v{T[3]}")
    e(f"v_lshl_add_u32 v{T[3]}, v{i_}, 4, v{T[3]}")
    e(f"v_and_b32 v{T[4]}, 1, v{g4}")
    e(f"v_lshl_add_u32 v{T[3]}, v{T[4]}, 3, v{T[3]}")
    e(f"s_mul_i32 s{sT0}, s{sW}, 5120")
    e(f"v_add_u32 v{T[3]}, s{sT0}, v{T[3]}")
    e("s_waitcnt lgkmcnt(4)")
    for tt in range(10):
        e(f"ds_read_b64 v[{F2+2*tt}:{F2+2*tt+1}], v{T[3]} offset:{L_W2 + tt*512}")
    VLW, VLR, VZA = SP[5], SP[6], SP[7]
    e(f"s_mul_i32 s{sT0}, s{sW}, 2560")
    e(f"s_add_u32 s{sT0}, s{sT0}, {L_LN}")
    e(f"v_mul_u32_u24 v{VLW}, 40, v{VLANE}")
    e(f"v_add_u32 v{VLW}, s{sT0}, v{VLW}")
    e(f"v_and_b32 v{T[4]}, 1, v{i_}")
    e(f"v_mul_u32_u24 v{VLR}, 1280, v{T[4]}")
    e(f"v_lshl_add_u32 v{VLR}, v{g4}, 4, v{VLR}")
    e(f"v_add_u32 v{VLR}, s{sT0}, v{VLR}")
    e(f"v_mul_u32_u24 v{VZA}, 80, v{i_}")
    e(f"v_lshrrev_b32 v{T[4]}, 1, v{g4}")
    e(f"v_add_u32 v{VZA}, v{VZA}, v{T[4]}")
    e(f"s_mul_i32 s{sT0}, s{sW}, 20")
    e(f"v_add_u32 v{VZA}, s{sT0}, v{VZA}")
    e(f"v_mul_u32_u24 v{VZA}, 3072, v{VZA}")
    e(f"v_and_b32 v{T[4]}, 1, v{g4}")
    e(f"v_lshl_add_u32 v{VZA}, v{T[4]}, 4, v{VZA}")
    e(f"s_lshl_b32 s{sT0}, s{sF0}, 1")
    e(f"s_add_u32 s{sT0}, s{sT0}, {WS_Z}")
    e(f"v_add_u32 v{VZA}, s{sT0}, v{VZA}")
    e(f"v_cmp_lt_u32 vcc, 1, v{i_}")
    e(f"v_mov_b32 v{T[4]}, {WS_SIZE}")
    e(f"v_cndmask_b32 v{VZA}, v{VZA}, v{T[4]}, vcc")
    e(f"v_mul_u32_u24 v{SP[3]}, 80, v{VLANE}")
    A.label("L_mlp_poll"); A.fence()
    YB = SC
    spin_begin("L_h_spin")
    for x in range(8):
        e(f"s_mov_b32 s{sT0}, {WS_Y + 5120*x}")
        e(f"buffer_load_dwordx4 v[{YB+4*x}:{YB+4*x+3}], v{T[13]}, {srd(SRD_WS)}, s{sT0} offen sc1")
    e("s_waitcnt vmcnt(0)")
    sentinel_check(YB, 32, T[6])
    spin_end("L_h_spin", "L_h_done")
    stamp()
    for st in (1, 2, 4):
        for x in range(0, 8, 2*st):
            for i in range(0, 4, 2):
                a, b_ = YB+4*x+i, YB+4*(x+st)+i
                e(f"v_pk_add_f32 v[{a}:{a+1}], v[{a}:{a+1}], v[{b_}:{b_+1}]")
    e(f"v_cvt_pk_bf16_f32 v{YB+4}, v{YB}, v{YB+1}")
    e(f"v_cvt_pk_bf16_f32 v{YB+5}, v{YB+2}, v{YB+3}")
    for i in range(2):
        e(f"v_lshlrev_b32 v{YB+2*i}, 16, v{YB+4+i}")
        e(f"v_and_b32 v{YB+2*i+1}, s{sMASK}, v{YB+4+i}")
        e(f"v_lshlrev_b32 v{YB+8+2*i}, 16, v{T[14+i]}")
        e(f"v_and_b32 v{YB+8+2*i+1}, s{sMASK}, v{T[14+i]}")
    for i in range(0, 4, 2):
        e(f"v_pk_add_f32 v[{YB+i}:{YB+i+1}], v[{YB+i}:{YB+i+1}], v[{YB+8+i}:{YB+8+i+1}]")
    e(f"v_cvt_pk_bf16_f32 v{YB+4}, v{YB}, v{YB+1}")
    e(f"v_cvt_pk_bf16_f32 v{YB+5}, v{YB+2}, v{YB+3}")
    for i in range(2):
        e(f"v_lshlrev_b32 v{YB+2*i}, 16, v{YB+4+i}")
        e(f"v_and_b32 v{YB+2*i+1}, s{sMASK}, v{YB+4+i}")
    e(f"v_cmp_gt_u32 vcc, 40, v{VLANE}")
    e(f"s_and_saveexec_b64 s[{sT2}:{sT3}], vcc")
    e(f"ds_write_b128 v{T[13]}, v[{YB}:{YB+3}] offset:{L_H}")
    e("s_mov_b64 exec, -1")
    e("s_waitcnt lgkmcnt(0)")
    e("s_barrier")
    e(f"s_cmp_ge_u32 s{sW}, 4")
    e("s_cbranch_scc1 L_end")
    for i in range(5):
        e(f"ds_read_b128 v[{HB+4*i}:{HB+4*i+3}], v{SP[3]} offset:{L_H + 16*i}")
    e("s_waitcnt lgkmcnt(0)")
    s_, t_, q_ = T[0], T[1], T[2]
    e(f"v_pk_add_f32 v[{T[4]}:{T[5]}], v[{HB}:{HB+1}], v[{HB+2}:{HB+3}]")
    for i in range(4, 20, 2): e(f"v_pk_add_f32 v[{T[4]}:{T[5]}], v[{T[4]}:{T[5]}], v[{HB+i}:{HB+i+1}]")
    e(f"v_add_f32 v{s_}, v{T[4]}, v{T[5]}")
    wave_reduce(s_, "add_f32", t_, n=32)
    e(f"v_mul_f32 v{s_}, {hex(f32(-1.0/640))}, v{s_}")
    for i in range(0, 20, 2):
        e(f"v_pk_add_f32 v[{T[6]}:{T[7]}], v[{HB+i}:{HB+i+1}], v[{s_}:{s_+1}] op_sel_hi:[1,0]")
        if i == 0: e(f"v_pk_mul_f32 v[{T[4]}:{T[5]}], v[{T[6]}:{T[7]}], v[{T[6]}:{T[7]}]")
        else: e(f"v_pk_fma_f32 v[{T[4]}:{T[5]}], v[{T[6]}:{T[7]}], v[{T[6]}:{T[7]}], v[{T[4]}:{T[5]}]")
    e(f"v_add_f32 v{q_}, v{T[4]}, v{T[5]}")
    wave_reduce(q_, "add_f32", T[3], n=32)
    e(f"v_mul_f32 v{q_}, {hex(f32(1.0/640))}, v{q_}")
    bf16r(s_); bf16r(q_)
    e(f"v_add_f32 v{q_}, {hex(f32(1e-5))}, v{q_}")
    bf16r(q_)
    e(f"v_sqrt_f32 v{q_}, v{q_}")
    bf16r(q_)
    e(f"v_rcp_f32 v{q_}, v{q_}")
    for i in range(0, 20, 2):
        a = HB + i
        e(f"v_pk_add_f32 v[{a}:{a+1}], v[{a}:{a+1}], v[{s_}:{s_+1}] op_sel_hi:[1,0]")
        e(f"v_cvt_pk_bf16_f32 v{a+1}, v{a}, v{a+1}")
        e(f"v_lshlrev_b32 v{a}, 16, v{a+1}")
        e(f"v_and_b32 v{a+1}, s{sMASK}, v{a+1}")
        e(f"v_pk_mul_f32 v[{a}:{a+1}], v[{a}:{a+1}], v[{q_}:{q_+1}] op_sel_hi:[1,0]")
        e(f"v_cvt_pk_bf16_f32 v{Q + i//2}, v{a}, v{a+1}")
    for i in range(5):
        e(f"ds_write_b64 v{VLW}, v[{Q+2*i}:{Q+2*i+1}] offset:{8*i}")
    e("s_waitcnt lgkmcnt(0)")
    bregs = [SC + 4*i for i in range(8)] + [ACC + 4*i for i in range(6)] + [RING + 100 + 4*i for i in range(6)]
    for ks in range(15):
        e(f"ds_read_b128 v[{bregs[ks]}:{bregs[ks]+3}], v{VLR} offset:{64*ks}")
    D = T[8]
    for ks in range(20):
        issued = min(20, 15 + ks)
        e(f"s_waitcnt lgkmcnt({issued - ks - 1})")
        c = "0" if ks == 0 else f"v[{D}:{D+3}]"
        e(f"v_mfma_f32_16x16x32_bf16 v[{D}:{D+3}], v[{F1+4*ks}:{F1+4*ks+3}], v[{bregs[ks]}:{bregs[ks]+3}], {c}")
        if 15 + ks < 20:
            k2 = 15 + ks
            e(f"ds_read_b128 v[{bregs[k2]}:{bregs[k2]+3}], v{VLR} offset:{64*k2}")
    for i in range(4): bf16r(D+i)
    for i in range(4): e(f"v_mul_f32 v{T[i]}, {hex(f32(-1.4426950408889634))}, v{D+i}")
    for i in range(4): e(f"v_exp_f32 v{T[i]}, v{T[i]}")
    for i in range(4): e(f"v_add_f32 v{T[i]}, 1.0, v{T[i]}")
    for i in range(4): e(f"v_rcp_f32 v{T[i]}, v{T[i]}")
    for i in range(4): e(f"v_mul_f32 v{D+i}, v{D+i}, v{T[i]}")
    e(f"v_cvt_pk_bf16_f32 v{T[4]}, v{D}, v{D+1}")
    e(f"v_cvt_pk_bf16_f32 v{T[5]}, v{D+2}, v{D+3}")
    ZD = F1
    for tt in range(10):
        e(f"v_mfma_f32_16x16x16_bf16 v[{ZD+4*tt}:{ZD+4*tt+3}], v[{F2+2*tt}:{F2+2*tt+1}], v[{T[4]}:{T[5]}], 0")
    for tt in range(10):
        for i in range(4): e(f"v_min_u32 v{ZD+4*tt+i}, -2, v{ZD+4*tt+i}")
        if tt: e(f"s_mov_b32 s{sT0}, {tt*6144}")
        so = f"s{sT0}" if tt else "0"
        e(f"buffer_store_dwordx4 v[{ZD+4*tt}:{ZD+4*tt+3}], v{VZA}, {srd(SRD_WS)}, {so} offen sc1")
    stamp()
    if stamps:
        e(f"s_cmp_lg_u32 s{sW}, 0")
        e("s_cbranch_scc1 L_end")
        e(f"s_mov_b64 s[{sST+16}:{sST+17}], 0")
    A.label("L_fin"); A.fence()
    if stamps:
        e("s_waitcnt lgkmcnt(0)")
        e(f"s_lshl_b32 s{sT0}, s2, 7")
        e(f"s_add_u32 s{sT0}, s{sT0}, {WS_STAMP}")
        e(f"v_mov_b32 v{T[0]}, 0")
        e("s_mov_b64 exec, 1")
        for i in range(9):
            e(f"v_mov_b32 v{T[2]}, s{sST+2*i}")
            e(f"v_mov_b32 v{T[3]}, s{sST+2*i+1}")
            e(f"buffer_store_dwordx2 v[{T[2]}:{T[3]}], v{T[0]}, {srd(SRD_WS)}, s{sT0} offen offset:{8*i}")
            e("s_nop 1")
    A.label("L_end")
    A.raw("    s_endpgm")
    A.raw(f""".section .rodata,"a"
.p2align 6
.amdhsa_kernel {NAME}
  .amdhsa_next_free_vgpr 256
  .amdhsa_next_free_sgpr 102
  .amdhsa_accum_offset 256
  .amdhsa_group_segment_fixed_size 0
  .amdhsa_kernarg_size 88
  .amdhsa_user_sgpr_count 2
  .amdhsa_user_sgpr_kernarg_segment_ptr 1
  .amdhsa_system_sgpr_workgroup_id_x 1
  .amdhsa_float_denorm_mode_32 3
.end_amdhsa_kernel""")
    return A.text()

if __name__ == "__main__":
    out = sys.argv[1] if len(sys.argv) > 1 else "sequential_preLN__mha_block_cached__dense_activation_silu__decode.s"
    kw = eval("dict(%s)" % sys.argv[2]) if len(sys.argv) > 2 else {}
    open(out, "w").write(gen(**kw))
```

```python
import sys, struct, os
from asmlib import Asm

NAME = "sequential_preLN__mha_block_cached__dense_activation_silu__decode_kernel"
HEADER = open(os.path.join(os.path.dirname(os.path.abspath(__file__)), "header.txt")).read()
def f32(x): return struct.unpack('<I', struct.pack('<f', x))[0]

WS_PART = 0x000000
WS_Y    = 0x040000
WS_Z    = 0x070000
WS_FB   = 0x0F0000
WS_IN   = 0x100000
WS_STAMP= 0x300000
WS_SIZE = 0x400000
L_CTL  = 0
L_QS   = 64
L_RED  = 512
L_RQ   = 4096
L_OB   = 17408
L_YR   = 20480
L_H    = 21504
L_LN   = 26624
L_DX   = 29184
L_W    = 29696
L_PF   = L_W + 4*12288
LDS_BYTES = L_PF + 4*18*1024
KVBYTES = 2*32*8192*384
OOB = WS_SIZE

def gen(depths=(5,6,7,9), thr=(-60,20,100), cp=18, fb=True, init=1, fbdelay=8, nl=18, stamps=False, spin_limit=1 << 20, kvflags="nt", wflags="nt", sleep=1, dry=True, tstart=64, wdelay=200, indelay=12, insleep=6, prog=False):
    stamps = stamps or prog
    A = Asm(); e = A.e
    A.raw(HEADER.rstrip('\n'))
    A.raw(f"; @launch grid=(256,1,1) block=(512,1,1) lds={LDS_BYTES}")
    A.raw('.amdgcn_target "amdgcn-amd-amdhsa--gfx950"\n.text\n.globl %s\n.p2align 8\n.type %s,@function\n%s:' % (NAME, NAME, NAME))
    VLANE, VKV, VZERO = 1, 2, 3
    T = list(range(4, 20))
    VG, VC, VMW, VLW_ = 20, 21, 22, 23
    SRD_X, SRD_K, SRD_V, SRD_WQ, SRD_WA, SRD_OUT, SRD_DBG, SRD_WS, SRD_WB = 28, 32, 36, 40, 44, 48, 52, 56, 96
    sW, sH, sB, sSPL, sMEM, sKVB, sOFF = 60, 61, 62, 63, 64, 65, 66
    sMASK, sR, sRS, sT0, sT1, sT2, sT3, sSPIN, sF0 = 67, 68, 69, 70, 71, 72, 73, 74, 75
    sPLO, sPHI, sXG, sCS = 76, 77, 78, 79
    sLID, sDRY, sOOB, sLIM = 3, 26, 27, 100
    sLVL, sNOW, sPREV, sLAG = 101, 20, 22, 23
    depth = depths[init]; DMAX = depths[-1]
    sST = 80
    def srd(s): return f"s[{s}:{s+3}]"
    nstamp = [0]
    def stamp(p=False):
        if not stamps: return
        if prog and not p and nstamp[0] > 0: return
        i = nstamp[0]; nstamp[0] += 1
        assert i < 8, i
        e(f"s_memrealtime s[{sST+2*i}:{sST+2*i+1}]")
    LOG2E = hex(f32(1.4426950408889634))
    SCALE = hex(f32(192 ** -0.5))
    e("s_cmp_ge_u32 s2, 256")
    e("s_cbranch_scc1 L_end")
    e("s_load_dwordx16 s[4:19], s[0:1], 0")
    e("s_load_dwordx4 s[20:23], s[0:1], 64")
    e("s_load_dwordx2 s[24:25], s[0:1], 80")
    if stamps:
        for i in range(1, 8): e(f"s_mov_b64 s[{sST+2*i}:{sST+2*i+1}], 0")
    stamp()
    e(f"v_lshrrev_b32 v{T[0]}, 6, v0")
    e(f"v_and_b32 v{VLANE}, 63, v0")
    e(f"v_readfirstlane_b32 s{sW}, v{T[0]}")
    e(f"v_lshrrev_b32 v{VG}, 3, v{VLANE}")
    e(f"v_and_b32 v{VC}, 7, v{VLANE}")
    e(f"v_mov_b32 v{VZERO}, 0")
    e(f"v_lshlrev_b32 v{T[1]}, 3, v{VLANE}")
    e(f"v_cmp_gt_u32 vcc, 2, v{VLANE}")
    e(f"v_mov_b32 v{T[2]}, -1")
    e(f"v_cndmask_b32 v{T[2]}, v{T[2]}, v{VZERO}, vcc")
    e(f"v_mov_b32 v{T[3]}, v{T[2]}")
    e(f"ds_write_b64 v{T[1]}, v[{T[2]}:{T[3]}]")
    e(f"s_and_b32 s{sXG}, s2, 7")
    e(f"s_lshr_b32 s{sT1}, s2, 3")
    e(f"s_lshr_b32 s{sT2}, s{sT1}, 3")
    e(f"s_lshl_b32 s{sH}, s{sXG}, 2")
    e(f"s_add_u32 s{sH}, s{sH}, s{sT2}")
    e(f"s_and_b32 s{sMEM}, s{sT1}, 7")
    e(f"s_lshr_b32 s{sB}, s{sMEM}, 2")
    e(f"s_and_b32 s{sSPL}, s{sMEM}, 3")
    e(f"s_mul_i32 s{sCS}, s{sT2}, 5")
    e(f"s_add_u32 s{sCS}, s{sCS}, s{sMEM}")
    e(f"s_lshl_b32 s{sLID}, s{sH}, 3")
    e(f"s_add_u32 s{sLID}, s{sLID}, s{sMEM}")
    e(f"s_mov_b32 s{sMASK}, 0xffff0000")
    e(f"s_mov_b32 s{sLIM}, {spin_limit}")
    e(f"s_mov_b32 s{sDRY}, 0")
    e(f"s_mov_b32 s{sOOB}, 0")
    e(f"s_lshl_b32 s{sT0}, s{sB}, 5")
    e(f"s_add_u32 s{sT0}, s{sT0}, s{sH}")
    e(f"s_mul_i32 s{sKVB}, s{sT0}, 3145728")
    e(f"s_mul_i32 s{sT0}, s{sSPL}, 12288")
    e(f"s_add_u32 s{sKVB}, s{sKVB}, s{sT0}")
    e(f"s_and_b32 s{sT0}, s{sW}, 3")
    e(f"s_mul_i32 s{sT0}, s{sT0}, 3072")
    e(f"s_add_u32 s{sKVB}, s{sKVB}, s{sT0}")
    e(f"v_mul_u32_u24 v{VKV}, 384, v{VG}")
    e(f"v_lshl_add_u32 v{VKV}, v{VC}, 4, v{VKV}")
    e("s_waitcnt lgkmcnt(0)")
    def mk(s, p, size):
        e(f"s_mov_b32 s{s}, s{p}"); e(f"s_mov_b32 s{s+1}, s{p+1}"); e(f"s_mov_b32 s{s+2}, {size}"); e(f"s_mov_b32 s{s+3}, 0x20000")
    mk(SRD_K, 6, KVBYTES); mk(SRD_X, 4, 2560); mk(SRD_WQ, 10, 640*6144*2); mk(SRD_WS, 24, WS_SIZE)
    mk(SRD_V, 8, KVBYTES); mk(SRD_OUT, 20, 2560); mk(SRD_DBG, 22, 256)
    e(f"s_cmp_lt_u32 s{sMEM}, 5")
    e(f"s_cselect_b32 s{SRD_WA}, s12, s16"); e(f"s_cselect_b32 s{SRD_WA+1}, s13, s17")
    e(f"s_cselect_b32 s{SRD_WB}, s12, s18"); e(f"s_cselect_b32 s{SRD_WB+1}, s13, s19")
    e(f"s_mov_b32 s{SRD_WA+2}, {640*1536*2}")
    e(f"s_cselect_b32 s{SRD_WA+2}, {6144*640*2}, s{SRD_WA+2}")
    e(f"s_mov_b32 s{SRD_WB+2}, s{SRD_WA+2}")
    e(f"s_mov_b32 s{SRD_WA+3}, 0x20000"); e(f"s_mov_b32 s{SRD_WB+3}, 0x20000")
    e(f"s_cmp_lt_u32 s{sW}, 4")
    e("s_cbranch_scc1 L_helper")

    def wave_reduce(v, op, tmp, n=64):
        for ctl in ("quad_perm:[1,0,3,2]", "quad_perm:[2,3,0,1]", "row_half_mirror", "row_mirror"):
            e(f"v_{op}_dpp v{v}, v{v}, v{v} {ctl} row_mask:0xf bank_mask:0xf")
        e(f"v_mov_b32 v{tmp}, v{v}")
        e(f"v_permlane16_swap_b32 v{v}, v{tmp}")
        e(f"v_{op} v{v}, v{v}, v{tmp}")
        if n == 64:
            e(f"v_mov_b32 v{tmp}, v{v}")
            e(f"v_permlane32_swap_b32 v{v}, v{tmp}")
            e(f"v_{op} v{v}, v{v}, v{tmp}")
    def group_reduce(v, op, tmp):
        e(f"v_{op}_dpp v{v}, v{v}, v{v} row_ror:8 row_mask:0xf bank_mask:0xf")
        e(f"v_mov_b32 v{tmp}, v{v}")
        e(f"v_permlane16_swap_b32 v{v}, v{tmp}")
        e(f"v_{op} v{v}, v{v}, v{tmp}")
        e(f"v_mov_b32 v{tmp}, v{v}")
        e(f"v_permlane32_swap_b32 v{v}, v{tmp}")
        e(f"v_{op} v{v}, v{v}, v{tmp}")
    def bf16r(v):
        e(f"v_cvt_pk_bf16_f32 v{v}, v{v}, v{v}")
        e(f"v_lshlrev_b32 v{v}, 16, v{v}")
    def spin_begin(lbl):
        e(f"s_mov_b32 s{sSPIN}, 0")
        A.label(lbl); A.fence()
    def spin_end(lbl, done_lbl, slp=None):
        slp = sleep if slp is None else slp
        e(f"s_cbranch_vccz {done_lbl}")
        e(f"s_add_u32 s{sSPIN}, s{sSPIN}, 1")
        e(f"s_cmp_ge_u32 s{sSPIN}, s{sLIM}")
        e(f"s_cbranch_scc1 {done_lbl}")
        if slp: e(f"s_sleep {slp}")
        e(f"s_branch {lbl}")
        A.label(done_lbl); A.fence()
    def sentinel_check(regs, tmp):
        n = len(regs)
        e(f"v_max3_u32 v{tmp}, v{regs[0]}, v{regs[1]}, v{regs[2]}")
        i = 3
        while i + 1 < n:
            e(f"v_max3_u32 v{tmp}, v{tmp}, v{regs[i]}, v{regs[i+1]}"); i += 2
        if i < n: e(f"v_max_u32 v{tmp}, v{tmp}, v{regs[i]}")
        e(f"v_cmp_eq_u32 vcc, -1, v{tmp}")
    def rng(a, n): return list(range(a, a+n))
    def ln_stats(HBx):
        s_, t_, q_ = T[0], T[1], T[2]
        e(f"v_pk_add_f32 v[{T[4]}:{T[5]}], v[{HBx}:{HBx+1}], v[{HBx+2}:{HBx+3}]")
        for i in range(4, 20, 2): e(f"v_pk_add_f32 v[{T[4]}:{T[5]}], v[{T[4]}:{T[5]}], v[{HBx+i}:{HBx+i+1}]")
        e(f"v_add_f32 v{s_}, v{T[4]}, v{T[5]}")
        wave_reduce(s_, "add_f32", t_, n=32)
        e(f"v_mul_f32 v{s_}, {hex(f32(-1.0/640))}, v{s_}")
        for i in range(0, 20, 2):
            e(f"v_pk_add_f32 v[{T[6]}:{T[7]}], v[{HBx+i}:{HBx+i+1}], v[{s_}:{s_+1}] op_sel_hi:[1,0]")
            if i == 0: e(f"v_pk_mul_f32 v[{T[4]}:{T[5]}], v[{T[6]}:{T[7]}], v[{T[6]}:{T[7]}]")
            else: e(f"v_pk_fma_f32 v[{T[4]}:{T[5]}], v[{T[6]}:{T[7]}], v[{T[6]}:{T[7]}], v[{T[4]}:{T[5]}]")
        e(f"v_add_f32 v{q_}, v{T[4]}, v{T[5]}")
        wave_reduce(q_, "add_f32", T[3], n=32)
        e(f"v_mul_f32 v{q_}, {hex(f32(1.0/640))}, v{q_}")
        bf16r(s_); bf16r(q_)
        e(f"v_add_f32 v{q_}, {hex(f32(1e-5))}, v{q_}")
        bf16r(q_)
        e(f"v_sqrt_f32 v{q_}, v{q_}")
        bf16r(q_)
        e(f"v_rcp_f32 v{q_}, v{q_}")
        e(f"v_mov_b32 v{T[1]}, v{T[0]}")
        e(f"v_mov_b32 v{T[3]}, v{T[2]}")
        e(f"v_permlane32_swap_b32 v{T[0]}, v{T[1]}")
        e(f"v_permlane32_swap_b32 v{T[2]}, v{T[3]}")
    def norm_pair(a, b_, dst=None):
        sel = "op_sel_hi:[1,0]" if b_ == 0 else "op_sel:[0,1] op_sel_hi:[1,1]"
        e(f"v_pk_add_f32 v[{a}:{a+1}], v[{a}:{a+1}], v[{T[0]}:{T[1]}] {sel}")
        e(f"v_cvt_pk_bf16_f32 v{a+1}, v{a}, v{a+1}")
        e(f"v_lshlrev_b32 v{a}, 16, v{a+1}")
        e(f"v_and_b32 v{a+1}, s{sMASK}, v{a+1}")
        e(f"v_pk_mul_f32 v[{a}:{a+1}], v[{a}:{a+1}], v[{T[2]}:{T[3]}] {sel}")
        if dst is not None:
            e(f"v_cvt_pk_bf16_f32 v{dst}, v{a}, v{a+1}")
        else:
            e(f"v_cvt_pk_bf16_f32 v{a+1}, v{a}, v{a+1}")
            e(f"v_lshlrev_b32 v{a}, 16, v{a+1}")
            e(f"v_and_b32 v{a+1}, s{sMASK}, v{a+1}")
    def write_stamps(slot):
        e("s_waitcnt lgkmcnt(0)")
        e(f"s_lshl_b32 s{sT0}, s2, 7")
        e(f"s_add_u32 s{sT0}, s{sT0}, {WS_STAMP + slot*64}")
        e("s_mov_b64 exec, 1")
        for i in range(8):
            e(f"v_mov_b32 v{T[2]}, s{sST+2*i}")
            e(f"v_mov_b32 v{T[3]}, s{sST+2*i+1}")
            e(f"buffer_store_dwordx2 v[{T[2]}:{T[3]}], v{VZERO}, {srd(SRD_WS)}, s{sT0} offen offset:{8*i}")
            e("s_nop 1")

    Q = 24; ACC = 36; SC = 60; RING = 124; VRED = 252
    NT = 64
    slots = [RING + 4*i for i in range(32)]
    early = [ACC + 4*i for i in range(6)] + [SC + 24 + 4*i for i in range(10)]
    KL = [('K', t, j) for t in range(NT) for j in range(3)]
    VL = [('V', t, j) for t in range(NT) for j in range(3)]
    order = KL + VL
    free = early + slots
    slot = {}; tick = {}; m = [0]; last_off = [None]; landed = [0]
    A.vm_issued = 0
    NREG = len(free); npre = NREG + nl
    assert NREG % 3 == 0 and nl % 3 == 0 and nl <= 18
    inlds = {}
    def issue_one():
        L = order[m[0]]; m[0] += 1
        kind, t, j = L
        if NREG <= m[0] - 1 < npre:
            k = m[0] - 1 - NREG
            inlds[L] = k
            e(f"s_add_u32 s{sOFF}, s{sKVB}, {t*49152 + j*128}"); last_off[0] = None
            e(f"s_add_u32 m0, s{sF0}, {k*1024}")
            tick[L] = e(f"buffer_load_dwordx4 v{VKV}, {srd(SRD_K)}, s{sOFF} offen {kvflags} lds")
            return
        r = free.pop(0); slot[L] = r
        if last_off[0] != (kind, t):
            e(f"s_add_u32 s{sOFF}, s{sKVB}, {t*49152}"); last_off[0] = (kind, t)
        sr = SRD_K if kind == 'K' else SRD_V
        tick[L] = e(f"buffer_load_dwordx4 v[{r}:{r+3}], v{VKV}, {srd(sr)}, s{sOFF} offen offset:{j*128} {kvflags}")
    def can_issue(): return m[0] < len(order) and (len(free) > 3 or m[0] < npre)
    def wait_for(L):
        while L not in tick: issue_one()
        if tick[L] > landed[0]:
            A.wait_vm(tick[L]); landed[0] = tick[L]
    nthr = [0]
    def pump(d=None):
        if not can_issue(): return
        infl = A.vm_issued - landed[0]
        if infl >= depths[0]:
            if infl >= DMAX:
                tk = A.vm_issued - (DMAX - 1)
                A.wait_vm(tk); landed[0] = tk
            if fb:
                nthr[0] += 1; lbl = f"L_go{nthr[0]}"
                for lv in (3, 2, 1):
                    e(f"s_cmp_ge_u32 s{sLVL}, {lv}")
                    e(f"s_cbranch_scc1 {lbl}")
                    e(f"s_waitcnt vmcnt({depths[lv-1]-1})")
                for I_ in A.hist[-7:]: I_.states = 0
                A.label(lbl)
            elif A.vm_issued - landed[0] >= depth:
                tk = A.vm_issued - (depth - 1)
                A.wait_vm(tk); landed[0] = tk
        issue_one()
    def release(L):
        if slot[L] >= RING: free.append(slot[L])
    for _ in range(depth): issue_one()
    e("s_barrier")
    e(f"s_and_b32 s{sT0}, s{sW}, 3")
    e(f"s_mul_i32 s{sF0}, s{sT0}, {18*1024}")
    e(f"s_add_u32 s{sF0}, s{sF0}, {L_PF}")
    e(f"v_lshlrev_b32 v254, 4, v{VLANE}")
    e(f"v_add_u32 v254, s{sF0}, v254")
    e(f"s_mov_b32 s{sLVL}, {init}")
    e(f"s_mov_b32 s{sNOW}, 0")
    VRP = 253
    e(f"s_lshr_b32 s{sT0}, s2, 7"); e(f"s_lshl_b32 s{sT0}, s{sT0}, 3"); e(f"s_add_u32 s{sT0}, s{sT0}, s{sXG}"); e(f"s_lshl_b32 s{sT0}, s{sT0}, 2")
    e(f"s_bfe_u32 s{sT1}, s2, 0x40003")
    e(f"s_cmp_eq_u32 s{sT1}, 3"); e(f"s_cselect_b32 s{sT0}, s{sT0}, {OOB}")
    e(f"s_cmp_eq_u32 s{sW}, 4"); e(f"s_cselect_b32 s{sT0}, s{sT0}, {OOB}")
    e(f"v_mov_b32 v{VRP}, s{sT0}")
    e(f"v_mov_b32 v{T[2]}, {OOB}")
    e(f"v_cmp_eq_u32 vcc, 0, v{VLANE}")
    e(f"v_cndmask_b32 v{VRP}, v{T[2]}, v{VRP}, vcc")
    e(f"v_mul_u32_u24 v{VRED}, 96, v{VC}")
    e(f"v_mul_u32_u24 v{T[2]}, 12, v{VG}")
    e(f"v_add_u32 v{VRED}, v{VRED}, v{T[2]}")
    e(f"s_and_b32 s{sT0}, s{sW}, 3")
    e(f"s_mul_i32 s{sRS}, s{sT0}, 832")
    e(f"v_add_u32 v{VRED}, s{sRS}, v{VRED}")
    e(f"v_lshlrev_b32 v{T[0]}, 4, v{VC}")
    for _ in range(npre - depth): pump()
    spin_begin("L_ql_spin")
    for j in range(3):
        e(f"ds_read_b128 v[{Q+4*j}:{Q+4*j+3}], v{T[0]} offset:{L_QS + 128*j}")
    e("s_waitcnt lgkmcnt(0)")
    sentinel_check(rng(Q, 12), T[1])
    spin_end("L_ql_spin", "L_ql_done")
    stamp()
    ncons = [0]
    fbs = dict(ncp=0, due1=None, due=None)
    LOOK = DMAX if fb else depth
    def step(L):
        ncons[0] += 1
        n = ncons[0]
        ahead = m[0] - order.index(L)
        if ahead > LOOK:
            if n % 3 == 0: pump()
        else:
            while can_issue() and m[0] - order.index(L) <= LOOK: pump()
        wait_for(L)
    def feedback():
        if not fb: return
        n = ncons[0]
        if fbs['due1'] == n:
            e("s_waitcnt lgkmcnt(0)")
            e(f"v_mov_b32 v254, s{sNOW}")
            e(f"s_mov_b32 s{sT0}, {WS_FB + fbs['ncp']*128}")
            e(f"buffer_store_dword v254, v{VRP}, {srd(SRD_WS)}, s{sT0} offen sc1")
            if fbs['ncp'] > 1:
                e(f"s_load_dwordx16 s[4:19], s[24:25], {WS_FB + (fbs['ncp']-1)*128}")
                e(f"ds_read_b32 v255, v{VZERO} offset:{L_CTL+8}")
                fbs['due'] = n + fbdelay
        if fbs['due'] == n:
            e("s_waitcnt lgkmcnt(0)")
            e(f"v_readfirstlane_b32 s{sT1}, v255")
            e(f"s_mov_b32 s{sLAG}, 0")
            for i in range(16):
                e(f"s_min_u32 s{4+i}, s{4+i}, s{sNOW}")
                e(f"s_sub_u32 s{4+i}, s{sPREV}, s{4+i}")
                e(f"s_add_u32 s{sLAG}, s{sLAG}, s{4+i}")
            e(f"s_ashr_i32 s{sLAG}, s{sLAG}, 4")
            e(f"s_mov_b32 s{sT0}, 0")
            for lv, th in enumerate(thr):
                e(f"s_cmp_ge_i32 s{sLAG}, {th}"); e(f"s_cselect_b32 s{sT0}, {lv+1}, s{sT0}")
            e(f"s_cmp_lg_u32 s{sT1}, 0")
            e(f"s_cselect_b32 s{sLVL}, s{sT0}, s{sLVL}")
        if n >= 84 and n % cp == cp - 1 and n + 2*DMAX + 12 < len(order):
            fbs['ncp'] += 1
            assert fbs['ncp'] < 32
            e(f"s_mov_b32 s{sPREV}, s{sNOW}")
            e(f"s_memrealtime s[{sNOW}:{sNOW+1}]")
            fbs['due1'] = n + 1
    for L in order:
        kind, t, j = L
        if prog and j == 0 and (kind, t) in (('K',24),('K',40),('K',56),('V',8),('V',24),('V',40),('V',56)): stamp(True)
        if kind == 'K':
            if L in inlds and j == 0:
                tl = [('K', t, jj) for jj in range(3)]
                wait_for(tl[2])
                for x in tl:
                    slot[x] = free.pop(0)
                    e(f"ds_read_b128 v[{slot[x]}:{slot[x]+3}], v254 offset:{inlds[x]*1024}")
            step(L)
            if L in inlds: e(f"s_waitcnt lgkmcnt({2-j})")
            r = slot[L]
            for i in range(4):
                c = "0" if i == 0 else f"v{T[j]}"
                e(f"v_dot2_f32_bf16 v{T[j]}, v{r+i}, v{Q+4*j+i}, {c}")
            release(L)
            feedback()
            if j == 2:
                sc = SC + t
                assert all(not (slot[x] <= sc < slot[x]+4) for x in order[order.index(L)+1:] if x in slot), "score reg busy"
                e(f"v_add_f32 v{sc}, v{T[0]}, v{T[1]}")
                e(f"v_add_f32 v{sc}, v{sc}, v{T[2]}")
                for ctl in ("quad_perm:[1,0,3,2]", "quad_perm:[2,3,0,1]", "row_half_mirror"):
                    e(f"v_add_f32_dpp v{sc}, v{sc}, v{sc} {ctl} row_mask:0xf bank_mask:0xf")
                bf16r(sc)
                e(f"v_mul_f32 v{sc}, {SCALE}, v{sc}")
                bf16r(sc)
                if t == 0: e(f"v_mov_b32 v{VMW}, v{sc}")
                else: e(f"v_max_f32 v{VMW}, v{VMW}, v{sc}")
            if t == NT-1 and j == 2:
                stamp()
                group_reduce(VMW, "max_f32", T[1])
                e(f"v_min_u32 v{VMW}, -2, v{VMW}")
                e(f"s_and_b32 s{sT0}, s{sW}, 3")
                e(f"s_lshl_b32 s{sT0}, s{sT0}, 2")
                e(f"v_mov_b32 v{T[1]}, s{sT0}")
                e(f"ds_write_b32 v{T[1]}, v{VMW} offset:{L_CTL+16}")
        else:
            if j == 0 and t <= NT-3:
                sc = SC + t
                e(f"v_sub_f32 v{sc}, v{sc}, v{VMW}")
                e(f"v_mul_f32 v{sc}, {LOG2E}, v{sc}")
                e(f"v_exp_f32 v{sc}, v{sc}")
                if t == 0: e(f"v_mov_b32 v{VLW_}, v{sc}")
                else: e(f"v_add_f32 v{VLW_}, v{VLW_}, v{sc}")
            if t == tstart and j == 0:
                e(f"v_mov_b32 v{T[8]}, 1")
                e(f"ds_write_b32 v{VZERO}, v{T[8]} offset:{L_CTL+12}")
            if t == NT-3 and j == 1:
                for t2 in range(t+1, NT):
                    sc = SC + t2
                    e(f"v_sub_f32 v{sc}, v{sc}, v{VMW}")
                    e(f"v_mul_f32 v{sc}, {LOG2E}, v{sc}")
                    e(f"v_exp_f32 v{sc}, v{sc}")
                    e(f"v_add_f32 v{VLW_}, v{VLW_}, v{sc}")
                group_reduce(VLW_, "add_f32", T[8])
                spin_begin("L_mx_spin")
                e(f"ds_read_b128 v[{T[8]}:{T[11]}], v{VZERO} offset:{L_CTL+16}")
                e(f"ds_read_b32 v{T[12]}, v{VZERO} offset:{L_CTL+8}")
                e("s_waitcnt lgkmcnt(0)")
                e(f"v_subrev_u32 v{T[12]}, 1, v{T[12]}")
                sentinel_check(rng(T[8], 5), T[13])
                spin_end("L_mx_spin", "L_mx_done")
                e(f"v_max3_f32 v{T[13]}, v{T[8]}, v{T[9]}, v{T[10]}")
                e(f"v_max_f32 v{T[13]}, v{T[13]}, v{T[11]}")
                e(f"v_sub_f32 v{VMW}, v{VMW}, v{T[13]}")
                e(f"v_mul_f32 v{VMW}, {LOG2E}, v{VMW}")
                e(f"v_exp_f32 v{VMW}, v{VMW}")
                e(f"s_cmp_eq_u32 s{sW}, 4")
                e(f"s_cselect_b64 s[{sT2}:{sT3}], -1, 0")
                e(f"v_cndmask_b32 v{T[8]}, 0, v{T[13]}, s[{sT2}:{sT3}]")
                e(f"v_mul_f32 v{T[9]}, v{VLW_}, v{VMW}")
                e(f"v_mov_b32 v{T[10]}, 0"); e(f"v_mov_b32 v{T[11]}, 0")
                e(f"v_mov_b32 v{T[12]}, s{sRS}")
                e(f"ds_write_b128 v{T[12]}, v[{T[8]}:{T[11]}] offset:{L_RED+768}")
                e(f"v_lshlrev_b32 v{T[14]}, 4, v{VLANE}")
                e(f"v_cmp_gt_u32 vcc, 49, v{VLANE}")
                e(f"v_mov_b32 v{T[15]}, {OOB}")
                e(f"v_cndmask_b32 v{T[15]}, v{T[15]}, v{T[14]}, vcc")
                e(f"s_lshl_b32 s{sT1}, s{sLID}, 10")
                e(f"v_mov_b32 v{T[13]}, 1")
            step(L)
            r = slot[L]
            for i in range(4):
                lo, hi = T[(2*i) % 8], T[(2*i+1) % 8]
                e(f"v_lshlrev_b32 v{lo}, 16, v{r+i}")
                e(f"v_and_b32 v{hi}, s{sMASK}, v{r+i}")
                k = ACC + 8*j + 2*i
                op = "v_mul_f32" if t == 0 else "v_fmac_f32"
                e(f"{op} v{k}, v{SC+t}, v{lo}"); e(f"{op} v{k+1}, v{SC+t}, v{hi}")
            release(L)
            feedback()
    stamp()
    a = ACC
    for k in range(12): e(f"v_permlane32_swap_b32 v{a+k}, v{a+k+12}")
    for k in range(12): e(f"v_add_f32 v{a+k}, v{a+k}, v{a+k+12}")
    for k in range(6): e(f"v_permlane16_swap_b32 v{a+k}, v{a+k+6}")
    for k in range(6): e(f"v_add_f32 v{a+k}, v{a+k}, v{a+k+6}")
    for k in range(3): e(f"v_add_f32_dpp v{a+12+k}, v{a+k}, v{a+k} row_ror:8 row_mask:0xf bank_mask:0x3")
    for k in range(3): e(f"v_add_f32_dpp v{a+12+k}, v{a+3+k}, v{a+3+k} row_ror:8 row_mask:0xf bank_mask:0xc")
    for k in range(3): e(f"v_mul_f32 v{a+12+k}, v{a+12+k}, v{VMW}")
    for k in range(3): e(f"ds_write_b32 v{VRED}, v{a+12+k} offset:{L_RED+4*k}")
    e("s_mov_b64 exec, 1")
    e(f"ds_add_rtn_u32 v{T[12]}, v{VZERO}, v{T[13]} offset:{L_CTL+4}")
    e("s_mov_b64 exec, -1")
    e("s_waitcnt lgkmcnt(0)")
    e(f"v_readfirstlane_b32 s{sT0}, v{T[12]}")
    e(f"s_cmp_lg_u32 s{sT0}, 3")
    e("s_cbranch_scc1 L_s_done")
    for w in range(4):
        e(f"ds_read_b128 v[{ACC+4*w}:{ACC+4*w+3}], v{T[14]} offset:{L_RED + w*832}")
    e("s_waitcnt lgkmcnt(0)")
    for i in range(4):
        e(f"v_add_f32 v{ACC+i}, v{ACC+i}, v{ACC+4+i}")
        e(f"v_add_f32 v{ACC+8+i}, v{ACC+8+i}, v{ACC+12+i}")
    for i in range(4): e(f"v_add_f32 v{ACC+i}, v{ACC+i}, v{ACC+8+i}")
    for i in range(4): e(f"v_min_u32 v{ACC+i}, -2, v{ACC+i}")
    e(f"buffer_store_dwordx4 v[{ACC}:{ACC+3}], v{T[15]}, {srd(SRD_WS)}, s{sT1} offen sc1")
    if tstart >= NT: e(f"ds_write_b32 v{VZERO}, v{T[13]} offset:{L_CTL+12}")
    if stamps:
        stamp()
        write_stamps(0)
    A.label("L_s_done"); A.fence()
    e("s_endpgm")

    A.label("L_helper"); A.fence()
    nstamp[0] = 1
    e("s_setprio 3")
    e(f"s_mov_b32 s{sPLO}, 0x05040100")
    e(f"s_mov_b32 s{sPHI}, 0x07060302")
    e(f"s_mul_i32 s{sR}, s{sH}, 5")
    e(f"s_add_u32 s{sR}, s{sR}, s{sMEM}")
    e(f"s_mul_i32 s{sF0}, s{sH}, 3")
    e(f"s_add_u32 s{sF0}, s{sF0}, s{sMEM}")
    e(f"s_sub_u32 s{sF0}, s{sF0}, 5")
    e(f"s_lshl_b32 s{sF0}, s{sF0}, 4")
    VL16 = 24; VYA = 25; VA = [26, 27, 28, 29, 30, 31]
    XS = 32
    XO = 42
    HB = 52
    LNV = 72
    QA = 92
    WQB = 108
    r_, c_ = T[0], T[1]
    e(f"v_cmp_le_u32 vcc, 24, v{VLANE}")
    e(f"v_cndmask_b32 v{r_}, 0, 1, vcc")
    e(f"v_mul_u32_u24 v{c_}, 24, v{r_}")
    e(f"v_sub_u32 v{c_}, v{VLANE}, v{c_}")
    e(f"s_mul_i32 s{sT0}, s{sMEM}, 80")
    e(f"s_mul_i32 s{sT1}, s{sW}, 20")
    e(f"s_add_u32 s{sT0}, s{sT0}, s{sT1}")
    e(f"v_mul_u32_u24 v{T[2]}, 10, v{r_}")
    e(f"v_add_u32 v{T[2]}, s{sT0}, v{T[2]}")
    e(f"v_lshlrev_b32 v{VA[0]}, 1, v{T[2]}")
    e(f"v_mul_u32_u24 v{VA[1]}, 40, v{VLANE}")
    e(f"buffer_load_dwordx4 v[{XS}:{XS+3}], v{VA[1]}, {srd(SRD_X)}, 0 offen")
    e(f"buffer_load_dwordx4 v[{XS+4}:{XS+7}], v{VA[1]}, {srd(SRD_X)}, 0 offen offset:16")
    e(f"buffer_load_dwordx2 v[{XS+8}:{XS+9}], v{VA[1]}, {srd(SRD_X)}, 0 offen offset:32")
    XOa = [44, 48]; XOb = [42, 43]
    for b_ in range(2):
        e(f"buffer_load_dwordx4 v[{XOa[b_]}:{XOa[b_]+3}], v{VA[0]}, {srd(SRD_X)}, 0 offen offset:{1280*b_}")
        e(f"buffer_load_dword v{XOb[b_]}, v{VA[0]}, {srd(SRD_X)}, 0 offen offset:{1280*b_+16}")
    e(f"v_mul_u32_u24 v{VA[2]}, 12288, v{T[2]}")
    e(f"v_lshl_add_u32 v{VA[2]}, v{c_}, 4, v{VA[2]}")
    e(f"s_mul_i32 s{sT0}, s{sH}, 384")
    e(f"v_add_u32 v{VA[2]}, s{sT0}, v{VA[2]}")
    e(f"v_cmp_gt_u32 vcc, 48, v{VLANE}")
    e(f"v_mov_b32 v{T[3]}, 0x7f000000")
    e(f"v_cndmask_b32 v{VA[2]}, v{T[3]}, v{VA[2]}, vcc")
    for i in range(10):
        if i: e(f"s_mov_b32 s{sOFF}, {i*12288}")
        so = f"s{sOFF}" if i else "0"
        e(f"buffer_load_dwordx4 v[{WQB+4*i}:{WQB+4*i+3}], v{VA[2]}, {srd(SRD_WQ)}, {so} offen {wflags}")
    e(f"v_mul_u32_u24 v{VA[3]}, 1536, v{r_}")
    e(f"v_lshl_add_u32 v{VA[3]}, v{c_}, 5, v{VA[3]}")
    e(f"s_mul_i32 s{sT0}, s{sW}, 3072")
    e(f"v_add_u32 v{VA[3]}, s{sT0}, v{VA[3]}")
    e(f"v_lshlrev_b32 v{VL16}, 4, v{VLANE}")
    e(f"v_mul_u32_u24 v{VYA}, 2560, v{VG}")
    e(f"v_lshl_add_u32 v{VYA}, v{VC}, 4, v{VYA}")
    e(f"s_mul_i32 s{sT0}, s{sXG}, 5120")
    e(f"s_lshl_b32 s{sT1}, s{sCS}, 7")
    e(f"s_add_u32 s{sT0}, s{sT0}, s{sT1}")
    e(f"s_add_u32 s{sT0}, s{sT0}, {WS_Y}")
    e(f"s_cmp_ge_u32 s{sMEM}, 5")
    e(f"s_cselect_b32 s{sT0}, {OOB}, s{sT0}")
    e(f"v_add_u32 v{VYA}, s{sT0}, v{VYA}")
    e(f"v_cmp_le_u32 vcc, 16, v{VLANE}")
    e(f"v_mov_b32 v{T[3]}, {OOB}")
    e(f"v_cndmask_b32 v{VYA}, v{VYA}, v{T[3]}, vcc")
    for i in range(4): e(f"v_mov_b32 v{T[4+i]}, -1")
    e(f"s_cmp_lg_u32 s{sW}, 3")
    e("s_cbranch_scc1 L_clr_done")
    e(f"s_mul_i32 s{sT1}, s{sR}, 3072")
    e(f"s_add_u32 s{sT1}, s{sT1}, {WS_Z}")
    e(f"s_cmp_ge_u32 s{sMEM}, 5")
    e(f"s_cselect_b32 s{sT1}, {OOB}, s{sT1}")
    for i in range(3):
        e(f"buffer_store_dwordx4 v[{T[4]}:{T[7]}], v{VL16}, {srd(SRD_WS)}, s{sT1} offen offset:{1024*i} sc1")
    e(f"s_lshl_b32 s{sT0}, s{sLID}, 10")
    e(f"buffer_store_dwordx4 v[{T[4]}:{T[7]}], v{VL16}, {srd(SRD_WS)}, s{sT0} offen sc1")
    e(f"buffer_store_dwordx4 v[{T[4]}:{T[7]}], v{VYA}, {srd(SRD_WS)}, 0 offen sc1")
    e(f"s_cmp_lg_u32 s{sLID}, 7")
    e("s_cbranch_scc1 L_clr_done")
    e(f"s_mov_b32 s{sT0}, {WS_FB}")
    for i in range(4):
        e(f"buffer_store_dwordx4 v[{T[4]}:{T[7]}], v{VL16}, {srd(SRD_WS)}, s{sT0} offen offset:{1024*i} sc1")
    A.label("L_clr_done"); A.fence()
    e("s_barrier")
    e(f"s_cmp_lg_u32 s{sW}, 3")
    e("s_cbranch_scc1 L_h3w")
    e("s_waitcnt vmcnt(0)")
    A.label("L_h3w"); A.fence()
    e("s_waitcnt vmcnt(10)")
    for i in range(10):
        e(f"v_lshlrev_b32 v{HB+2*i}, 16, v{XS+i}")
        e(f"v_and_b32 v{HB+2*i+1}, s{sMASK}, v{XS+i}")
    ln_stats(HB)
    for b_ in range(2):
        src = [XOa[b_]+i for i in range(4)] + [XOb[b_]]
        for i in range(5):
            a_ = LNV + 10*b_ + 2*i
            e(f"v_lshlrev_b32 v{a_}, 16, v{src[i]}")
            e(f"v_and_b32 v{a_+1}, s{sMASK}, v{src[i]}")
            norm_pair(a_, b_)
    for i in range(10):
        e(f"s_waitcnt vmcnt({9-i})")
        r = WQB + 4*i
        for d in range(4):
            lo, hi = T[(2*d) % 8 + 4], T[(2*d+1) % 8 + 4]
            e(f"v_lshlrev_b32 v{lo}, 16, v{r+d}")
            e(f"v_and_b32 v{hi}, s{sMASK}, v{r+d}")
            for b_ in range(2):
                k = QA + 8*b_ + 2*d; p = LNV + 10*b_ + i
                op = "v_mul_f32" if i == 0 else "v_fmac_f32"
                e(f"{op} v{k}, v{p}, v{lo}"); e(f"{op} v{k+1}, v{p}, v{hi}")
    e(f"v_cmp_gt_u32 vcc, 48, v{VLANE}")
    e(f"s_and_saveexec_b64 s[{sT2}:{sT3}], vcc")
    for b_ in range(2):
        e(f"ds_write_b128 v{VA[3]}, v[{QA+8*b_}:{QA+8*b_+3}] offset:{L_RQ + 768*b_}")
        e(f"ds_write_b128 v{VA[3]}, v[{QA+8*b_+4}:{QA+8*b_+7}] offset:{L_RQ + 768*b_ + 16}")
    e("s_mov_b64 exec, 1")
    e(f"v_mov_b32 v{T[0]}, 1")
    e(f"ds_add_rtn_u32 v{T[1]}, v{VZERO}, v{T[0]} offset:{L_CTL}")
    e("s_mov_b64 exec, -1")
    e("s_waitcnt lgkmcnt(0)")
    e(f"v_readfirstlane_b32 s{sT0}, v{T[1]}")
    e(f"v_cmp_gt_u32 vcc, 48, v{VLANE}")
    e(f"v_mov_b32 v{T[3]}, {OOB}")
    e(f"v_cndmask_b32 v{VA[4]}, v{T[3]}, v{VL16}, vcc")
    e(f"s_cmp_lg_u32 s{sT0}, 3")
    e("s_cbranch_scc1 L_q_skip")
    for b_ in range(2):
        for k in range(8):
            d = WQB + 32*b_ + 4*k
            e(f"ds_read_b128 v[{d}:{d+3}], v{VL16} offset:{L_RQ + (2*k + b_)*768}")
        e("s_waitcnt lgkmcnt(0)")
    for b_ in range(2):
        for st in (1, 2, 4):
            for k in range(0, 8, 2*st):
                for i in (0, 2):
                    a_, b2 = WQB+32*b_+4*k+i, WQB+32*b_+4*(k+st)+i
                    e(f"v_pk_add_f32 v[{a_}:{a_+1}], v[{a_}:{a_+1}], v[{b2}:{b2+1}]")
    e(f"s_mul_i32 s{sT0}, s{sLID}, 1536")
    e(f"s_add_u32 s{sT0}, s{sT0}, {WS_IN}")
    e(f"buffer_store_dwordx4 v[{WQB}:{WQB+3}], v{VA[4]}, {srd(SRD_WS)}, s{sT0} offen sc1")
    e(f"buffer_store_dwordx4 v[{WQB+32}:{WQB+35}], v{VA[4]}, {srd(SRD_WS)}, s{sT0} offen offset:768 sc1")
    stamp()
    e(f"s_lshl_b32 s{sT0}, s{sH}, 3")
    e(f"s_add_u32 s{sT2}, s22, s{sT0}")
    e(f"s_addc_u32 s{sT3}, s23, 0")
    e(f"s_mov_b32 s{sT1}, 1")
    e(f"v_lshlrev_b32 v{VA[5]}, 10, v{VLANE}")
    e(f"s_lshl_b32 s{sT0}, s{sH}, 13")
    e(f"s_add_u32 s{sT0}, s{sT0}, 1008")
    e(f"s_lshl_b32 s{sOFF}, s{sLID}, 10")
    e(f"s_add_u32 s{sOFF}, s{sOFF}, 1008")
    e("s_waitcnt vmcnt(0) lgkmcnt(0)")
    e(f"s_atomic_add s{sT1}, s[{sT2}:{sT3}], 0 glc")
    e("s_waitcnt lgkmcnt(0)")
    e(f"s_and_b32 s{sT1}, s{sT1}, 7")
    e(f"s_cmp_lg_u32 s{sT1}, 7")
    e("s_cbranch_scc1 L_qf_wait")
    e("s_mov_b64 exec, 0xff")
    e(f"buffer_store_dword v{VZERO}, v{VA[5]}, {srd(SRD_WS)}, s{sT0} offen sc1")
    e("s_mov_b64 exec, -1")
    e("s_branch L_qf_done")
    A.label("L_qf_wait"); A.fence()
    if indelay: e(f"s_sleep {indelay}")
    spin_begin("L_qf_spin")
    e(f"buffer_load_dword v{T[14]}, v{VZERO}, {srd(SRD_WS)}, s{sOFF} offen sc1")
    e("s_waitcnt vmcnt(0)")
    e(f"v_cmp_eq_u32 vcc, -1, v{T[14]}")
    spin_end("L_qf_spin", "L_qf_done", slp=insleep)
    stamp()
    e(f"s_mul_i32 s{sT0}, s{sH}, {8*1536}")
    e(f"s_mul_i32 s{sT1}, s{sB}, 768")
    e(f"s_add_u32 s{sT0}, s{sT0}, s{sT1}")
    e(f"s_add_u32 s{sT0}, s{sT0}, {WS_IN}")
    IB = HB
    for k in range(8):
        if k: e(f"s_add_u32 s{sT0}, s{sT0}, 1536")
        e(f"buffer_load_dwordx4 v[{IB+4*k}:{IB+4*k+3}], v{VA[4]}, {srd(SRD_WS)}, s{sT0} offen sc1")
    e("s_waitcnt vmcnt(0)")
    for k in range(1, 8):
        for i in (0, 2):
            e(f"v_pk_add_f32 v[{IB+i}:{IB+i+1}], v[{IB+i}:{IB+i+1}], v[{IB+4*k+i}:{IB+4*k+i+1}]")
    e(f"v_cvt_pk_bf16_f32 v{T[4]}, v{IB}, v{IB+1}")
    e(f"v_cvt_pk_bf16_f32 v{T[5]}, v{IB+2}, v{IB+3}")
    e(f"v_min_u32 v{T[4]}, -2, v{T[4]}")
    e(f"v_min_u32 v{T[5]}, -2, v{T[5]}")
    e(f"v_lshlrev_b32 v{T[0]}, 3, v{VLANE}")
    e(f"v_cmp_gt_u32 vcc, 48, v{VLANE}")
    e(f"s_and_saveexec_b64 s[{sT2}:{sT3}], vcc")
    e(f"ds_write_b64 v{T[0]}, v[{T[4]}:{T[5]}] offset:{L_QS}")
    e("s_mov_b64 exec, -1")
    stamp()
    if stamps and not prog:
        write_stamps(1)
        e("s_mov_b64 exec, -1")
    A.label("L_q_skip"); A.fence()
    nstamp[0] = 1
    for _ in range(wdelay // 100): e("s_sleep 100")
    e(f"v_and_b32 v{T[0]}, 31, v{VLANE}")
    e(f"v_lshlrev_b32 v{T[0]}, 3, v{T[0]}")
    spin_begin("L_all_spin")
    e(f"buffer_load_dword v{T[1]}, v{T[0]}, {srd(SRD_DBG)}, 0 offen sc1")
    e("s_waitcnt vmcnt(0)")
    e(f"v_cmp_gt_u32 vcc, 8, v{T[1]}")
    spin_end("L_all_spin", "L_all_done", slp=32)
    e(f"v_mov_b32 v{T[1]}, 1")
    e(f"ds_write_b32 v{VZERO}, v{T[1]} offset:{L_CTL+8}")
    WB_ = 32
    FRG = 128
    gA, gB, lA, lB = VA[0], VA[1], VA[2], VA[3]
    e(f"s_mul_i32 s{sRS}, s{sW}, 12288")
    e(f"s_add_u32 s{sRS}, s{sRS}, {L_W}")
    e(f"s_cmp_ge_u32 s{sMEM}, 5")
    e("s_cbranch_scc1 L_wadr_mlp")
    def wo_addr(g_, l_, add):
        u, cb, u3 = T[0], T[1], T[2]
        e(f"v_lshrrev_b32 v{u}, 2, v{VLANE}")
        if add: e(f"v_add_u32 v{u}, {add}, v{u}")
        e(f"v_and_b32 v{cb}, 3, v{VLANE}")
        e(f"v_mul_u32_u24 v{u3}, 43, v{u}")
        e(f"v_lshrrev_b32 v{u3}, 7, v{u3}")
        e(f"v_mul_u32_u24 v{T[3]}, 3, v{u3}")
        e(f"v_sub_u32 v{T[3]}, v{u}, v{T[3]}")
        e(f"v_lshlrev_b32 v{T[3]}, 6, v{T[3]}")
        e(f"v_lshl_add_u32 v{T[3]}, v{u3}, 3, v{T[3]}")
        e(f"v_add_u32 v{T[3]}, s{sT0}, v{T[3]}")
        e(f"v_mul_u32_u24 v{g_}, 1280, v{T[3]}")
        e(f"v_lshl_add_u32 v{g_}, v{cb}, 4, v{g_}")
        e(f"v_add_u32 v{g_}, s{sT1}, v{g_}")
        e(f"v_lshrrev_b32 v{T[3]}, 1, v{cb}")
        e(f"v_mul_u32_u24 v{T[3]}, 6, v{T[3]}")
        e(f"v_lshrrev_b32 v{u3}, 2, v{u}")
        e(f"v_add_u32 v{T[3]}, v{T[3]}, v{u3}")
        e(f"v_lshlrev_b32 v{l_}, 10, v{T[3]}")
        e(f"v_and_b32 v{u3}, 3, v{u}")
        e(f"v_lshl_add_u32 v{l_}, v{u3}, 8, v{l_}")
        e(f"v_and_b32 v{u3}, 1, v{cb}")
        e(f"v_lshl_add_u32 v{l_}, v{u3}, 7, v{l_}")
        e(f"v_add_u32 v{l_}, s{sRS}, v{l_}")
    e(f"s_lshl_b32 s{sT0}, s{sXG}, 2")
    e(f"s_add_u32 s{sT0}, s{sT0}, s{sW}")
    e(f"s_mul_i32 s{sT0}, s{sT0}, 192")
    e(f"s_lshl_b32 s{sT1}, s{sCS}, 6")
    wo_addr(gA, lA, 0); wo_addr(gB, lB, 16)
    e(f"s_movk_i32 s{sT2}, 64"); e(f"s_movk_i32 s{sT3}, 32")
    e(f"s_movk_i32 s{sOFF}, 1280")
    e("s_branch L_wadr_done")
    A.label("L_wadr_mlp"); A.fence()
    e(f"v_lshrrev_b32 v{T[0]}, 1, v{VLANE}")
    e(f"s_mul_i32 s{sT0}, s{sW}, 20")
    e(f"v_add_u32 v{T[0]}, s{sT0}, v{T[0]}")
    e(f"v_mul_u32_u24 v{gA}, 24576, v{T[0]}")
    e(f"v_and_b32 v{T[1]}, 1, v{VLANE}")
    e(f"v_lshl_add_u32 v{gA}, v{T[1]}, 4, v{gA}")
    e(f"s_lshl_b32 s{sT0}, s{sF0}, 1")
    e(f"v_add_u32 v{gA}, s{sT0}, v{gA}")
    e(f"v_lshlrev_b32 v{lA}, 7, v{VLANE}")
    e(f"v_add_u32 v{lA}, s{sRS}, v{lA}")
    e(f"v_cmp_le_u32 vcc, 20, v{VLANE}")
    e(f"v_cndmask_b32 v{T[0]}, 0, 1, vcc")
    e(f"v_mul_u32_u24 v{T[1]}, 20, v{T[0]}")
    e(f"v_sub_u32 v{T[1]}, v{VLANE}, v{T[1]}")
    e(f"v_mul_u32_u24 v{gB}, 10240, v{T[0]}")
    e(f"v_lshl_add_u32 v{gB}, v{T[1]}, 4, v{gB}")
    e(f"s_mul_i32 s{sT0}, s{sF0}, 1280")
    e(f"s_mul_i32 s{sT1}, s{sW}, 320")
    e(f"s_add_u32 s{sT0}, s{sT0}, s{sT1}")
    e(f"v_add_u32 v{gB}, s{sT0}, v{gB}")
    e(f"v_lshrrev_b32 v{lB}, 1, v{T[1]}")
    e(f"v_lshlrev_b32 v{lB}, 9, v{lB}")
    e(f"v_lshl_add_u32 v{lB}, v{T[0]}, 8, v{lB}")
    e(f"v_and_b32 v{T[1]}, 1, v{T[1]}")
    e(f"v_lshl_add_u32 v{lB}, v{T[1]}, 7, v{lB}")
    e(f"s_add_u32 s{sT0}, s{sRS}, 6144")
    e(f"v_add_u32 v{lB}, s{sT0}, v{lB}")
    e(f"s_movk_i32 s{sT2}, 40"); e(f"s_movk_i32 s{sT3}, 40")
    e(f"s_movk_i32 s{sOFF}, 3072")
    A.label("L_wadr_done"); A.fence()
    for rnd, (g_, l_, sN, sr) in enumerate(((gA, lA, sT2, SRD_WA), (gB, lB, sT3, SRD_WB))):
        e(f"v_cmp_gt_u32 vcc, s{sN}, v{VLANE}")
        e("s_mov_b64 exec, vcc")
        for kk in range(8):
            if kk == 0: so = "0"
            else:
                if rnd == 0: e(f"s_mul_i32 s{sT0}, s{sOFF}, {kk}")
                else: e(f"s_movk_i32 s{sT0}, {1280*kk}")
                so = f"s{sT0}"
            e(f"buffer_load_dwordx4 v[{WB_+4*kk}:{WB_+4*kk+3}], v{g_}, {srd(sr)}, {so} offen {wflags}")
            if kk % 2 == 1 and kk < 7: e("s_waitcnt vmcnt(1)")
        e("s_waitcnt vmcnt(0)")
        for i in range(4):
            tb = WB_ + 32 + 8*i
            for kp in range(4):
                e(f"v_perm_b32 v{tb+kp}, v{WB_+4*(2*kp+1)+i}, v{WB_+4*(2*kp)+i}, s{sPLO}")
                e(f"v_perm_b32 v{tb+4+kp}, v{WB_+4*(2*kp+1)+i}, v{WB_+4*(2*kp)+i}, s{sPHI}")
            e(f"ds_write_b128 v{l_}, v[{tb}:{tb+3}] offset:{32*i}")
            e(f"ds_write_b128 v{l_}, v[{tb+4}:{tb+7}] offset:{32*i+16}")
        e("s_mov_b64 exec, -1")
        e("s_waitcnt lgkmcnt(0)")
    i_, g4 = VA[0], VA[1]
    e(f"v_and_b32 v{i_}, 15, v{VLANE}")
    e(f"v_lshrrev_b32 v{g4}, 4, v{VLANE}")
    e(f"v_add_u32 v{T[0]}, s{sRS}, v{VL16}")
    if dry:
        e(f"s_mov_b32 s{sDRY}, 1"); e(f"s_mov_b32 s{sOOB}, {OOB}"); e(f"s_mov_b32 s{sLIM}, 1")
    def barrier(lbl):
        if dry:
            e(f"s_cmp_lg_u32 s{sDRY}, 0")
            e(f"s_cbranch_scc1 {lbl}")
        e("s_barrier")
        if dry:
            A.label(lbl); A.fence()
    def wait_progress(lbl):
        e(f"s_mov_b32 s{sDRY}, 0"); e(f"s_mov_b32 s{sOOB}, 0"); e(f"s_mov_b32 s{sLIM}, {spin_limit}")
        e("s_mov_b64 exec, -1")
        e("s_waitcnt vmcnt(0) lgkmcnt(0)")
        spin_begin(lbl)
        e(f"ds_read_b32 v{T[0]}, v{VZERO} offset:{L_CTL+12}")
        e("s_waitcnt lgkmcnt(0)")
        e(f"v_cmp_eq_u32 vcc, 0, v{T[0]}")
        spin_end(lbl, lbl + "_done", slp=2)
    e(f"s_cmp_ge_u32 s{sMEM}, 5")
    e("s_cbranch_scc1 L_mlp")
    for f in range(12):
        e(f"ds_read_b128 v[{FRG+4*f}:{FRG+4*f+3}], v{T[0]} offset:{f*1024}")
    VOW, VBA, VYW, VM = VA[2], VA[3], VA[5], 96
    e(f"s_mul_i32 s{sT1}, s{sW}, 768")
    e(f"v_lshlrev_b32 v{VOW}, 3, v{VLANE}")
    e(f"v_add_u32 v{VOW}, s{sT1}, v{VOW}")
    e(f"v_and_b32 v{T[1]}, 1, v{i_}")
    e(f"v_mul_u32_u24 v{VBA}, 384, v{T[1]}")
    e(f"v_lshl_add_u32 v{VBA}, v{g4}, 4, v{VBA}")
    e(f"v_add_u32 v{VBA}, s{sT1}, v{VBA}")
    e(f"v_lshlrev_b32 v{VYW}, 7, v{T[1]}")
    e(f"v_lshl_add_u32 v{VYW}, v{g4}, 4, v{VYW}")
    e(f"s_lshl_b32 s{sT1}, s{sW}, 8")
    e(f"v_add_u32 v{VYW}, s{sT1}, v{VYW}")
    e(f"v_mov_b32 v{VM}, 768")
    col, VOUT, VXH, VYS = 97, 98, 99, 100
    e(f"v_and_b32 v{col}, 1, v{VLANE}")
    e(f"v_lshlrev_b32 v{col}, 2, v{col}")
    e(f"v_lshrrev_b32 v{T[1]}, 5, v{VLANE}")
    e(f"v_lshl_add_u32 v{col}, v{T[1]}, 1, v{col}")
    e(f"v_bfe_u32 v{T[1]}, v{VLANE}, 4, 1")
    e(f"v_add_u32 v{col}, v{col}, v{T[1]}")
    e(f"s_lshl_b32 s{sT0}, s{sR}, 3")
    e(f"v_add_u32 v{col}, s{sT0}, v{col}")
    e(f"v_lshlrev_b32 v{VOUT}, 1, v{col}")
    e(f"buffer_load_ushort v{VXH}, v{VOUT}, {srd(SRD_X)}, 0 offen")
    e(f"v_bfe_u32 v{T[3]}, v{VLANE}, 1, 3")
    e(f"v_mul_u32_u24 v{VYS}, 5120, v{T[3]}")
    e(f"v_lshl_add_u32 v{VYS}, v{col}, 2, v{VYS}")
    e(f"v_cmp_ne_u32 vcc, 0, v{T[3]}")
    e(f"v_mov_b32 v{T[3]}, {OOB}")
    e("s_waitcnt vmcnt(0) lgkmcnt(0)")
    e(f"v_cndmask_b32 v{VOUT}, v{VOUT}, v{T[3]}, vcc")
    e(f"v_lshlrev_b32 v{VXH}, 16, v{VXH}")
    if not dry: wait_progress("L_wo_wait0")
    A.label("L_wo_tail"); A.fence()
    PO = 32; PM = 64
    e(f"s_lshl_b32 s{sT0}, s{sXG}, 2")
    e(f"s_add_u32 s{sT0}, s{sT0}, s{sW}")
    e(f"s_lshl_b32 s{sT0}, s{sT0}, 13")
    e(f"s_add_u32 s{sT1}, s{sT0}, 4096")
    spin_begin("L_a_spin")
    for s in range(8):
        so = sT0 if s < 4 else sT1
        e(f"buffer_load_dwordx4 v[{PO+4*s}:{PO+4*s+3}], v{VA[4]}, {srd(SRD_WS)}, s{so} offen offset:{1024*(s&3)} sc1")
        e(f"buffer_load_dwordx2 v[{PM+2*s}:{PM+2*s+1}], v{VM}, {srd(SRD_WS)}, s{so} offen offset:{1024*(s&3)} sc1")
    e("s_waitcnt vmcnt(0)")
    sentinel_check(rng(PO, 48), T[6])
    spin_end("L_a_spin", "L_a_done")
    for b_ in range(2):
        pm = PM + 8*b_
        e(f"v_max3_f32 v{T[b_]}, v{pm}, v{pm+2}, v{pm+4}")
        e(f"v_max_f32 v{T[b_]}, v{T[b_]}, v{pm+6}")
    for s in range(8): e(f"v_sub_f32 v{PM+2*s}, v{PM+2*s}, v{T[s>>2]}")
    for s in range(8): e(f"v_mul_f32 v{PM+2*s}, {LOG2E}, v{PM+2*s}")
    for s in range(8): e(f"v_exp_f32 v{PM+2*s}, v{PM+2*s}")
    for b_ in range(2):
        pm = PM + 8*b_
        e(f"v_mul_f32 v{T[2+b_]}, v{pm}, v{pm+1}")
        for s in range(1, 4): e(f"v_fmac_f32 v{T[2+b_]}, v{pm+2*s}, v{pm+2*s+1}")
    for b_ in range(2): e(f"v_rcp_f32 v{T[2+b_]}, v{T[2+b_]}")
    for b_ in range(2):
        pm = PM + 8*b_; po = PO + 16*b_; o = T[8+4*b_]
        for i in (0, 2):
            e(f"v_pk_mul_f32 v[{o+i}:{o+i+1}], v[{po+i}:{po+i+1}], v[{pm}:{pm+1}] op_sel_hi:[1,0]")
        for s in range(1, 4):
            for i in (0, 2):
                e(f"v_pk_fma_f32 v[{o+i}:{o+i+1}], v[{po+4*s+i}:{po+4*s+i+1}], v[{pm+2*s}:{pm+2*s+1}], v[{o+i}:{o+i+1}] op_sel_hi:[1,0,1]")
        sel = "op_sel_hi:[1,0]" if b_ == 0 else "op_sel:[0,1] op_sel_hi:[1,1]"
        for i in (0, 2):
            e(f"v_pk_mul_f32 v[{o+i}:{o+i+1}], v[{o+i}:{o+i+1}], v[{T[2]}:{T[3]}] {sel}")
        e(f"v_cvt_pk_bf16_f32 v{T[4+2*b_]}, v{o}, v{o+1}")
        e(f"v_cvt_pk_bf16_f32 v{T[5+2*b_]}, v{o+2}, v{o+3}")
    e(f"v_cmp_gt_u32 vcc, 48, v{VLANE}")
    e("s_mov_b64 exec, vcc")
    e(f"ds_write_b64 v{VOW}, v[{T[4]}:{T[5]}] offset:{L_OB}")
    e(f"ds_write_b64 v{VOW}, v[{T[6]}:{T[7]}] offset:{L_OB+384}")
    e("s_mov_b64 exec, -1")
    BF = 180
    for ks in range(6):
        e(f"ds_read_b128 v[{BF+4*ks}:{BF+4*ks+3}], v{VBA} offset:{L_OB + 64*ks}")
    D0, D1 = T[8], T[12]
    for ks in range(6):
        e(f"s_waitcnt lgkmcnt({5-ks})")
        for tl, D in ((0, D0), (1, D1)):
            c = "0" if ks == 0 else f"v[{D}:{D+3}]"
            f = FRG + 4*(6*tl + ks)
            e(f"v_mfma_f32_16x16x32_bf16 v[{D}:{D+3}], v[{f}:{f+3}], v[{BF+4*ks}:{BF+4*ks+3}], {c}")
    e("s_mov_b32 exec_lo, 0x00030003")
    e("s_mov_b32 exec_hi, 0x00030003")
    e(f"ds_write_b128 v{VYW}, v[{D0}:{D0+3}] offset:{L_YR}")
    e(f"ds_write_b128 v{VYW}, v[{D1}:{D1+3}] offset:{L_YR+64}")
    e("s_mov_b64 exec, -1")
    e("s_waitcnt lgkmcnt(0)")
    barrier("L_bar1")
    e(f"s_cmp_lg_u32 s{sW}, 0")
    e("s_cbranch_scc1 L_wo_exit")
    e(f"v_lshlrev_b32 v{T[0]}, 4, v{i_}")
    for hh_ in range(4):
        e(f"ds_read_b128 v[{PO+4*hh_}:{PO+4*hh_+3}], v{T[0]} offset:{L_YR + 256*hh_}")
    e("s_waitcnt lgkmcnt(0)")
    for i in (0, 2):
        e(f"v_pk_add_f32 v[{PO+i}:{PO+i+1}], v[{PO+i}:{PO+i+1}], v[{PO+4+i}:{PO+4+i+1}]")
        e(f"v_pk_add_f32 v[{PO+8+i}:{PO+8+i+1}], v[{PO+8+i}:{PO+8+i+1}], v[{PO+12+i}:{PO+12+i+1}]")
    for i in (0, 2): e(f"v_pk_add_f32 v[{PO+i}:{PO+i+1}], v[{PO+i}:{PO+i+1}], v[{PO+8+i}:{PO+8+i+1}]")
    for i in range(4): e(f"v_min_u32 v{PO+i}, -2, v{PO+i}")
    e(f"buffer_store_dwordx4 v[{PO}:{PO+3}], v{VYA}, {srd(SRD_WS)}, s{sOOB} offen sc1")
    stamp()
    Yr = PM
    e(f"s_mov_b32 s{sT0}, {WS_Y}")
    spin_begin("L_b_spin")
    e(f"buffer_load_dword v{Yr}, v{VYS}, {srd(SRD_WS)}, s{sT0} offen sc1")
    e("s_waitcnt vmcnt(0)")
    e(f"v_cmp_eq_u32 vcc, -1, v{Yr}")
    spin_end("L_b_spin", "L_b_done", slp=4)
    e(f"v_add_f32_dpp v{Yr}, v{Yr}, v{Yr} quad_perm:[2,3,0,1] row_mask:0xf bank_mask:0xf")
    e(f"v_mov_b32 v{T[6]}, v{Yr}")
    e(f"v_add_f32_dpp v{Yr}, v{T[6]}, v{T[6]} row_shr:4 row_mask:0xf bank_mask:0xa")
    e(f"v_add_f32_dpp v{Yr}, v{T[6]}, v{T[6]} row_shl:4 row_mask:0xf bank_mask:0x5")
    e(f"v_add_f32_dpp v{Yr}, v{Yr}, v{Yr} row_ror:8 row_mask:0xf bank_mask:0xf")
    bf16r(Yr)
    e(f"v_add_f32 v{Yr}, v{VXH}, v{Yr}")
    bf16r(Yr)
    stamp()
    Zr = PO + 4
    e(f"s_mul_i32 s{sT0}, s{sR}, 3072")
    e(f"s_add_u32 s{sT0}, s{sT0}, {WS_Z}")
    spin_begin("L_c_spin")
    for i in range(3):
        e(f"buffer_load_dwordx4 v[{Zr+4*i}:{Zr+4*i+3}], v{VL16}, {srd(SRD_WS)}, s{sT0} offen offset:{1024*i} sc1")
    e("s_waitcnt vmcnt(0)")
    sentinel_check(rng(Zr, 12), T[6])
    spin_end("L_c_spin", "L_c_done")
    for i in (0, 2):
        e(f"v_pk_add_f32 v[{Zr+i}:{Zr+i+1}], v[{Zr+i}:{Zr+i+1}], v[{Zr+4+i}:{Zr+4+i+1}]")
        e(f"v_pk_add_f32 v[{Zr+i}:{Zr+i+1}], v[{Zr+i}:{Zr+i+1}], v[{Zr+8+i}:{Zr+8+i+1}]")
    y = Zr
    e(f"v_permlane32_swap_b32 v{y}, v{y+2}")
    e(f"v_permlane32_swap_b32 v{y+1}, v{y+3}")
    e(f"v_add_f32 v{y}, v{y}, v{y+2}")
    e(f"v_add_f32 v{y+1}, v{y+1}, v{y+3}")
    e(f"v_permlane16_swap_b32 v{y}, v{y+1}")
    e(f"v_add_f32 v{y}, v{y}, v{y+1}")
    for k in (8, 4, 2):
        e(f"v_add_f32_dpp v{y}, v{y}, v{y} row_ror:{k} row_mask:0xf bank_mask:0xf")
    bf16r(y)
    e(f"v_add_f32 v{y}, v{y}, v{Yr}")
    e(f"v_cvt_pk_bf16_f32 v{y}, v{y}, v{y}")
    e(f"buffer_store_short v{y}, v{VOUT}, {srd(SRD_OUT)}, s{sOOB} offen")
    stamp()
    A.label("L_wo_exit"); A.fence()
    if dry:
        e(f"s_cmp_eq_u32 s{sDRY}, 0")
        e("s_cbranch_scc1 L_fin")
        wait_progress("L_wo_wait")
        e("s_branch L_wo_tail")
    else:
        e("s_branch L_fin")
    A.label("L_mlp"); A.fence()
    nstamp[0] = 1
    F1 = FRG; F2 = FRG + 24
    for ks in range(5):
        e(f"ds_read_b128 v[{F1+4*ks}:{F1+4*ks+3}], v{T[0]} offset:{ks*1024}")
    e(f"v_lshrrev_b32 v{T[3]}, 1, v{g4}")
    e(f"v_lshlrev_b32 v{T[3]}, 8, v{T[3]}")
    e(f"v_lshl_add_u32 v{T[3]}, v{i_}, 4, v{T[3]}")
    e(f"v_and_b32 v{T[4]}, 1, v{g4}")
    e(f"v_lshl_add_u32 v{T[3]}, v{T[4]}, 3, v{T[3]}")
    e(f"v_add_u32 v{T[3]}, s{sRS}, v{T[3]}")
    for tt in range(10):
        e(f"ds_read_b64 v[{F2+2*tt}:{F2+2*tt+1}], v{T[3]} offset:{6144 + tt*512}")
    VGA, VLW, VLR, VZA, VHR, VDW, VDR = VA[2], VA[3], VA[5], 96, 97, 98, 99
    XH = 100
    e(f"s_mul_i32 s{sT0}, s{sW}, 640")
    e(f"v_add_u32 v{VGA}, s{sT0}, v{VL16}")
    e(f"v_cmp_gt_u32 vcc, 40, v{VLANE}")
    e(f"v_mov_b32 v{T[1]}, {OOB}")
    e(f"v_cndmask_b32 v{VGA}, v{T[1]}, v{VGA}, vcc")
    e(f"v_lshrrev_b32 v{T[1]}, 1, v{VGA}")
    e(f"buffer_load_dwordx2 v[{T[8]}:{T[9]}], v{T[1]}, {srd(SRD_X)}, 0 offen")
    e(f"buffer_load_dwordx2 v[{T[10]}:{T[11]}], v{T[1]}, {srd(SRD_X)}, 0 offen offset:1280")
    e(f"s_mul_i32 s{sT0}, s{sW}, 640")
    e(f"s_add_u32 s{sT0}, s{sT0}, {L_LN}")
    e(f"v_lshlrev_b32 v{VLW}, 3, v{VLANE}")
    e(f"v_add_u32 v{VLW}, s{sT0}, v{VLW}")
    e(f"v_and_b32 v{T[4]}, 1, v{i_}")
    e(f"v_mul_u32_u24 v{VLR}, 320, v{T[4]}")
    e(f"v_lshl_add_u32 v{VLR}, v{g4}, 4, v{VLR}")
    e(f"v_add_u32 v{VLR}, s{sT0}, v{VLR}")
    e(f"v_lshlrev_b32 v{VDR}, 6, v{T[4]}")
    e(f"v_lshl_add_u32 v{VDR}, v{g4}, 4, v{VDR}")
    e(f"s_lshl_b32 s{sT0}, s{sW}, 7")
    e(f"v_add_u32 v{VDW}, s{sT0}, v{VDR}")
    e(f"v_mul_u32_u24 v{VZA}, 80, v{i_}")
    e(f"v_lshrrev_b32 v{T[4]}, 1, v{g4}")
    e(f"v_add_u32 v{VZA}, v{VZA}, v{T[4]}")
    e(f"s_mul_i32 s{sT0}, s{sW}, 20")
    e(f"v_add_u32 v{VZA}, s{sT0}, v{VZA}")
    e(f"v_mul_u32_u24 v{VZA}, 3072, v{VZA}")
    e(f"v_and_b32 v{T[4]}, 1, v{g4}")
    e(f"v_lshl_add_u32 v{VZA}, v{T[4]}, 4, v{VZA}")
    e(f"s_lshl_b32 s{sT0}, s{sF0}, 1")
    e(f"s_add_u32 s{sT0}, s{sT0}, {WS_Z}")
    e(f"v_add_u32 v{VZA}, s{sT0}, v{VZA}")
    e(f"v_cmp_lt_u32 vcc, 1, v{i_}")
    e(f"v_mov_b32 v{T[4]}, {OOB}")
    e(f"v_cndmask_b32 v{VZA}, v{VZA}, v{T[4]}, vcc")
    e(f"v_mul_u32_u24 v{VHR}, 80, v{VLANE}")
    e("s_waitcnt vmcnt(0) lgkmcnt(0)")
    for i in range(4):
        e(f"v_lshlrev_b32 v{XH+2*i}, 16, v{T[8+i]}")
        e(f"v_and_b32 v{XH+2*i+1}, s{sMASK}, v{T[8+i]}")
    if not dry: wait_progress("L_mlp_wait0")
    A.label("L_mlp_tail"); A.fence()
    YB = 32
    spin_begin("L_h_spin")
    for x in range(8):
        e(f"s_mov_b32 s{sT0}, {WS_Y + 5120*x}")
        for b_ in range(2):
            d = YB + 8*x + 4*b_
            e(f"buffer_load_dwordx4 v[{d}:{d+3}], v{VGA}, {srd(SRD_WS)}, s{sT0} offen offset:{2560*b_} sc1")
    e("s_waitcnt vmcnt(0)")
    sentinel_check(rng(YB, 64), T[6])
    spin_end("L_h_spin", "L_h_done")
    stamp()
    for st in (1, 2, 4):
        for x in range(0, 8, 2*st):
            for i in range(0, 8, 2):
                a_, b2 = YB+8*x+i, YB+8*(x+st)+i
                e(f"v_pk_add_f32 v[{a_}:{a_+1}], v[{a_}:{a_+1}], v[{b2}:{b2+1}]")
    for i in range(0, 8, 2):
        e(f"v_cvt_pk_bf16_f32 v{YB+i+1}, v{YB+i}, v{YB+i+1}")
        e(f"v_lshlrev_b32 v{YB+i}, 16, v{YB+i+1}")
        e(f"v_and_b32 v{YB+i+1}, s{sMASK}, v{YB+i+1}")
        e(f"v_pk_add_f32 v[{YB+i}:{YB+i+1}], v[{YB+i}:{YB+i+1}], v[{XH+i}:{XH+i+1}]")
        e(f"v_cvt_pk_bf16_f32 v{YB+i+1}, v{YB+i}, v{YB+i+1}")
        e(f"v_lshlrev_b32 v{YB+i}, 16, v{YB+i+1}")
        e(f"v_and_b32 v{YB+i+1}, s{sMASK}, v{YB+i+1}")
    e(f"v_cmp_gt_u32 vcc, 40, v{VLANE}")
    e("s_mov_b64 exec, vcc")
    e(f"ds_write_b128 v{VGA}, v[{YB}:{YB+3}] offset:{L_H}")
    e(f"ds_write_b128 v{VGA}, v[{YB+4}:{YB+7}] offset:{L_H+2560}")
    e("s_mov_b64 exec, -1")
    e("s_waitcnt lgkmcnt(0)")
    barrier("L_bar2")
    HB2 = 48
    for i in range(5):
        e(f"ds_read_b128 v[{HB2+4*i}:{HB2+4*i+3}], v{VHR} offset:{L_H + 16*i}")
    e("s_waitcnt lgkmcnt(0)")
    ln_stats(HB2)
    for b_ in range(2):
        for i in range(2):
            norm_pair(YB + 4*b_ + 2*i, b_, dst=T[8 + 2*b_ + i])
    e(f"v_cmp_gt_u32 vcc, 40, v{VLANE}")
    e("s_mov_b64 exec, vcc")
    e(f"ds_write_b64 v{VLW}, v[{T[8]}:{T[9]}]")
    e(f"ds_write_b64 v{VLW}, v[{T[10]}:{T[11]}] offset:320")
    e("s_mov_b64 exec, -1")
    BF = 72
    for ks in range(5):
        e(f"ds_read_b128 v[{BF+4*ks}:{BF+4*ks+3}], v{VLR} offset:{64*ks}")
    D = T[8]
    for ks in range(5):
        e(f"s_waitcnt lgkmcnt({4-ks})")
        c = "0" if ks == 0 else f"v[{D}:{D+3}]"
        e(f"v_mfma_f32_16x16x32_bf16 v[{D}:{D+3}], v[{F1+4*ks}:{F1+4*ks+3}], v[{BF+4*ks}:{BF+4*ks+3}], {c}")
    e("s_mov_b32 exec_lo, 0x00030003")
    e("s_mov_b32 exec_hi, 0x00030003")
    e(f"ds_write_b128 v{VDW}, v[{D}:{D+3}] offset:{L_DX}")
    e("s_mov_b64 exec, -1")
    e("s_waitcnt lgkmcnt(0)")
    barrier("L_bar3")
    for w in range(4):
        e(f"ds_read_b128 v[{YB+4*w}:{YB+4*w+3}], v{VDR} offset:{L_DX + 128*w}")
    e("s_waitcnt lgkmcnt(0)")
    for i in (0, 2):
        e(f"v_pk_add_f32 v[{YB+i}:{YB+i+1}], v[{YB+i}:{YB+i+1}], v[{YB+4+i}:{YB+4+i+1}]")
        e(f"v_pk_add_f32 v[{YB+8+i}:{YB+8+i+1}], v[{YB+8+i}:{YB+8+i+1}], v[{YB+12+i}:{YB+12+i+1}]")
    for i in (0, 2): e(f"v_pk_add_f32 v[{YB+i}:{YB+i+1}], v[{YB+i}:{YB+i+1}], v[{YB+8+i}:{YB+8+i+1}]")
    D = YB
    for i in range(4): bf16r(D+i)
    for i in range(4): e(f"v_mul_f32 v{T[i]}, {hex(f32(-1.4426950408889634))}, v{D+i}")
    for i in range(4): e(f"v_exp_f32 v{T[i]}, v{T[i]}")
    for i in range(4): e(f"v_add_f32 v{T[i]}, 1.0, v{T[i]}")
    for i in range(4): e(f"v_rcp_f32 v{T[i]}, v{T[i]}")
    for i in range(4): e(f"v_mul_f32 v{D+i}, v{D+i}, v{T[i]}")
    e(f"v_cvt_pk_bf16_f32 v{T[4]}, v{D}, v{D+1}")
    e(f"v_cvt_pk_bf16_f32 v{T[5]}, v{D+2}, v{D+3}")
    ZD = 180
    for tt in range(10):
        e(f"v_mfma_f32_16x16x16_bf16 v[{ZD+4*tt}:{ZD+4*tt+3}], v[{F2+2*tt}:{F2+2*tt+1}], v[{T[4]}:{T[5]}], 0")
    for tt in range(10):
        for i in range(4): e(f"v_min_u32 v{ZD+4*tt+i}, -2, v{ZD+4*tt+i}")
        e(f"s_add_u32 s{sT0}, s{sOOB}, {tt*6144}")
        e(f"buffer_store_dwordx4 v[{ZD+4*tt}:{ZD+4*tt+3}], v{VZA}, {srd(SRD_WS)}, s{sT0} offen sc1")
    stamp()
    if dry:
        e(f"s_cmp_eq_u32 s{sDRY}, 0")
        e("s_cbranch_scc1 L_fin")
        wait_progress("L_mlp_wait")
        e("s_branch L_mlp_tail")
    A.label("L_fin"); A.fence()
    if stamps and not prog:
        e(f"s_cmp_lg_u32 s{sW}, 0")
        e("s_cbranch_scc1 L_end")
        e("s_waitcnt lgkmcnt(0)")
        e(f"s_lshl_b32 s{sT0}, s2, 7")
        e(f"s_add_u32 s{sT0}, s{sT0}, {WS_STAMP + 64 + 32}")
        e("s_mov_b64 exec, 1")
        for i in range(1, 4):
            e(f"v_mov_b32 v{T[2]}, s{sST+2*i}")
            e(f"v_mov_b32 v{T[3]}, s{sST+2*i+1}")
            e(f"buffer_store_dwordx2 v[{T[2]}:{T[3]}], v{VZERO}, {srd(SRD_WS)}, s{sT0} offen offset:{8*i}")
            e("s_nop 1")
    A.label("L_end")
    A.raw("    s_endpgm")
    A.raw(f""".section .rodata,"a"
.p2align 6
.amdhsa_kernel {NAME}
  .amdhsa_next_free_vgpr 256
  .amdhsa_next_free_sgpr 102
  .amdhsa_accum_offset 256
  .amdhsa_group_segment_fixed_size 0
  .amdhsa_kernarg_size 88
  .amdhsa_user_sgpr_count 2
  .amdhsa_user_sgpr_kernarg_segment_ptr 1
  .amdhsa_system_sgpr_workgroup_id_x 1
  .amdhsa_float_denorm_mode_32 3
.end_amdhsa_kernel""")
    return A.text()

if __name__ == "__main__":
    out = sys.argv[1] if len(sys.argv) > 1 else "sequential_preLN__mha_block_cached__dense_activation_silu__decode.s"
    kw = eval("dict(%s)" % sys.argv[2]) if len(sys.argv) > 2 else {}
    open(out, "w").write(gen(**kw))
```

```python
import sys, struct, os
from asmlib import Asm

NAME = "sequential_preLN__mha_block_cached__dense_activation_silu__decode_kernel"
HEADER = open(os.path.join(os.path.dirname(os.path.abspath(__file__)), "header.txt")).read()
def f32(x): return struct.unpack('<I', struct.pack('<f', x))[0]

WS_PART = 0x000000
WS_Y    = 0x040000
WS_Z    = 0x070000
WS_FB   = 0x0F0000
WS_IN   = 0x100000
WS_P0   = 0x180000
WS_STAMP= 0x300000
WS_SIZE = 0x400000
L_CTL  = 0
L_F    = 32
L_ML   = 64
L_QS   = 128
L_RED  = 1024
L_RQ   = 7168
L_OB   = 19712
L_YR   = 22784
L_H    = 23808
L_LN   = 24064
L_DX   = 26624
L_W    = 27136
LDS_BYTES = L_W + 4*12288
KVBYTES = 2*32*8192*384
OOB = WS_SIZE

def gen(depths=(5,6,7,9), thr=(-60,20,100), cp=18, fb=True, init=1, fbdelay=8, stamps=False, spin_limit=1 << 20, kvflags="nt", wflags="nt", sleep=1,
        wdelay=200, indelay=12, insleep=6, prog=False, cflags='sc1', rot=1, early0=False, mlsleep=100, sl=dict(a=1, h=1, c=1, b=4)):
    dry = False; wpace = 1; wskew = 0; half = None; endn = 0
    stamps = stamps or prog
    A = Asm(); e = A.e
    A.raw(HEADER.rstrip('\n'))
    A.raw(f"; @launch grid=(256,1,1) block=(512,1,1) lds={LDS_BYTES}")
    A.raw('.amdgcn_target "amdgcn-amd-amdhsa--gfx950"\n.text\n.globl %s\n.p2align 8\n.type %s,@function\n%s:' % (NAME, NAME, NAME))
    VLANE, VKV, VZERO = 1, 2, 3
    T = list(range(4, 20))
    VG, VC, VMW, VLW_ = 20, 21, 22, 23
    SRD_X, SRD_K, SRD_V, SRD_WQ, SRD_WA, SRD_OUT, SRD_DBG, SRD_WS, SRD_WB = 28, 32, 36, 40, 44, 48, 52, 56, 96
    sW, sH, sB, sSPL, sMEM, sKVB, sOFF = 60, 61, 62, 63, 64, 65, 66
    sMASK, sR, sRS, sT0, sT1, sT2, sT3, sSPIN, sF0 = 67, 68, 69, 70, 71, 72, 73, 74, 75
    sPLO, sPHI, sXG, sCS = 76, 77, 78, 79
    sLID, sDRY, sOOB, sLIM = 3, 26, 27, 100
    sLVL, sNOW, sPREV, sLAG = 101, 20, 22, 23
    depth = depths[init]; DMAX = depths[-1]
    sST = 80
    def srd(s): return f"s[{s}:{s+3}]"
    nstamp = [0]
    def stamp(p=False):
        if not stamps: return
        if prog and not p and nstamp[0] > 0: return
        i = nstamp[0]; nstamp[0] += 1
        assert i < 8, i
        e(f"s_memrealtime s[{sST+2*i}:{sST+2*i+1}]")
    LOG2E = hex(f32(1.4426950408889634))
    SCALE = hex(f32(192 ** -0.5))
    e("s_cmp_ge_u32 s2, 256")
    e("s_cbranch_scc1 L_end")
    e("s_load_dwordx16 s[4:19], s[0:1], 0")
    e("s_load_dwordx4 s[20:23], s[0:1], 64")
    e("s_load_dwordx2 s[24:25], s[0:1], 80")
    if stamps:
        for i in range(1, 8): e(f"s_mov_b64 s[{sST+2*i}:{sST+2*i+1}], 0")
    stamp()
    e(f"v_lshrrev_b32 v{T[0]}, 6, v0")
    e(f"v_and_b32 v{VLANE}, 63, v0")
    e(f"v_readfirstlane_b32 s{sW}, v{T[0]}")
    e(f"v_lshrrev_b32 v{VG}, 3, v{VLANE}")
    e(f"v_and_b32 v{VC}, 7, v{VLANE}")
    e(f"v_mov_b32 v{VZERO}, 0")
    e(f"v_lshlrev_b32 v{T[1]}, 4, v{VLANE}")
    e(f"v_cmp_gt_u32 vcc, 2, v{VLANE}")
    e(f"v_mov_b32 v{T[4]}, -1")
    e(f"v_cndmask_b32 v{T[4]}, v{T[4]}, v{VZERO}, vcc")
    for i in range(1, 4): e(f"v_mov_b32 v{T[4+i]}, v{T[4]}")
    e(f"ds_write_b128 v{T[1]}, v[{T[4]}:{T[7]}]")
    e(f"s_and_b32 s{sXG}, s2, 7")
    e(f"s_lshr_b32 s{sT1}, s2, 3")
    e(f"s_lshr_b32 s{sT2}, s{sT1}, 3")
    e(f"s_lshl_b32 s{sH}, s{sXG}, 2")
    e(f"s_add_u32 s{sH}, s{sH}, s{sT2}")
    e(f"s_and_b32 s{sMEM}, s{sT1}, 7")
    e(f"s_lshr_b32 s{sB}, s{sMEM}, 2")
    e(f"s_and_b32 s{sSPL}, s{sMEM}, 3")
    e(f"s_mul_i32 s{sCS}, s{sT2}, 5")
    e(f"s_add_u32 s{sCS}, s{sCS}, s{sMEM}")
    e(f"s_lshl_b32 s{sLID}, s{sH}, 3")
    e(f"s_add_u32 s{sLID}, s{sLID}, s{sMEM}")
    e(f"s_mov_b32 s{sMASK}, 0xffff0000")
    e(f"s_mov_b32 s{sLIM}, {spin_limit}")
    e(f"s_mov_b32 s{sDRY}, 0")
    e(f"s_mov_b32 s{sOOB}, 0")
    e(f"s_mul_i32 s{sKVB}, s{sH}, 3145728")
    e(f"s_lshl_b32 s{sT0}, s{sMEM}, 2")
    e(f"s_and_b32 s{sT1}, s{sW}, 3")
    e(f"s_add_u32 s{sT0}, s{sT0}, s{sT1}")
    e(f"s_mul_i32 s{sT0}, s{sT0}, 3072")
    e(f"s_add_u32 s{sKVB}, s{sKVB}, s{sT0}")
    e(f"v_mul_u32_u24 v{VKV}, 384, v{VG}")
    e(f"v_lshl_add_u32 v{VKV}, v{VC}, 4, v{VKV}")
    e("s_waitcnt lgkmcnt(0)")
    def mk(s, p, size):
        e(f"s_mov_b32 s{s}, s{p}"); e(f"s_mov_b32 s{s+1}, s{p+1}"); e(f"s_mov_b32 s{s+2}, {size}"); e(f"s_mov_b32 s{s+3}, 0x20000")
    mk(SRD_K, 6, KVBYTES); mk(SRD_X, 4, 2560); mk(SRD_WQ, 10, 640*6144*2); mk(SRD_WS, 24, WS_SIZE)
    mk(SRD_V, 8, KVBYTES); mk(SRD_OUT, 20, 2560); mk(SRD_DBG, 22, 256)
    e(f"s_cmp_lt_u32 s{sMEM}, 5")
    e(f"s_cselect_b32 s{SRD_WA}, s12, s16"); e(f"s_cselect_b32 s{SRD_WA+1}, s13, s17")
    e(f"s_cselect_b32 s{SRD_WB}, s12, s18"); e(f"s_cselect_b32 s{SRD_WB+1}, s13, s19")
    e(f"s_mov_b32 s{SRD_WA+2}, {640*1536*2}")
    e(f"s_cselect_b32 s{SRD_WA+2}, {6144*640*2}, s{SRD_WA+2}")
    e(f"s_mov_b32 s{SRD_WB+2}, s{SRD_WA+2}")
    e(f"s_mov_b32 s{SRD_WA+3}, 0x20000"); e(f"s_mov_b32 s{SRD_WB+3}, 0x20000")
    e(f"s_cmp_lt_u32 s{sW}, 4")
    e("s_cbranch_scc1 L_helper")

    def wave_reduce(v, op, tmp, n=64):
        for ctl in ("quad_perm:[1,0,3,2]", "quad_perm:[2,3,0,1]", "row_half_mirror", "row_mirror"):
            e(f"v_{op}_dpp v{v}, v{v}, v{v} {ctl} row_mask:0xf bank_mask:0xf")
        e(f"v_mov_b32 v{tmp}, v{v}")
        e(f"v_permlane16_swap_b32 v{v}, v{tmp}")
        e(f"v_{op} v{v}, v{v}, v{tmp}")
        if n == 64:
            e(f"v_mov_b32 v{tmp}, v{v}")
            e(f"v_permlane32_swap_b32 v{v}, v{tmp}")
            e(f"v_{op} v{v}, v{v}, v{tmp}")
    def group_reduce(v, op, tmp):
        e(f"v_{op}_dpp v{v}, v{v}, v{v} row_ror:8 row_mask:0xf bank_mask:0xf")
        e(f"v_mov_b32 v{tmp}, v{v}")
        e(f"v_permlane16_swap_b32 v{v}, v{tmp}")
        e(f"v_{op} v{v}, v{v}, v{tmp}")
        e(f"v_mov_b32 v{tmp}, v{v}")
        e(f"v_permlane32_swap_b32 v{v}, v{tmp}")
        e(f"v_{op} v{v}, v{v}, v{tmp}")
    def bf16r(v):
        e(f"v_cvt_pk_bf16_f32 v{v}, v{v}, v{v}")
        e(f"v_lshlrev_b32 v{v}, 16, v{v}")
    def spin_begin(lbl):
        e(f"s_mov_b32 s{sSPIN}, 0")
        A.label(lbl); A.fence()
    def spin_end(lbl, done_lbl, slp=None):
        slp = sleep if slp is None else slp
        e(f"s_cbranch_vccz {done_lbl}")
        e(f"s_add_u32 s{sSPIN}, s{sSPIN}, 1")
        e(f"s_cmp_ge_u32 s{sSPIN}, s{sLIM}")
        e(f"s_cbranch_scc1 {done_lbl}")
        if slp: e(f"s_sleep {slp}")
        e(f"s_branch {lbl}")
        A.label(done_lbl); A.fence()
    def sentinel_check(regs, tmp):
        n = len(regs)
        e(f"v_max3_u32 v{tmp}, v{regs[0]}, v{regs[1]}, v{regs[2]}")
        i = 3
        while i + 1 < n:
            e(f"v_max3_u32 v{tmp}, v{tmp}, v{regs[i]}, v{regs[i+1]}"); i += 2
        if i < n: e(f"v_max_u32 v{tmp}, v{tmp}, v{regs[i]}")
        e(f"v_cmp_eq_u32 vcc, -1, v{tmp}")
    def rng(a, n): return list(range(a, a+n))
    def poll(name, loads, setA, consume, res, tmp):
        spin_begin(f"L_{name}_spin")
        loads(setA)
        e("s_waitcnt vmcnt(0)")
        consume(setA)
        cur = list(res)
        if len(cur) == 8:
            e(f"v_pk_add_f32 v[{tmp}:{tmp+1}], v[{cur[0]}:{cur[1]}], v[{cur[2]}:{cur[3]}]")
            e(f"v_pk_add_f32 v[{tmp+2}:{tmp+3}], v[{cur[4]}:{cur[5]}], v[{cur[6]}:{cur[7]}]")
            e(f"v_pk_add_f32 v[{tmp}:{tmp+1}], v[{tmp}:{tmp+1}], v[{tmp+2}:{tmp+3}]")
        else:
            e(f"v_pk_add_f32 v[{tmp}:{tmp+1}], v[{cur[0]}:{cur[1]}], v[{cur[2]}:{cur[3]}]")
        e(f"v_cmp_u_f32 vcc, v{tmp}, v{tmp+1}")
        spin_end(f"L_{name}_spin", f"L_{name}_ok", slp=sl[name])
    def ln_stats(HBx):
        s_, t_, q_ = T[0], T[1], T[2]
        e(f"v_pk_add_f32 v[{T[4]}:{T[5]}], v[{HBx}:{HBx+1}], v[{HBx+2}:{HBx+3}]")
        for i in range(4, 20, 2): e(f"v_pk_add_f32 v[{T[4]}:{T[5]}], v[{T[4]}:{T[5]}], v[{HBx+i}:{HBx+i+1}]")
        e(f"v_add_f32 v{s_}, v{T[4]}, v{T[5]}")
        wave_reduce(s_, "add_f32", t_, n=32)
        e(f"v_mul_f32 v{s_}, {hex(f32(-1.0/640))}, v{s_}")
        for i in range(0, 20, 2):
            e(f"v_pk_add_f32 v[{T[6]}:{T[7]}], v[{HBx+i}:{HBx+i+1}], v[{s_}:{s_+1}] op_sel_hi:[1,0]")
            if i == 0: e(f"v_pk_mul_f32 v[{T[4]}:{T[5]}], v[{T[6]}:{T[7]}], v[{T[6]}:{T[7]}]")
            else: e(f"v_pk_fma_f32 v[{T[4]}:{T[5]}], v[{T[6]}:{T[7]}], v[{T[6]}:{T[7]}], v[{T[4]}:{T[5]}]")
        e(f"v_add_f32 v{q_}, v{T[4]}, v{T[5]}")
        wave_reduce(q_, "add_f32", T[3], n=32)
        e(f"v_mul_f32 v{q_}, {hex(f32(1.0/640))}, v{q_}")
        bf16r(s_); bf16r(q_)
        e(f"v_add_f32 v{q_}, {hex(f32(1e-5))}, v{q_}")
        bf16r(q_)
        e(f"v_sqrt_f32 v{q_}, v{q_}")
        bf16r(q_)
        e(f"v_rcp_f32 v{q_}, v{q_}")
        e(f"v_mov_b32 v{T[1]}, v{T[0]}")
        e(f"v_mov_b32 v{T[3]}, v{T[2]}")
        e(f"v_permlane32_swap_b32 v{T[0]}, v{T[1]}")
        e(f"v_permlane32_swap_b32 v{T[2]}, v{T[3]}")
    def norm_pair(a, b_, dst=None):
        sel = "op_sel_hi:[1,0]" if b_ == 0 else "op_sel:[0,1] op_sel_hi:[1,1]"
        e(f"v_pk_add_f32 v[{a}:{a+1}], v[{a}:{a+1}], v[{T[0]}:{T[1]}] {sel}")
        e(f"v_cvt_pk_bf16_f32 v{a+1}, v{a}, v{a+1}")
        e(f"v_lshlrev_b32 v{a}, 16, v{a+1}")
        e(f"v_and_b32 v{a+1}, s{sMASK}, v{a+1}")
        e(f"v_pk_mul_f32 v[{a}:{a+1}], v[{a}:{a+1}], v[{T[2]}:{T[3]}] {sel}")
        if dst is not None:
            e(f"v_cvt_pk_bf16_f32 v{dst}, v{a}, v{a+1}")
        else:
            e(f"v_cvt_pk_bf16_f32 v{a+1}, v{a}, v{a+1}")
            e(f"v_lshlrev_b32 v{a}, 16, v{a+1}")
            e(f"v_and_b32 v{a+1}, s{sMASK}, v{a+1}")
    def write_stamps(slot):
        e("s_waitcnt lgkmcnt(0)")
        e(f"s_lshl_b32 s{sT0}, s2, 7")
        e(f"s_add_u32 s{sT0}, s{sT0}, {WS_STAMP + slot*64}")
        e("s_mov_b64 exec, 1")
        for i in range(8):
            e(f"v_mov_b32 v{T[2]}, s{sST+2*i}")
            e(f"v_mov_b32 v{T[3]}, s{sST+2*i+1}")
            e(f"buffer_store_dwordx2 v[{T[2]}:{T[3]}], v{VZERO}, {srd(SRD_WS)}, s{sT0} offen offset:{8*i}")
            e("s_nop 1")

    Q = 24; ACC = 36; SC = 60; RING = 92; VRED = 252; VRP = 253
    NT = 32
    slots = [RING + 4*i for i in range(40)]
    early = [ACC + 4*i for i in range(6)] + [SC + 8 + 4*i for i in range(6)]
    order = [(k, b_, t, j) for b_ in range(2) for k in 'KV' for t in range(NT) for j in range(3)]
    pos = {L: i for i, L in enumerate(order)}
    free = early + slots
    npre = 51
    slot = {}; tick = {}; m = [0]; last_off = [None]; landed = [0]
    A.vm_issued = 0
    def issue_one():
        L = order[m[0]]; m[0] += 1
        kind, b_, t, j = L
        r = free.pop(0); slot[L] = r
        if last_off[0] != (kind, b_, t):
            e(f"s_add_u32 s{sOFF}, s{sCS}, {t}")
            e(f"s_and_b32 s{sOFF}, s{sOFF}, 31")
            e(f"s_mul_i32 s{sOFF}, s{sOFF}, 98304")
            e(f"s_add_u32 s{sOFF}, s{sOFF}, s{sKVB if b_ == 0 else sF0}")
            last_off[0] = (kind, b_, t)
        sr = SRD_K if kind == 'K' else SRD_V
        tick[L] = e(f"buffer_load_dwordx4 v[{r}:{r+3}], v{VKV}, {srd(sr)}, s{sOFF} offen offset:{j*128} {kvflags}")
    def can_issue(): return m[0] < len(order) and free
    def wait_for(L):
        while L not in tick: issue_one()
        if tick[L] > landed[0]:
            A.wait_vm(tick[L]); landed[0] = tick[L]
    nthr = [0]
    def pump():
        if not can_issue(): return
        infl = A.vm_issued - landed[0]
        if infl >= depths[0]:
            if infl >= DMAX:
                tk = A.vm_issued - (DMAX - 1)
                A.wait_vm(tk); landed[0] = tk
            if fb:
                nthr[0] += 1; lbl = f"L_go{nthr[0]}"
                for lv in (3, 2, 1):
                    e(f"s_cmp_ge_u32 s{sLVL}, {lv}")
                    e(f"s_cbranch_scc1 {lbl}")
                    e(f"s_waitcnt vmcnt({depths[lv-1]-1})")
                for I_ in A.hist[-7:]: I_.states = 0
                A.label(lbl)
            elif A.vm_issued - landed[0] >= depth:
                tk = A.vm_issued - (depth - 1)
                A.wait_vm(tk); landed[0] = tk
        issue_one()
    def release(L):
        if slot[L] >= RING: free.append(slot[L])
    e(f"s_mul_i32 s{sCS}, s{sH}, {rot}")
    e(f"s_add_u32 s{sF0}, s{sKVB}, 100663296")
    for _ in range(depth): issue_one()
    e("s_barrier")
    e(f"s_mov_b32 s{sLVL}, {init}")
    e(f"s_mov_b32 s{sNOW}, 0")
    sOK = sPLO; sLAST = sPHI
    e(f"s_mov_b32 s{sOK}, 0")
    e(f"s_lshr_b32 s{sT0}, s2, 7"); e(f"s_lshl_b32 s{sT0}, s{sT0}, 3"); e(f"s_add_u32 s{sT0}, s{sT0}, s{sXG}"); e(f"s_lshl_b32 s{sT0}, s{sT0}, 2")
    e(f"s_bfe_u32 s{sT1}, s2, 0x40003")
    e(f"s_cmp_eq_u32 s{sT1}, 3"); e(f"s_cselect_b32 s{sT0}, s{sT0}, {OOB}")
    e(f"s_cmp_eq_u32 s{sW}, 4"); e(f"s_cselect_b32 s{sT0}, s{sT0}, {OOB}")
    e(f"v_mov_b32 v{VRP}, s{sT0}")
    e(f"v_mov_b32 v{T[2]}, {OOB}")
    e(f"v_cmp_eq_u32 vcc, 0, v{VLANE}")
    e(f"v_cndmask_b32 v{VRP}, v{T[2]}, v{VRP}, vcc")
    e(f"v_mul_u32_u24 v{VRED}, 96, v{VC}")
    e(f"v_mul_u32_u24 v{T[2]}, 12, v{VG}")
    e(f"v_add_u32 v{VRED}, v{VRED}, v{T[2]}")
    e(f"s_and_b32 s{sSPL}, s{sW}, 3")
    e(f"s_mul_i32 s{sRS}, s{sSPL}, 768")
    e(f"v_add_u32 v{VRED}, s{sRS}, v{VRED}")
    e(f"v_lshlrev_b32 v{T[14]}, 4, v{VLANE}")
    e(f"v_cmp_gt_u32 vcc, 48, v{VLANE}")
    e(f"v_mov_b32 v{T[15]}, {OOB}")
    e(f"v_cndmask_b32 v{T[15]}, v{T[15]}, v{T[14]}, vcc")
    e(f"v_mov_b32 v{T[13]}, 1")
    for _ in range(npre - depth): pump()
    ncons = [0]
    fbs = dict(ncp=0, due1=None, due=None)
    LOOK = DMAX if fb else depth
    def step(L):
        ncons[0] += 1
        n = ncons[0]
        if m[0] - pos[L] > LOOK:
            if n % 3 == 0: pump()
        else:
            while can_issue() and m[0] - pos[L] <= LOOK: pump()
        wait_for(L)
    def feedback():
        if not fb: return
        n = ncons[0]
        if fbs['due1'] == n:
            e("s_waitcnt lgkmcnt(0)")
            e(f"v_mov_b32 v254, s{sNOW}")
            e(f"s_mov_b32 s{sT0}, {WS_FB + fbs['ncp']*128}")
            e(f"buffer_store_dword v254, v{VRP}, {srd(SRD_WS)}, s{sT0} offen sc1")
            if fbs['ncp'] > 1:
                e(f"s_cmp_eq_u32 s{sOK}, 0")
                e(f"s_cbranch_scc1 L_fb{fbs['ncp']}a")
                e(f"s_load_dwordx16 s[4:19], s[24:25], {WS_FB + (fbs['ncp']-1)*128}")
                A.label(f"L_fb{fbs['ncp']}a")
            e(f"ds_read_b32 v255, v{VZERO} offset:{L_CTL+8}")
            fbs['due'] = n + fbdelay
        if fbs['due'] == n:
            e("s_waitcnt lgkmcnt(0)")
            if fbs['ncp'] > 1:
                e(f"s_cmp_eq_u32 s{sOK}, 0")
                e(f"s_cbranch_scc1 L_fb{fbs['ncp']}b")
                e(f"s_mov_b32 s{sLAG}, 0")
                for i in range(16):
                    e(f"s_min_u32 s{4+i}, s{4+i}, s{sNOW}")
                    e(f"s_sub_u32 s{4+i}, s{sPREV}, s{4+i}")
                    e(f"s_add_u32 s{sLAG}, s{sLAG}, s{4+i}")
                e(f"s_ashr_i32 s{sLAG}, s{sLAG}, 4")
                e(f"s_mov_b32 s{sLVL}, 0")
                for lv, th in enumerate(thr):
                    e(f"s_cmp_ge_i32 s{sLAG}, {th}"); e(f"s_cselect_b32 s{sLVL}, {lv+1}, s{sLVL}")
                A.label(f"L_fb{fbs['ncp']}b"); A.fence()
                e("s_nop 2")
            e(f"v_readfirstlane_b32 s{sOK}, v255")
        if n >= 84 and n % cp == cp - 1 and n + 2*DMAX + 12 < len(order):
            fbs['ncp'] += 1
            assert fbs['ncp'] < 32
            e(f"s_mov_b32 s{sPREV}, s{sNOW}")
            e(f"s_memrealtime s[{sNOW}:{sNOW+1}]")
            fbs['due1'] = n + 1
    def flush(b_):
        a = ACC
        for k in range(12): e(f"v_permlane32_swap_b32 v{a+k}, v{a+k+12}")
        for k in range(12): e(f"v_add_f32 v{a+k}, v{a+k}, v{a+k+12}")
        if b_ == 0: pump()
        for k in range(6): e(f"v_permlane16_swap_b32 v{a+k}, v{a+k+6}")
        for k in range(6): e(f"v_add_f32 v{a+k}, v{a+k}, v{a+k+6}")
        for k in range(3): e(f"v_add_f32_dpp v{a+12+k}, v{a+k}, v{a+k} row_ror:8 row_mask:0xf bank_mask:0x3")
        for k in range(3): e(f"v_add_f32_dpp v{a+12+k}, v{a+3+k}, v{a+3+k} row_ror:8 row_mask:0xf bank_mask:0xc")
        for k in range(3): e(f"v_mul_f32 v{a+12+k}, v{a+12+k}, v{VMW}")
        for k in range(3): e(f"ds_write_b32 v{VRED}, v{a+12+k} offset:{L_RED + 3072*b_ + 4*k}")
        e("s_mov_b64 exec, 1")
        e(f"ds_add_rtn_u32 v{T[12]}, v{VZERO}, v{T[13]} offset:{L_CTL + (4 if b_ == 0 else 16)}")
        e("s_mov_b64 exec, -1")
        if b_ == 0: pump()
        e(f"s_lshl_b32 s{sT1}, s{sLID}, 10")
        if b_ == 0: e(f"s_add_u32 s{sT1}, s{sT1}, {WS_P0}")
        e("s_waitcnt lgkmcnt(0)")
        e(f"v_readfirstlane_b32 s{sLAST}, v{T[12]}")
        e(f"s_cmp_lg_u32 s{sLAST}, 3")
        if b_ == 0: e(f"s_cselect_b32 s{sT1}, {OOB}, s{sT1}")
        e(f"s_cbranch_scc1 L_fl{b_}")
        for w in range(4):
            e(f"ds_read_b128 v[{ACC+4*w}:{ACC+4*w+3}], v{T[14]} offset:{L_RED + 3072*b_ + w*768}")
        e("s_waitcnt lgkmcnt(0)")
        for i in (0, 2):
            e(f"v_pk_add_f32 v[{ACC+i}:{ACC+i+1}], v[{ACC+i}:{ACC+i+1}], v[{ACC+4+i}:{ACC+4+i+1}]")
            e(f"v_pk_add_f32 v[{ACC+8+i}:{ACC+8+i+1}], v[{ACC+8+i}:{ACC+8+i+1}], v[{ACC+12+i}:{ACC+12+i+1}]")
        for i in (0, 2): e(f"v_pk_add_f32 v[{ACC+i}:{ACC+i+1}], v[{ACC+i}:{ACC+i+1}], v[{ACC+8+i}:{ACC+8+i+1}]")
        if b_ == 0:
            A.label("L_fl0"); A.fence()
            return e(f"buffer_store_dwordx4 v[{ACC}:{ACC+3}], v{T[15]}, {srd(SRD_WS)}, s{sT1} offen sc1")
        e(f"buffer_store_dwordx4 v[{ACC}:{ACC+3}], v{T[15]}, {srd(SRD_WS)}, s{sT1} offen sc1")
        e(f"ds_write_b32 v{VZERO}, v{T[13]} offset:{L_CTL+12}")
        if stamps:
            stamp()
            write_stamps(0)
        A.label("L_fl1"); A.fence()
    tk_p0 = None; p0_flagged = False
    for L in order:
        kind, b_, t, j = L
        if prog and j == 0 and (kind, b_, t) in (('K',0,24),('V',0,8),('V',0,24),('K',1,8),('K',1,24),('V',1,8),('V',1,24)): stamp(True)
        if kind == 'K':
            if t == 0 and j == 0:
                e(f"v_lshlrev_b32 v{T[8]}, 4, v{VC}")
                spin_begin(f"L_ql{b_}_spin")
                for jj in range(3):
                    e(f"ds_read_b128 v[{Q+4*jj}:{Q+4*jj+3}], v{T[8]} offset:{L_QS + 384*b_ + 128*jj}")
                e("s_waitcnt lgkmcnt(0)")
                sentinel_check(rng(Q, 12), T[9])
                spin_end(f"L_ql{b_}_spin", f"L_ql{b_}_done")
                if b_ == 0: stamp()
            step(L)
            r = slot[L]
            for i in range(4):
                c = "0" if i == 0 else f"v{T[j]}"
                e(f"v_dot2_f32_bf16 v{T[j]}, v{r+i}, v{Q+4*j+i}, {c}")
            release(L)
            feedback()
            if tk_p0 is not None and not p0_flagged and landed[0] >= tk_p0:
                e(f"s_cmp_lg_u32 s{sLAST}, 3")
                e("s_cbranch_scc1 L_p0f")
                e(f"ds_write_b32 v{VZERO}, v{T[13]} offset:{L_CTL+20}")
                A.label("L_p0f")
                p0_flagged = True
            if j == 2:
                sc = SC + t
                assert all(not (slot[x] <= sc < slot[x]+4) for x in order[pos[L]+1:] if x in slot), "score reg busy"
                e(f"v_add_f32 v{sc}, v{T[0]}, v{T[1]}")
                e(f"v_add_f32 v{sc}, v{sc}, v{T[2]}")
                for ctl in ("quad_perm:[1,0,3,2]", "quad_perm:[2,3,0,1]", "row_half_mirror"):
                    e(f"v_add_f32_dpp v{sc}, v{sc}, v{sc} {ctl} row_mask:0xf bank_mask:0xf")
                bf16r(sc)
                e(f"v_mul_f32 v{sc}, {SCALE}, v{sc}")
                bf16r(sc)
                if t == 0: e(f"v_mov_b32 v{VMW}, v{sc}")
                else: e(f"v_max_f32 v{VMW}, v{VMW}, v{sc}")
            if t == NT-1 and j == 2:
                if b_ == 1: stamp()
                group_reduce(VMW, "max_f32", T[1])
        else:
            if j == 0 and t < 8:
                for t2 in range(4*t, 4*t+4):
                    sc = SC + t2
                    e(f"v_sub_f32 v{sc}, v{sc}, v{VMW}")
                    e(f"v_mul_f32 v{sc}, {LOG2E}, v{sc}")
                    e(f"v_exp_f32 v{sc}, v{sc}")
                    if t2 == 0: e(f"v_mov_b32 v{VLW_}, v{sc}")
                    else: e(f"v_add_f32 v{VLW_}, v{VLW_}, v{sc}")
            if t == 8 and j == 0:
                group_reduce(VLW_, "add_f32", T[8])
                e(f"s_lshl_b32 s{sT0}, s{sSPL}, 3")
                e(f"v_mov_b32 v{T[8]}, s{sT0}")
                e(f"ds_write_b64 v{T[8]}, v[{VMW}:{VLW_}] offset:{L_ML + 32*b_}")
            if t == NT-3 and j == 1:
                e(f"s_lshl_b32 s{sT0}, s{sSPL}, 2")
                e(f"v_mov_b32 v{T[8]}, s{sT0}")
                spin_begin(f"L_mx{b_}_spin")
                e(f"ds_read_b32 v{VMW}, v{T[8]} offset:{L_F + 16*b_}")
                e(f"ds_read_b32 v{T[12]}, v{VZERO} offset:{L_CTL+8}")
                e("s_waitcnt lgkmcnt(0)")
                e(f"v_subrev_u32 v{T[12]}, 1, v{T[12]}")
                e(f"v_max_u32 v{T[12]}, v{T[12]}, v{VMW}")
                e(f"v_cmp_eq_u32 vcc, -1, v{T[12]}")
                spin_end(f"L_mx{b_}_spin", f"L_mx{b_}_done")
            step(L)
            r = slot[L]
            for i in range(4):
                lo, hi = T[(2*i) % 8], T[(2*i+1) % 8]
                e(f"v_lshlrev_b32 v{lo}, 16, v{r+i}")
                e(f"v_and_b32 v{hi}, s{sMASK}, v{r+i}")
                k = ACC + 8*j + 2*i
                op = "v_mul_f32" if t == 0 else "v_fmac_f32"
                e(f"{op} v{k}, v{SC+t}, v{lo}"); e(f"{op} v{k+1}, v{SC+t}, v{hi}")
            release(L)
            feedback()
            if t == NT-1 and j == 2:
                if b_ == 0: tk_p0 = flush(0)
                else:
                    stamp(); flush(1)
    assert p0_flagged
    e("s_endpgm")

    A.label("L_helper"); A.fence()
    nstamp[0] = 1
    e("s_setprio 3")
    e(f"s_mov_b32 s{sPLO}, 0x05040100")
    e(f"s_mov_b32 s{sPHI}, 0x07060302")
    e(f"s_mul_i32 s{sR}, s{sH}, 5")
    e(f"s_add_u32 s{sR}, s{sR}, s{sMEM}")
    e(f"s_mul_i32 s{sF0}, s{sH}, 3")
    e(f"s_add_u32 s{sF0}, s{sF0}, s{sMEM}")
    e(f"s_sub_u32 s{sF0}, s{sF0}, 5")
    e(f"s_lshl_b32 s{sF0}, s{sF0}, 4")
    VL16 = 24; VYA = 25; VA = [26, 27, 28, 29, 30, 31]
    XS = 32
    XO = 42
    HB = 52
    LNV = 72
    QA = 92
    WQB = 108
    r_, c_ = T[0], T[1]
    e(f"v_cmp_le_u32 vcc, 24, v{VLANE}")
    e(f"v_cndmask_b32 v{r_}, 0, 1, vcc")
    e(f"v_mul_u32_u24 v{c_}, 24, v{r_}")
    e(f"v_sub_u32 v{c_}, v{VLANE}, v{c_}")
    e(f"s_mul_i32 s{sT0}, s{sMEM}, 80")
    e(f"s_mul_i32 s{sT1}, s{sW}, 20")
    e(f"s_add_u32 s{sT0}, s{sT0}, s{sT1}")
    e(f"v_mul_u32_u24 v{T[2]}, 10, v{r_}")
    e(f"v_add_u32 v{T[2]}, s{sT0}, v{T[2]}")
    e(f"v_lshlrev_b32 v{VA[0]}, 1, v{T[2]}")
    e(f"v_mul_u32_u24 v{VA[1]}, 40, v{VLANE}")
    e(f"buffer_load_dwordx4 v[{XS}:{XS+3}], v{VA[1]}, {srd(SRD_X)}, 0 offen")
    e(f"buffer_load_dwordx4 v[{XS+4}:{XS+7}], v{VA[1]}, {srd(SRD_X)}, 0 offen offset:16")
    e(f"buffer_load_dwordx2 v[{XS+8}:{XS+9}], v{VA[1]}, {srd(SRD_X)}, 0 offen offset:32")
    XOa = [44, 48]; XOb = [42, 43]
    for b_ in range(2):
        e(f"buffer_load_dwordx4 v[{XOa[b_]}:{XOa[b_]+3}], v{VA[0]}, {srd(SRD_X)}, 0 offen offset:{1280*b_}")
        e(f"buffer_load_dword v{XOb[b_]}, v{VA[0]}, {srd(SRD_X)}, 0 offen offset:{1280*b_+16}")
    e(f"v_mul_u32_u24 v{VA[2]}, 12288, v{T[2]}")
    e(f"v_lshl_add_u32 v{VA[2]}, v{c_}, 4, v{VA[2]}")
    e(f"s_mul_i32 s{sT0}, s{sH}, 384")
    e(f"v_add_u32 v{VA[2]}, s{sT0}, v{VA[2]}")
    e(f"v_cmp_gt_u32 vcc, 48, v{VLANE}")
    e(f"v_mov_b32 v{T[3]}, 0x7f000000")
    e(f"v_cndmask_b32 v{VA[2]}, v{T[3]}, v{VA[2]}, vcc")
    for i in range(10):
        if i: e(f"s_mov_b32 s{sOFF}, {i*12288}")
        so = f"s{sOFF}" if i else "0"
        e(f"buffer_load_dwordx4 v[{WQB+4*i}:{WQB+4*i+3}], v{VA[2]}, {srd(SRD_WQ)}, {so} offen {wflags}")
    e(f"v_mul_u32_u24 v{VA[3]}, 1536, v{r_}")
    e(f"v_lshl_add_u32 v{VA[3]}, v{c_}, 5, v{VA[3]}")
    e(f"s_mul_i32 s{sT0}, s{sW}, 3072")
    e(f"v_add_u32 v{VA[3]}, s{sT0}, v{VA[3]}")
    e(f"v_lshlrev_b32 v{VL16}, 4, v{VLANE}")
    e(f"v_mul_u32_u24 v{VYA}, 2560, v{VG}")
    e(f"v_lshl_add_u32 v{VYA}, v{VC}, 4, v{VYA}")
    e(f"s_mul_i32 s{sT0}, s{sXG}, 5120")
    e(f"s_lshl_b32 s{sT1}, s{sCS}, 7")
    e(f"s_add_u32 s{sT0}, s{sT0}, s{sT1}")
    e(f"s_add_u32 s{sT0}, s{sT0}, {WS_Y}")
    e(f"s_cmp_ge_u32 s{sMEM}, 5")
    e(f"s_cselect_b32 s{sT0}, {OOB}, s{sT0}")
    e(f"v_add_u32 v{VYA}, s{sT0}, v{VYA}")
    e(f"v_cmp_le_u32 vcc, 16, v{VLANE}")
    e(f"v_mov_b32 v{T[3]}, {OOB}")
    e(f"v_cndmask_b32 v{VYA}, v{VYA}, v{T[3]}, vcc")
    for i in range(4): e(f"v_mov_b32 v{T[4+i]}, -1")
    e(f"s_cmp_lg_u32 s{sW}, 3")
    e("s_cbranch_scc1 L_clr_done")
    e(f"s_mul_i32 s{sT1}, s{sR}, 3072")
    e(f"s_add_u32 s{sT1}, s{sT1}, {WS_Z}")
    e(f"s_cmp_ge_u32 s{sMEM}, 5")
    e(f"s_cselect_b32 s{sT1}, {OOB}, s{sT1}")
    for i in range(3):
        e(f"buffer_store_dwordx4 v[{T[4]}:{T[7]}], v{VL16}, {srd(SRD_WS)}, s{sT1} offen offset:{1024*i} {cflags}")
    e(f"s_lshl_b32 s{sT0}, s{sLID}, 10")
    e(f"buffer_store_dwordx4 v[{T[4]}:{T[7]}], v{VL16}, {srd(SRD_WS)}, s{sT0} offen {cflags}")
    e(f"buffer_store_dwordx4 v[{T[4]}:{T[7]}], v{VYA}, {srd(SRD_WS)}, 0 offen {cflags}")
    e(f"s_cmp_lg_u32 s{sLID}, 7")
    e("s_cbranch_scc1 L_clr_done")
    e(f"s_mov_b32 s{sT0}, {WS_FB}")
    for i in range(4):
        e(f"buffer_store_dwordx4 v[{T[4]}:{T[7]}], v{VL16}, {srd(SRD_WS)}, s{sT0} offen offset:{1024*i} {cflags}")
    A.label("L_clr_done"); A.fence()
    e("s_barrier")
    e(f"s_cmp_lg_u32 s{sW}, 3")
    e("s_cbranch_scc1 L_h3w")
    e("s_waitcnt vmcnt(0)")
    A.label("L_h3w"); A.fence()
    e("s_waitcnt vmcnt(10)")
    for i in range(10):
        e(f"v_lshlrev_b32 v{HB+2*i}, 16, v{XS+i}")
        e(f"v_and_b32 v{HB+2*i+1}, s{sMASK}, v{XS+i}")
    ln_stats(HB)
    for b_ in range(2):
        src = [XOa[b_]+i for i in range(4)] + [XOb[b_]]
        for i in range(5):
            a_ = LNV + 10*b_ + 2*i
            e(f"v_lshlrev_b32 v{a_}, 16, v{src[i]}")
            e(f"v_and_b32 v{a_+1}, s{sMASK}, v{src[i]}")
            norm_pair(a_, b_)
    for i in range(10):
        e(f"s_waitcnt vmcnt({9-i})")
        r = WQB + 4*i
        for d in range(4):
            lo, hi = T[(2*d) % 8 + 4], T[(2*d+1) % 8 + 4]
            e(f"v_lshlrev_b32 v{lo}, 16, v{r+d}")
            e(f"v_and_b32 v{hi}, s{sMASK}, v{r+d}")
            for b_ in range(2):
                k = QA + 8*b_ + 2*d; p = LNV + 10*b_ + i
                op = "v_mul_f32" if i == 0 else "v_fmac_f32"
                e(f"{op} v{k}, v{p}, v{lo}"); e(f"{op} v{k+1}, v{p}, v{hi}")
    e(f"v_cmp_gt_u32 vcc, 48, v{VLANE}")
    e(f"s_and_saveexec_b64 s[{sT2}:{sT3}], vcc")
    for b_ in range(2):
        e(f"ds_write_b128 v{VA[3]}, v[{QA+8*b_}:{QA+8*b_+3}] offset:{L_RQ + 768*b_}")
        e(f"ds_write_b128 v{VA[3]}, v[{QA+8*b_+4}:{QA+8*b_+7}] offset:{L_RQ + 768*b_ + 16}")
    e("s_mov_b64 exec, 1")
    e(f"v_mov_b32 v{T[0]}, 1")
    e(f"ds_add_rtn_u32 v{T[1]}, v{VZERO}, v{T[0]} offset:{L_CTL}")
    e("s_mov_b64 exec, -1")
    e("s_waitcnt lgkmcnt(0)")
    e(f"v_readfirstlane_b32 s{sT0}, v{T[1]}")
    e(f"v_cmp_gt_u32 vcc, 48, v{VLANE}")
    e(f"v_mov_b32 v{T[3]}, {OOB}")
    e(f"v_cndmask_b32 v{VA[4]}, v{T[3]}, v{VL16}, vcc")
    e(f"s_cmp_lg_u32 s{sT0}, 3")
    e("s_cbranch_scc1 L_q_skip")
    for b_ in range(2):
        for k in range(8):
            d = WQB + 32*b_ + 4*k
            e(f"ds_read_b128 v[{d}:{d+3}], v{VL16} offset:{L_RQ + (2*k + b_)*768}")
        e("s_waitcnt lgkmcnt(0)")
    for b_ in range(2):
        for st in (1, 2, 4):
            for k in range(0, 8, 2*st):
                for i in (0, 2):
                    a_, b2 = WQB+32*b_+4*k+i, WQB+32*b_+4*(k+st)+i
                    e(f"v_pk_add_f32 v[{a_}:{a_+1}], v[{a_}:{a_+1}], v[{b2}:{b2+1}]")
    e(f"s_mul_i32 s{sT0}, s{sLID}, 1536")
    e(f"s_add_u32 s{sT0}, s{sT0}, {WS_IN}")
    e(f"buffer_store_dwordx4 v[{WQB}:{WQB+3}], v{VA[4]}, {srd(SRD_WS)}, s{sT0} offen sc1")
    e(f"buffer_store_dwordx4 v[{WQB+32}:{WQB+35}], v{VA[4]}, {srd(SRD_WS)}, s{sT0} offen offset:768 sc1")
    stamp()
    e(f"s_lshl_b32 s{sT0}, s{sH}, 3")
    e(f"s_add_u32 s{sT2}, s22, s{sT0}")
    e(f"s_addc_u32 s{sT3}, s23, 0")
    e(f"s_mov_b32 s{sT1}, 1")
    e(f"v_lshlrev_b32 v{VA[5]}, 10, v{VLANE}")
    e(f"s_lshl_b32 s{sT0}, s{sH}, 13")
    e(f"s_add_u32 s{sT0}, s{sT0}, 1008")
    e(f"s_lshl_b32 s{sOFF}, s{sLID}, 10")
    e(f"s_add_u32 s{sOFF}, s{sOFF}, 1008")
    e("s_waitcnt vmcnt(0) lgkmcnt(0)")
    e(f"s_atomic_add s{sT1}, s[{sT2}:{sT3}], 0 glc")
    e("s_waitcnt lgkmcnt(0)")
    e(f"s_and_b32 s{sT1}, s{sT1}, 7")
    e(f"s_cmp_lg_u32 s{sT1}, 7")
    e("s_cbranch_scc1 L_qf_wait")
    e("s_mov_b64 exec, 0xff")
    e(f"buffer_store_dword v{VZERO}, v{VA[5]}, {srd(SRD_WS)}, s{sT0} offen sc1")
    e("s_mov_b64 exec, -1")
    e("s_branch L_qf_done")
    A.label("L_qf_wait"); A.fence()
    if indelay: e(f"s_sleep {indelay}")
    spin_begin("L_qf_spin")
    e(f"buffer_load_dword v{T[14]}, v{VZERO}, {srd(SRD_WS)}, s{sOFF} offen sc1")
    e("s_waitcnt vmcnt(0)")
    e(f"v_cmp_eq_u32 vcc, -1, v{T[14]}")
    spin_end("L_qf_spin", "L_qf_done", slp=insleep)
    stamp()
    e(f"s_mul_i32 s{sT0}, s{sH}, {8*1536}")
    e(f"s_add_u32 s{sT0}, s{sT0}, {WS_IN}")
    IB = 108
    for k in range(8):
        if k: e(f"s_add_u32 s{sT0}, s{sT0}, 1536")
        for b_ in range(2):
            d = IB + 32*b_ + 4*k
            e(f"buffer_load_dwordx4 v[{d}:{d+3}], v{VA[4]}, {srd(SRD_WS)}, s{sT0} offen offset:{768*b_} sc1")
    e("s_waitcnt vmcnt(0)")
    for b_ in range(2):
        ib = IB + 32*b_
        for k in range(1, 8):
            for i in (0, 2):
                e(f"v_pk_add_f32 v[{ib+i}:{ib+i+1}], v[{ib+i}:{ib+i+1}], v[{ib+4*k+i}:{ib+4*k+i+1}]")
        e(f"v_cvt_pk_bf16_f32 v{T[4+2*b_]}, v{ib}, v{ib+1}")
        e(f"v_cvt_pk_bf16_f32 v{T[5+2*b_]}, v{ib+2}, v{ib+3}")
    for i in range(4): e(f"v_min_u32 v{T[4+i]}, -2, v{T[4+i]}")
    e(f"v_lshlrev_b32 v{T[0]}, 3, v{VLANE}")
    e(f"v_cmp_gt_u32 vcc, 48, v{VLANE}")
    e(f"s_and_saveexec_b64 s[{sT2}:{sT3}], vcc")
    e(f"ds_write_b64 v{T[0]}, v[{T[4]}:{T[5]}] offset:{L_QS}")
    e(f"ds_write_b64 v{T[0]}, v[{T[6]}:{T[7]}] offset:{L_QS+384}")
    e("s_mov_b64 exec, -1")
    stamp()
    if stamps and not prog:
        write_stamps(1)
        e("s_mov_b64 exec, -1")
    A.label("L_q_skip"); A.fence()
    nstamp[0] = 1
    for _ in range(wdelay // 100): e("s_sleep 100")
    if wskew:
        e(f"s_mov_b32 s{sT0}, 0")
        A.label("L_skew"); A.fence()
        e(f"s_cmp_ge_u32 s{sT0}, s{sW}")
        e("s_cbranch_scc1 L_skew_done")
        for _ in range(wskew // 100): e("s_sleep 100")
        e(f"s_add_u32 s{sT0}, s{sT0}, 1")
        e("s_branch L_skew")
        A.label("L_skew_done"); A.fence()
    e(f"s_cmp_lg_u32 s{sW}, 1")
    e("s_cbranch_scc1 L_all_skip")
    e(f"v_and_b32 v{T[0]}, 31, v{VLANE}")
    e(f"v_lshlrev_b32 v{T[0]}, 3, v{T[0]}")
    spin_begin("L_all_spin")
    e(f"buffer_load_dword v{T[1]}, v{T[0]}, {srd(SRD_DBG)}, 0 offen sc1")
    e("s_waitcnt vmcnt(0)")
    e(f"v_cmp_gt_u32 vcc, 8, v{T[1]}")
    spin_end("L_all_spin", "L_all_done", slp=64)
    e(f"v_mov_b32 v{T[1]}, 1")
    e(f"ds_write_b32 v{VZERO}, v{T[1]} offset:{L_CTL+8}")
    A.label("L_all_skip"); A.fence()
    WB_ = 32
    FRG = 128
    gA, gB, lA, lB = VA[0], VA[1], VA[2], VA[3]
    e(f"s_mul_i32 s{sRS}, s{sW}, 12288")
    e(f"s_add_u32 s{sRS}, s{sRS}, {L_W}")
    e(f"s_cmp_ge_u32 s{sMEM}, 5")
    e("s_cbranch_scc1 L_wadr_mlp")
    def wo_addr(g_, l_, add):
        u, cb, u3 = T[0], T[1], T[2]
        e(f"v_lshrrev_b32 v{u}, 2, v{VLANE}")
        if add: e(f"v_add_u32 v{u}, {add}, v{u}")
        e(f"v_and_b32 v{cb}, 3, v{VLANE}")
        e(f"v_mul_u32_u24 v{u3}, 43, v{u}")
        e(f"v_lshrrev_b32 v{u3}, 7, v{u3}")
        e(f"v_mul_u32_u24 v{T[3]}, 3, v{u3}")
        e(f"v_sub_u32 v{T[3]}, v{u}, v{T[3]}")
        e(f"v_lshlrev_b32 v{T[3]}, 6, v{T[3]}")
        e(f"v_lshl_add_u32 v{T[3]}, v{u3}, 3, v{T[3]}")
        e(f"v_add_u32 v{T[3]}, s{sT0}, v{T[3]}")
        e(f"v_mul_u32_u24 v{g_}, 1280, v{T[3]}")
        e(f"v_lshl_add_u32 v{g_}, v{cb}, 4, v{g_}")
        e(f"v_add_u32 v{g_}, s{sT1}, v{g_}")
        e(f"v_lshrrev_b32 v{T[3]}, 1, v{cb}")
        e(f"v_mul_u32_u24 v{T[3]}, 6, v{T[3]}")
        e(f"v_lshrrev_b32 v{u3}, 2, v{u}")
        e(f"v_add_u32 v{T[3]}, v{T[3]}, v{u3}")
        e(f"v_lshlrev_b32 v{l_}, 10, v{T[3]}")
        e(f"v_and_b32 v{u3}, 3, v{u}")
        e(f"v_lshl_add_u32 v{l_}, v{u3}, 8, v{l_}")
        e(f"v_and_b32 v{u3}, 1, v{cb}")
        e(f"v_lshl_add_u32 v{l_}, v{u3}, 7, v{l_}")
        e(f"v_add_u32 v{l_}, s{sRS}, v{l_}")
    e(f"s_lshl_b32 s{sT0}, s{sXG}, 2")
    e(f"s_add_u32 s{sT0}, s{sT0}, s{sW}")
    e(f"s_mul_i32 s{sT0}, s{sT0}, 192")
    e(f"s_lshl_b32 s{sT1}, s{sCS}, 6")
    wo_addr(gA, lA, 0); wo_addr(gB, lB, 16)
    e(f"s_movk_i32 s{sT2}, 64"); e(f"s_movk_i32 s{sT3}, 32")
    e(f"s_movk_i32 s{sOFF}, 1280")
    e("s_branch L_wadr_done")
    A.label("L_wadr_mlp"); A.fence()
    e(f"v_lshrrev_b32 v{T[0]}, 1, v{VLANE}")
    e(f"s_mul_i32 s{sT0}, s{sW}, 20")
    e(f"v_add_u32 v{T[0]}, s{sT0}, v{T[0]}")
    e(f"v_mul_u32_u24 v{gA}, 24576, v{T[0]}")
    e(f"v_and_b32 v{T[1]}, 1, v{VLANE}")
    e(f"v_lshl_add_u32 v{gA}, v{T[1]}, 4, v{gA}")
    e(f"s_lshl_b32 s{sT0}, s{sF0}, 1")
    e(f"v_add_u32 v{gA}, s{sT0}, v{gA}")
    e(f"v_lshlrev_b32 v{lA}, 7, v{VLANE}")
    e(f"v_add_u32 v{lA}, s{sRS}, v{lA}")
    e(f"v_cmp_le_u32 vcc, 20, v{VLANE}")
    e(f"v_cndmask_b32 v{T[0]}, 0, 1, vcc")
    e(f"v_mul_u32_u24 v{T[1]}, 20, v{T[0]}")
    e(f"v_sub_u32 v{T[1]}, v{VLANE}, v{T[1]}")
    e(f"v_mul_u32_u24 v{gB}, 10240, v{T[0]}")
    e(f"v_lshl_add_u32 v{gB}, v{T[1]}, 4, v{gB}")
    e(f"s_mul_i32 s{sT0}, s{sF0}, 1280")
    e(f"s_mul_i32 s{sT1}, s{sW}, 320")
    e(f"s_add_u32 s{sT0}, s{sT0}, s{sT1}")
    e(f"v_add_u32 v{gB}, s{sT0}, v{gB}")
    e(f"v_lshrrev_b32 v{lB}, 1, v{T[1]}")
    e(f"v_lshlrev_b32 v{lB}, 9, v{lB}")
    e(f"v_lshl_add_u32 v{lB}, v{T[0]}, 8, v{lB}")
    e(f"v_and_b32 v{T[1]}, 1, v{T[1]}")
    e(f"v_lshl_add_u32 v{lB}, v{T[1]}, 7, v{lB}")
    e(f"s_add_u32 s{sT0}, s{sRS}, 6144")
    e(f"v_add_u32 v{lB}, s{sT0}, v{lB}")
    e(f"s_movk_i32 s{sT2}, 40"); e(f"s_movk_i32 s{sT3}, 40")
    e(f"s_movk_i32 s{sOFF}, 3072")
    A.label("L_wadr_done"); A.fence()
    for rnd, (g_, l_, sN, sr) in enumerate(((gA, lA, sT2, SRD_WA), (gB, lB, sT3, SRD_WB))):
        e(f"v_cmp_gt_u32 vcc, s{sN}, v{VLANE}")
        e("s_mov_b64 exec, vcc")
        for kk in range(8):
            if kk == 0: so = "0"
            else:
                if rnd == 0: e(f"s_mul_i32 s{sT0}, s{sOFF}, {kk}")
                else: e(f"s_movk_i32 s{sT0}, {1280*kk}")
                so = f"s{sT0}"
            e(f"buffer_load_dwordx4 v[{WB_+4*kk}:{WB_+4*kk+3}], v{g_}, {srd(sr)}, {so} offen {wflags}")
            if wpace == 1 and kk % 2 == 1 and kk < 7: e("s_waitcnt vmcnt(1)")
            if wpace == 2 and kk < 7: e("s_waitcnt vmcnt(0)")
            if wpace == 3 and kk < 7:
                e("s_waitcnt vmcnt(0)"); e("s_sleep 16")
        e("s_waitcnt vmcnt(0)")
        for i in range(4):
            tb = WB_ + 32 + 8*i
            for kp in range(4):
                e(f"v_perm_b32 v{tb+kp}, v{WB_+4*(2*kp+1)+i}, v{WB_+4*(2*kp)+i}, s{sPLO}")
                e(f"v_perm_b32 v{tb+4+kp}, v{WB_+4*(2*kp+1)+i}, v{WB_+4*(2*kp)+i}, s{sPHI}")
            e(f"ds_write_b128 v{l_}, v[{tb}:{tb+3}] offset:{32*i}")
            e(f"ds_write_b128 v{l_}, v[{tb+4}:{tb+7}] offset:{32*i+16}")
        e("s_mov_b64 exec, -1")
        e("s_waitcnt lgkmcnt(0)")
    e(f"s_cmp_lg_u32 s{sW}, 0")
    e("s_cbranch_scc1 L_ml_skip")
    e(f"v_lshlrev_b32 v{VA[5]}, 10, v{VC}")
    for b_ in range(2):
        spin_begin(f"L_ml1{b_}_spin")
        e(f"ds_read_b128 v[{T[0]}:{T[3]}], v{VZERO} offset:{L_ML + 32*b_}")
        e(f"ds_read_b128 v[{T[4]}:{T[7]}], v{VZERO} offset:{L_ML + 32*b_ + 16}")
        e(f"ds_read_b32 v{T[8]}, v{VZERO} offset:{L_CTL+20}")
        e("s_waitcnt lgkmcnt(0)")
        if b_ == 1: e(f"v_subrev_u32 v{T[8]}, 1, v{T[8]}")
        sentinel_check(rng(T[0], 9), T[9])
        spin_end(f"L_ml1{b_}_spin", f"L_ml1{b_}_done", slp=32)
        mw = [T[0], T[2], T[4], T[6]]; lw = [T[1], T[3], T[5], T[7]]; tmp = [T[10], T[11], T[12], T[13]]
        e(f"v_max3_f32 v{T[8]}, v{mw[0]}, v{mw[1]}, v{mw[2]}")
        e(f"v_max_f32 v{T[8]}, v{T[8]}, v{mw[3]}")
        for i in range(4):
            e(f"v_sub_f32 v{tmp[i]}, v{mw[i]}, v{T[8]}")
            e(f"v_mul_f32 v{tmp[i]}, {LOG2E}, v{tmp[i]}")
            e(f"v_exp_f32 v{tmp[i]}, v{tmp[i]}")
        e(f"v_mul_f32 v{T[9]}, v{tmp[0]}, v{lw[0]}")
        for i in range(1, 4): e(f"v_fmac_f32 v{T[9]}, v{tmp[i]}, v{lw[i]}")
        e(f"s_lshl_b32 s{sT0}, s{sLID}, 10")
        e(f"s_add_u32 s{sT0}, s{sT0}, {768 + 8*b_}")
        e("s_mov_b64 exec, 1")
        e(f"buffer_store_dwordx2 v[{T[8]}:{T[9]}], v{VZERO}, {srd(SRD_WS)}, s{sT0} offen sc1")
        e("s_mov_b64 exec, -1")
        e(f"s_lshl_b32 s{sT0}, s{sH}, 13")
        e(f"s_add_u32 s{sT0}, s{sT0}, {768 + 8*b_}")
        e("s_sleep 64")
        spin_begin(f"L_ml2{b_}_spin")
        e("s_mov_b64 exec, 0xff")
        e(f"buffer_load_dwordx2 v[{T[8]}:{T[9]}], v{VA[5]}, {srd(SRD_WS)}, s{sT0} offen sc1")
        e("s_waitcnt vmcnt(0)")
        e(f"v_max_u32 v{T[10]}, v{T[8]}, v{T[9]}")
        e(f"v_cmp_eq_u32 vcc, -1, v{T[10]}")
        spin_end(f"L_ml2{b_}_spin", f"L_ml2{b_}_done", slp=mlsleep)
        e(f"v_mov_b32 v{T[10]}, v{T[8]}")
        for ctl in ("quad_perm:[1,0,3,2]", "quad_perm:[2,3,0,1]", "row_half_mirror"):
            e(f"v_max_f32_dpp v{T[10]}, v{T[10]}, v{T[10]} {ctl} row_mask:0xf bank_mask:0xf")
        e(f"v_sub_f32 v{T[8]}, v{T[8]}, v{T[10]}")
        e(f"v_mul_f32 v{T[8]}, {LOG2E}, v{T[8]}")
        e(f"v_exp_f32 v{T[8]}, v{T[8]}")
        e(f"v_mul_f32 v{T[9]}, v{T[9]}, v{T[8]}")
        for ctl in ("quad_perm:[1,0,3,2]", "quad_perm:[2,3,0,1]", "row_half_mirror"):
            e(f"v_add_f32_dpp v{T[9]}, v{T[9]}, v{T[9]} {ctl} row_mask:0xf bank_mask:0xf")
        e(f"v_rcp_f32 v{T[9]}, v{T[9]}")
        for i in range(4):
            e(f"v_sub_f32 v{T[12+i]}, v{mw[i]}, v{T[10]}")
            e(f"v_mul_f32 v{T[12+i]}, {LOG2E}, v{T[12+i]}")
            e(f"v_exp_f32 v{T[12+i]}, v{T[12+i]}")
            e(f"v_mul_f32 v{T[12+i]}, v{T[12+i]}, v{T[9]}")
            e(f"v_min_u32 v{T[12+i]}, -2, v{T[12+i]}")
        e("s_mov_b64 exec, 1")
        e(f"ds_write_b128 v{VZERO}, v[{T[12]}:{T[15]}] offset:{L_F + 16*b_}")
        e("s_mov_b64 exec, -1")
    A.label("L_ml_skip"); A.fence()
    i_, g4 = VA[0], VA[1]
    e(f"v_and_b32 v{i_}, 15, v{VLANE}")
    e(f"v_lshrrev_b32 v{g4}, 4, v{VLANE}")
    e(f"v_add_u32 v{T[0]}, s{sRS}, v{VL16}")
    if dry:
        e(f"s_mov_b32 s{sDRY}, 1"); e(f"s_mov_b32 s{sOOB}, {OOB}"); e(f"s_mov_b32 s{sLIM}, 1")
    def barrier(lbl):
        if dry:
            e(f"s_cmp_lg_u32 s{sDRY}, 0")
            e(f"s_cbranch_scc1 {lbl}")
        e("s_barrier")
        if dry:
            A.label(lbl); A.fence()
    def wait_progress(lbl):
        e(f"s_mov_b32 s{sDRY}, 0"); e(f"s_mov_b32 s{sOOB}, 0"); e(f"s_mov_b32 s{sLIM}, {spin_limit}")
        e("s_mov_b64 exec, -1")
        e("s_waitcnt vmcnt(0) lgkmcnt(0)")
        spin_begin(lbl)
        e(f"ds_read_b32 v{T[0]}, v{VZERO} offset:{L_CTL+12}")
        e("s_waitcnt lgkmcnt(0)")
        e(f"v_cmp_eq_u32 vcc, 0, v{T[0]}")
        spin_end(lbl, lbl + "_done", slp=2)
    e(f"s_cmp_ge_u32 s{sMEM}, 5")
    e("s_cbranch_scc1 L_mlp")
    for f in range(12):
        e(f"ds_read_b128 v[{FRG+4*f}:{FRG+4*f+3}], v{T[0]} offset:{f*1024}")
    VOW, VBA, VYW, VM = VA[2], VA[3], VA[5], 96
    e(f"s_mul_i32 s{sT1}, s{sW}, 768")
    e(f"v_lshlrev_b32 v{VOW}, 3, v{VLANE}")
    e(f"v_add_u32 v{VOW}, s{sT1}, v{VOW}")
    e(f"v_and_b32 v{T[1]}, 1, v{i_}")
    e(f"v_mul_u32_u24 v{VBA}, 384, v{T[1]}")
    e(f"v_lshl_add_u32 v{VBA}, v{g4}, 4, v{VBA}")
    e(f"v_add_u32 v{VBA}, s{sT1}, v{VBA}")
    e(f"v_lshlrev_b32 v{VYW}, 7, v{T[1]}")
    e(f"v_lshl_add_u32 v{VYW}, v{g4}, 4, v{VYW}")
    e(f"s_lshl_b32 s{sT1}, s{sW}, 8")
    e(f"v_add_u32 v{VYW}, s{sT1}, v{VYW}")
    e(f"v_mov_b32 v{VM}, 768")
    col, VOUT, VXH, VYS = 97, 98, 99, 100
    e(f"v_and_b32 v{col}, 1, v{VLANE}")
    e(f"v_lshlrev_b32 v{col}, 2, v{col}")
    e(f"v_lshrrev_b32 v{T[1]}, 5, v{VLANE}")
    e(f"v_lshl_add_u32 v{col}, v{T[1]}, 1, v{col}")
    e(f"v_bfe_u32 v{T[1]}, v{VLANE}, 4, 1")
    e(f"v_add_u32 v{col}, v{col}, v{T[1]}")
    e(f"s_lshl_b32 s{sT0}, s{sR}, 3")
    e(f"v_add_u32 v{col}, s{sT0}, v{col}")
    e(f"v_lshlrev_b32 v{VOUT}, 1, v{col}")
    e(f"buffer_load_ushort v{VXH}, v{VOUT}, {srd(SRD_X)}, 0 offen")
    e(f"v_bfe_u32 v{T[3]}, v{VLANE}, 1, 3")
    e(f"v_mul_u32_u24 v{VYS}, 5120, v{T[3]}")
    e(f"v_lshl_add_u32 v{VYS}, v{col}, 2, v{VYS}")
    e(f"v_cmp_ne_u32 vcc, 0, v{T[3]}")
    e(f"v_mov_b32 v{T[3]}, {OOB}")
    e("s_waitcnt vmcnt(0) lgkmcnt(0)")
    e(f"v_cndmask_b32 v{VOUT}, v{VOUT}, v{T[3]}, vcc")
    e(f"v_lshlrev_b32 v{VXH}, 16, v{VXH}")
    PO = 32
    e(f"s_lshl_b32 s{sT0}, s{sXG}, 2")
    e(f"s_add_u32 s{sT0}, s{sT0}, s{sW}")
    e(f"s_lshl_b32 s{sOFF}, s{sT0}, 13")
    def a_loads(base):
        for s_ in range(8):
            so = sT0 if s_ < 4 else sT1
            e(f"buffer_load_dwordx4 v[{base+4*s_}:{base+4*s_+3}], v{VA[4]}, {srd(SRD_WS)}, s{so} offen offset:{1024*(s_&3)} sc1")
    def a_cons(base):
        o = T[8]
        for st in (1, 2, 4):
            for k in range(0, 8, 2*st):
                for i in (0, 2):
                    a_, b2 = base+4*k+i, base+4*(k+st)+i
                    d_ = o + i if st == 4 else a_
                    e(f"v_pk_add_f32 v[{d_}:{d_+1}], v[{a_}:{a_+1}], v[{b2}:{b2+1}]")
    def a_write(b_):
        e(f"v_cvt_pk_bf16_f32 v{T[4]}, v{T[8]}, v{T[9]}")
        e(f"v_cvt_pk_bf16_f32 v{T[5]}, v{T[10]}, v{T[11]}")
        e("s_mov_b32 exec_hi, 0xffff")
        e(f"ds_write_b64 v{VOW}, v[{T[4]}:{T[5]}] offset:{L_OB + 384*b_}")
        e("s_mov_b64 exec, -1")
    spin_begin("L_mid_spin")
    e(f"ds_read_b32 v{T[0]}, v{VZERO} offset:{L_F+16}")
    e(f"ds_read_b32 v{T[1]}, v{VZERO} offset:{L_CTL+8}")
    e("s_waitcnt lgkmcnt(0)")
    e(f"v_subrev_u32 v{T[1]}, 1, v{T[1]}")
    e(f"v_max_u32 v{T[0]}, v{T[0]}, v{T[1]}")
    e(f"v_cmp_eq_u32 vcc, -1, v{T[0]}")
    spin_end("L_mid_spin", "L_mid_done", slp=32)
    e(f"v_lshlrev_b32 v{T[2]}, 10, v{VC}")
    e(f"s_add_u32 s{sT0}, s{sOFF}, 776")
    spin_begin("L_p0_spin")
    e("s_mov_b64 exec, 0xff")
    e(f"buffer_load_dword v{T[0]}, v{T[2]}, {srd(SRD_WS)}, s{sT0} offen sc1")
    e("s_waitcnt vmcnt(0)")
    e(f"v_cmp_eq_u32 vcc, -1, v{T[0]}")
    spin_end("L_p0_spin", "L_p0_done", slp=mlsleep)
    e("s_mov_b64 exec, -1")
    if early0:
        e(f"s_add_u32 s{sT0}, s{sOFF}, {WS_P0}")
        e(f"s_add_u32 s{sT1}, s{sT0}, 4096")
        a_loads(PO)
        e("s_waitcnt vmcnt(0)")
        a_cons(PO); a_write(0)
        e(f"s_mov_b32 s{sT0}, s{sOFF}")
        e(f"s_add_u32 s{sT1}, s{sT0}, 4096")
        wait_progress("L_wo_wait0")
    else:
        e(f"s_add_u32 s{sT0}, s{sOFF}, {WS_P0}")
        e(f"s_add_u32 s{sT1}, s{sT0}, 4096")
        wait_progress("L_wo_wait0")
        a_loads(208)
        e(f"s_mov_b32 s{sT0}, s{sOFF}")
        e(f"s_add_u32 s{sT1}, s{sT0}, 4096")
        a_loads(PO)
        e("s_waitcnt vmcnt(8)")
        a_cons(208); a_write(0)
        e("s_waitcnt vmcnt(0)")
        a_cons(PO)
        e(f"v_pk_add_f32 v[{T[0]}:{T[1]}], v[{T[8]}:{T[9]}], v[{T[10]}:{T[11]}]")
        e(f"v_cmp_u_f32 vcc, v{T[0]}, v{T[1]}")
        e("s_cbranch_vccz L_a_ok")
    poll("a", a_loads, PO, a_cons, rng(T[8], 4), T[0])
    a_write(1)
    BF = 180
    for ks in range(6):
        e(f"ds_read_b128 v[{BF+4*ks}:{BF+4*ks+3}], v{VBA} offset:{L_OB + 64*ks}")
    D0, D1 = T[8], T[12]
    for ks in range(6):
        e(f"s_waitcnt lgkmcnt({5-ks})")
        for tl, D in ((0, D0), (1, D1)):
            c = "0" if ks == 0 else f"v[{D}:{D+3}]"
            f = FRG + 4*(6*tl + ks)
            e(f"v_mfma_f32_16x16x32_bf16 v[{D}:{D+3}], v[{f}:{f+3}], v[{BF+4*ks}:{BF+4*ks+3}], {c}")
    e("s_mov_b32 exec_lo, 0x00030003")
    e("s_mov_b32 exec_hi, 0x00030003")
    e(f"ds_write_b128 v{VYW}, v[{D0}:{D0+3}] offset:{L_YR}")
    e(f"ds_write_b128 v{VYW}, v[{D1}:{D1+3}] offset:{L_YR+64}")
    e("s_mov_b64 exec, -1")
    e("s_waitcnt lgkmcnt(0)")
    barrier("L_bar1")
    e(f"s_cmp_lg_u32 s{sW}, 0")
    e("s_cbranch_scc1 L_wo_exit")
    e(f"v_lshlrev_b32 v{T[0]}, 4, v{i_}")
    YS = 64
    for hh_ in range(4):
        e(f"ds_read_b128 v[{YS+4*hh_}:{YS+4*hh_+3}], v{T[0]} offset:{L_YR + 256*hh_}")
    e("s_waitcnt lgkmcnt(0)")
    for i in (0, 2):
        e(f"v_pk_add_f32 v[{YS+i}:{YS+i+1}], v[{YS+i}:{YS+i+1}], v[{YS+4+i}:{YS+4+i+1}]")
        e(f"v_pk_add_f32 v[{YS+8+i}:{YS+8+i+1}], v[{YS+8+i}:{YS+8+i+1}], v[{YS+12+i}:{YS+12+i+1}]")
    for i in (0, 2): e(f"v_pk_add_f32 v[{YS+i}:{YS+i+1}], v[{YS+i}:{YS+i+1}], v[{YS+8+i}:{YS+8+i+1}]")
    e(f"buffer_store_dwordx4 v[{YS}:{YS+3}], v{VYA}, {srd(SRD_WS)}, s{sOOB} offen sc1")
    stamp()
    Yr = 80
    e(f"s_mov_b32 s{sT0}, {WS_Y}")
    spin_begin("L_b_spin")
    e(f"buffer_load_dword v{Yr}, v{VYS}, {srd(SRD_WS)}, s{sT0} offen sc1")
    e("s_waitcnt vmcnt(0)")
    e(f"v_cmp_eq_u32 vcc, -1, v{Yr}")
    spin_end("L_b_spin", "L_b_done", slp=sl["b"])
    e(f"v_add_f32_dpp v{Yr}, v{Yr}, v{Yr} quad_perm:[2,3,0,1] row_mask:0xf bank_mask:0xf")
    e(f"v_mov_b32 v{T[6]}, v{Yr}")
    e(f"v_add_f32_dpp v{Yr}, v{T[6]}, v{T[6]} row_shr:4 row_mask:0xf bank_mask:0xa")
    e(f"v_add_f32_dpp v{Yr}, v{T[6]}, v{T[6]} row_shl:4 row_mask:0xf bank_mask:0x5")
    e(f"v_add_f32_dpp v{Yr}, v{Yr}, v{Yr} row_ror:8 row_mask:0xf bank_mask:0xf")
    bf16r(Yr)
    e(f"v_add_f32 v{Yr}, v{VXH}, v{Yr}")
    bf16r(Yr)
    stamp()
    Zr = 84
    e(f"s_mul_i32 s{sT0}, s{sR}, 3072")
    e(f"s_add_u32 s{sT0}, s{sT0}, {WS_Z}")
    def c_loads(base):
        for i in range(3):
            e(f"buffer_load_dwordx4 v[{base+4*i}:{base+4*i+3}], v{VL16}, {srd(SRD_WS)}, s{sT0} offen offset:{1024*i} sc1")
    def c_cons(base):
        for i in (0, 2):
            e(f"v_pk_add_f32 v[{Zr+i}:{Zr+i+1}], v[{base+i}:{base+i+1}], v[{base+4+i}:{base+4+i+1}]")
            e(f"v_pk_add_f32 v[{Zr+i}:{Zr+i+1}], v[{Zr+i}:{Zr+i+1}], v[{base+8+i}:{base+8+i+1}]")
    poll("c", c_loads, 32, c_cons, rng(Zr, 4), T[0])
    y = Zr
    e(f"v_permlane32_swap_b32 v{y}, v{y+2}")
    e(f"v_permlane32_swap_b32 v{y+1}, v{y+3}")
    e(f"v_add_f32 v{y}, v{y}, v{y+2}")
    e(f"v_add_f32 v{y+1}, v{y+1}, v{y+3}")
    e(f"v_permlane16_swap_b32 v{y}, v{y+1}")
    e(f"v_add_f32 v{y}, v{y}, v{y+1}")
    for k in (8, 4, 2):
        e(f"v_add_f32_dpp v{y}, v{y}, v{y} row_ror:{k} row_mask:0xf bank_mask:0xf")
    bf16r(y)
    e(f"v_add_f32 v{y}, v{y}, v{Yr}")
    e(f"v_cvt_pk_bf16_f32 v{y}, v{y}, v{y}")
    e(f"buffer_store_short v{y}, v{VOUT}, {srd(SRD_OUT)}, s{sOOB} offen")
    stamp()
    A.label("L_wo_exit"); A.fence()
    if dry:
        e(f"s_cmp_eq_u32 s{sDRY}, 0")
        e("s_cbranch_scc1 L_fin")
        wait_progress("L_wo_wait")
        e("s_branch L_wo_tail")
    else:
        e("s_branch L_fin")
    A.label("L_mlp"); A.fence()
    nstamp[0] = 1
    F1 = FRG; F2 = FRG + 24
    for ks in range(5):
        e(f"ds_read_b128 v[{F1+4*ks}:{F1+4*ks+3}], v{T[0]} offset:{ks*1024}")
    e(f"v_lshrrev_b32 v{T[3]}, 1, v{g4}")
    e(f"v_lshlrev_b32 v{T[3]}, 8, v{T[3]}")
    e(f"v_lshl_add_u32 v{T[3]}, v{i_}, 4, v{T[3]}")
    e(f"v_and_b32 v{T[4]}, 1, v{g4}")
    e(f"v_lshl_add_u32 v{T[3]}, v{T[4]}, 3, v{T[3]}")
    e(f"v_add_u32 v{T[3]}, s{sRS}, v{T[3]}")
    for tt in range(10):
        e(f"ds_read_b64 v[{F2+2*tt}:{F2+2*tt+1}], v{T[3]} offset:{6144 + tt*512}")
    VGA, VLW, VLR, VZA, VHR, VDW, VDR = VA[2], VA[3], VA[5], 96, 97, 98, 99
    XH = 100
    e(f"s_mul_i32 s{sT0}, s{sW}, 640")
    e(f"v_add_u32 v{VGA}, s{sT0}, v{VL16}")
    e(f"v_cmp_gt_u32 vcc, 40, v{VLANE}")
    e(f"v_mov_b32 v{T[1]}, {OOB}")
    e(f"v_cndmask_b32 v{VGA}, v{T[1]}, v{VGA}, vcc")
    e(f"v_cmp_eq_u32 vcc, 40, v{VLANE}")
    e(f"v_cndmask_b32 v{VGA}, v{VGA}, v{VZERO}, vcc")
    e(f"v_lshrrev_b32 v{T[1]}, 1, v{VGA}")
    e(f"buffer_load_dwordx2 v[{T[8]}:{T[9]}], v{T[1]}, {srd(SRD_X)}, 0 offen")
    e(f"buffer_load_dwordx2 v[{T[10]}:{T[11]}], v{T[1]}, {srd(SRD_X)}, 0 offen offset:1280")
    e(f"s_mul_i32 s{sT0}, s{sW}, 640")
    e(f"s_add_u32 s{sT0}, s{sT0}, {L_LN}")
    e(f"v_lshlrev_b32 v{VLW}, 3, v{VLANE}")
    e(f"v_add_u32 v{VLW}, s{sT0}, v{VLW}")
    e(f"v_and_b32 v{T[4]}, 1, v{i_}")
    e(f"v_mul_u32_u24 v{VLR}, 320, v{T[4]}")
    e(f"v_lshl_add_u32 v{VLR}, v{g4}, 4, v{VLR}")
    e(f"v_add_u32 v{VLR}, s{sT0}, v{VLR}")
    e(f"v_lshlrev_b32 v{VDR}, 6, v{T[4]}")
    e(f"v_lshl_add_u32 v{VDR}, v{g4}, 4, v{VDR}")
    e(f"s_lshl_b32 s{sT0}, s{sW}, 7")
    e(f"v_add_u32 v{VDW}, s{sT0}, v{VDR}")
    e(f"v_mul_u32_u24 v{VZA}, 80, v{i_}")
    e(f"v_lshrrev_b32 v{T[4]}, 1, v{g4}")
    e(f"v_add_u32 v{VZA}, v{VZA}, v{T[4]}")
    e(f"s_mul_i32 s{sT0}, s{sW}, 20")
    e(f"v_add_u32 v{VZA}, s{sT0}, v{VZA}")
    e(f"v_mul_u32_u24 v{VZA}, 3072, v{VZA}")
    e(f"v_and_b32 v{T[4]}, 1, v{g4}")
    e(f"v_lshl_add_u32 v{VZA}, v{T[4]}, 4, v{VZA}")
    e(f"s_lshl_b32 s{sT0}, s{sF0}, 1")
    e(f"s_add_u32 s{sT0}, s{sT0}, {WS_Z}")
    e(f"v_add_u32 v{VZA}, s{sT0}, v{VZA}")
    e(f"v_cmp_lt_u32 vcc, 1, v{i_}")
    e(f"v_mov_b32 v{T[4]}, {OOB}")
    e(f"v_cndmask_b32 v{VZA}, v{VZA}, v{T[4]}, vcc")
    e(f"v_lshlrev_b32 v{VHR}, 2, v{g4}")
    e(f"s_lshl_b32 s{sT0}, s{sW}, 4")
    e(f"v_add_u32 v{VHR}, s{sT0}, v{VHR}")
    e("s_waitcnt vmcnt(0) lgkmcnt(0)")
    for i in range(4):
        e(f"v_lshlrev_b32 v{XH+2*i}, 16, v{T[8+i]}")
        e(f"v_and_b32 v{XH+2*i+1}, s{sMASK}, v{T[8+i]}")
    if not dry: wait_progress("L_mlp_wait0")
    A.label("L_mlp_tail"); A.fence()
    YB = 108
    GA, GB = 32, 192
    def h_loads(base):
        for x in range(8):
            e(f"s_mov_b32 s{sT0}, {WS_Y + 5120*x}")
            for b_ in range(2):
                d = base + 8*x + 4*b_
                e(f"buffer_load_dwordx4 v[{d}:{d+3}], v{VGA}, {srd(SRD_WS)}, s{sT0} offen offset:{2560*b_} sc1")
    def h_cons(base):
        for st in (1, 2, 4):
            for x in range(0, 8, 2*st):
                for i in range(0, 8, 2):
                    a_, b2 = base+8*x+i, base+8*(x+st)+i
                    d_ = YB + i if st == 4 else a_
                    e(f"v_pk_add_f32 v[{d_}:{d_+1}], v[{a_}:{a_+1}], v[{b2}:{b2+1}]")
    poll("h", h_loads, GA, h_cons, rng(YB, 8), T[0])
    stamp()
    for i in range(0, 8, 2):
        e(f"v_cvt_pk_bf16_f32 v{YB+i+1}, v{YB+i}, v{YB+i+1}")
        e(f"v_lshlrev_b32 v{YB+i}, 16, v{YB+i+1}")
        e(f"v_and_b32 v{YB+i+1}, s{sMASK}, v{YB+i+1}")
        e(f"v_pk_add_f32 v[{YB+i}:{YB+i+1}], v[{YB+i}:{YB+i+1}], v[{XH+i}:{XH+i+1}]")
        e(f"v_cvt_pk_bf16_f32 v{YB+i+1}, v{YB+i}, v{YB+i+1}")
        e(f"v_lshlrev_b32 v{YB+i}, 16, v{YB+i+1}")
        e(f"v_and_b32 v{YB+i+1}, s{sMASK}, v{YB+i+1}")
    e(f"v_readlane_b32 s{sT2}, v{YB}, 40")
    e(f"v_readlane_b32 s{sT3}, v{YB+4}, 40")
    S1 = [T[4], T[5]]; S2 = [T[6], T[7]]; DD = 48
    for r_ in S1 + S2: e(f"v_mov_b32 v{r_}, 0")
    e("s_mov_b32 exec_lo, -1"); e("s_mov_b32 exec_hi, 0xff")
    for b_ in range(2):
        for i in range(4): e(f"v_subrev_f32 v{DD+4*b_+i}, s{sT2+b_}, v{YB+4*b_+i}")
    for b_ in range(2):
        d = DD + 4*b_
        e(f"v_add_f32 v{S1[b_]}, v{d}, v{d+1}")
        e(f"v_mul_f32 v{S2[b_]}, v{d}, v{d}")
    for b_ in range(2):
        d = DD + 4*b_
        e(f"v_add_f32 v{S1[b_]}, v{S1[b_]}, v{d+2}")
        e(f"v_fmac_f32 v{S2[b_]}, v{d+1}, v{d+1}")
    for b_ in range(2):
        d = DD + 4*b_
        e(f"v_add_f32 v{S1[b_]}, v{S1[b_]}, v{d+3}")
        e(f"v_fmac_f32 v{S2[b_]}, v{d+2}, v{d+2}")
    for b_ in range(2): e(f"v_fmac_f32 v{S2[b_]}, v{DD+4*b_+3}, v{DD+4*b_+3}")
    e("s_mov_b64 exec, -1")
    e(f"v_permlane32_swap_b32 v{S1[0]}, v{S2[0]}")
    e(f"v_permlane32_swap_b32 v{S1[1]}, v{S2[1]}")
    e(f"v_add_f32 v{S1[0]}, v{S1[0]}, v{S2[0]}")
    e(f"v_add_f32 v{S1[1]}, v{S1[1]}, v{S2[1]}")
    e(f"v_permlane16_swap_b32 v{S1[0]}, v{S1[1]}")
    e(f"v_add_f32 v{S1[0]}, v{S1[0]}, v{S1[1]}")
    for ctl in ("quad_perm:[1,0,3,2]", "quad_perm:[2,3,0,1]", "row_half_mirror", "row_mirror"):
        e(f"v_add_f32_dpp v{S1[0]}, v{S1[0]}, v{S1[0]} {ctl} row_mask:0xf bank_mask:0xf")
    e("s_mov_b32 exec_lo, 0x00010001"); e("s_mov_b32 exec_hi, 0x00010001")
    e(f"ds_write_b32 v{VHR}, v{S1[0]} offset:{L_H}")
    e("s_mov_b64 exec, -1")
    e("s_waitcnt lgkmcnt(0)")
    barrier("L_bar2")
    for w in range(4):
        e(f"ds_read_b128 v[{DD+4*w}:{DD+4*w+3}], v{VZERO} offset:{L_H + 16*w}")
    e(f"v_mov_b32 v{T[8]}, s{sT2}")
    e(f"v_mov_b32 v{T[9]}, s{sT3}")
    e(f"s_mov_b32 s{sT0}, {hex(f32(1.0/640))}")
    e(f"v_mov_b32 v{T[10]}, s{sT0}")
    e("s_waitcnt lgkmcnt(0)")
    for i in (0, 2):
        e(f"v_pk_add_f32 v[{DD+i}:{DD+i+1}], v[{DD+i}:{DD+i+1}], v[{DD+4+i}:{DD+4+i+1}]")
        e(f"v_pk_add_f32 v[{DD+8+i}:{DD+8+i+1}], v[{DD+8+i}:{DD+8+i+1}], v[{DD+12+i}:{DD+12+i+1}]")
    for i in (0, 2): e(f"v_pk_add_f32 v[{DD+i}:{DD+i+1}], v[{DD+i}:{DD+i+1}], v[{DD+8+i}:{DD+8+i+1}]")
    for i in (0, 2): e(f"v_pk_mul_f32 v[{DD+i}:{DD+i+1}], v[{DD+i}:{DD+i+1}], v[{T[10]}:{T[11]}] op_sel_hi:[1,0]")
    e(f"v_pk_add_f32 v[{T[0]}:{T[1]}], v[{DD}:{DD+1}], v[{T[8]}:{T[9]}] neg_lo:[1,1] neg_hi:[1,1]")
    e(f"v_pk_fma_f32 v[{T[2]}:{T[3]}], v[{DD}:{DD+1}], v[{DD}:{DD+1}], v[{DD+2}:{DD+3}] neg_lo:[1,0,0] neg_hi:[1,0,0]")
    def bf16r2(a_):
        e(f"v_cvt_pk_bf16_f32 v{a_+1}, v{a_}, v{a_+1}")
        e(f"v_lshlrev_b32 v{a_}, 16, v{a_+1}")
        e(f"v_and_b32 v{a_+1}, s{sMASK}, v{a_+1}")
    for i in range(2): e(f"v_max_f32 v{T[2+i]}, 0, v{T[2+i]}")
    bf16r2(T[2]); bf16r2(T[0])
    for i in range(2): e(f"v_add_f32 v{T[2+i]}, {hex(f32(1e-5))}, v{T[2+i]}")
    bf16r2(T[2])
    for i in range(2): e(f"v_sqrt_f32 v{T[2+i]}, v{T[2+i]}")
    bf16r2(T[2])
    for i in range(2): e(f"v_rcp_f32 v{T[2+i]}, v{T[2+i]}")
    for b_ in range(2):
        for i in range(2):
            norm_pair(YB + 4*b_ + 2*i, b_, dst=T[8 + 2*b_ + i])
    e(f"v_cmp_gt_u32 vcc, 40, v{VLANE}")
    e("s_mov_b64 exec, vcc")
    e(f"ds_write_b64 v{VLW}, v[{T[8]}:{T[9]}]")
    e(f"ds_write_b64 v{VLW}, v[{T[10]}:{T[11]}] offset:320")
    e("s_mov_b64 exec, -1")
    BF = 72
    for ks in range(5):
        e(f"ds_read_b128 v[{BF+4*ks}:{BF+4*ks+3}], v{VLR} offset:{64*ks}")
    D = T[8]
    for ks in range(5):
        e(f"s_waitcnt lgkmcnt({4-ks})")
        c = "0" if ks == 0 else f"v[{D}:{D+3}]"
        e(f"v_mfma_f32_16x16x32_bf16 v[{D}:{D+3}], v[{F1+4*ks}:{F1+4*ks+3}], v[{BF+4*ks}:{BF+4*ks+3}], {c}")
    e("s_mov_b32 exec_lo, 0x00030003")
    e("s_mov_b32 exec_hi, 0x00030003")
    e(f"ds_write_b128 v{VDW}, v[{D}:{D+3}] offset:{L_DX}")
    e("s_mov_b64 exec, -1")
    e("s_waitcnt lgkmcnt(0)")
    barrier("L_bar3")
    for w in range(4):
        e(f"ds_read_b128 v[{YB+4*w}:{YB+4*w+3}], v{VDR} offset:{L_DX + 128*w}")
    e("s_waitcnt lgkmcnt(0)")
    for i in (0, 2):
        e(f"v_pk_add_f32 v[{YB+i}:{YB+i+1}], v[{YB+i}:{YB+i+1}], v[{YB+4+i}:{YB+4+i+1}]")
        e(f"v_pk_add_f32 v[{YB+8+i}:{YB+8+i+1}], v[{YB+8+i}:{YB+8+i+1}], v[{YB+12+i}:{YB+12+i+1}]")
    for i in (0, 2): e(f"v_pk_add_f32 v[{YB+i}:{YB+i+1}], v[{YB+i}:{YB+i+1}], v[{YB+8+i}:{YB+8+i+1}]")
    D = YB
    for i in range(4): bf16r(D+i)
    for i in range(4): e(f"v_mul_f32 v{T[i]}, {hex(f32(-1.4426950408889634))}, v{D+i}")
    for i in range(4): e(f"v_exp_f32 v{T[i]}, v{T[i]}")
    for i in range(4): e(f"v_add_f32 v{T[i]}, 1.0, v{T[i]}")
    for i in range(4): e(f"v_rcp_f32 v{T[i]}, v{T[i]}")
    for i in range(4): e(f"v_mul_f32 v{D+i}, v{D+i}, v{T[i]}")
    e(f"v_cvt_pk_bf16_f32 v{T[4]}, v{D}, v{D+1}")
    e(f"v_cvt_pk_bf16_f32 v{T[5]}, v{D+2}, v{D+3}")
    ZD = 180
    for tt in range(10):
        e(f"v_mfma_f32_16x16x16_bf16 v[{ZD+4*tt}:{ZD+4*tt+3}], v[{F2+2*tt}:{F2+2*tt+1}], v[{T[4]}:{T[5]}], 0")
    for tt in range(10):
        e(f"s_add_u32 s{sT0}, s{sOOB}, {tt*6144}")
        e(f"buffer_store_dwordx4 v[{ZD+4*tt}:{ZD+4*tt+3}], v{VZA}, {srd(SRD_WS)}, s{sT0} offen sc1")
    stamp()
    if dry:
        e(f"s_cmp_eq_u32 s{sDRY}, 0")
        e("s_cbranch_scc1 L_fin")
        wait_progress("L_mlp_wait")
        e("s_branch L_mlp_tail")
    A.label("L_fin"); A.fence()
    if stamps and not prog:
        e(f"s_cmp_lg_u32 s{sW}, 0")
        e("s_cbranch_scc1 L_end")
        e("s_waitcnt lgkmcnt(0)")
        e(f"s_lshl_b32 s{sT0}, s2, 7")
        e(f"s_add_u32 s{sT0}, s{sT0}, {WS_STAMP + 64 + 32}")
        e("s_mov_b64 exec, 1")
        for i in range(1, 4):
            e(f"v_mov_b32 v{T[2]}, s{sST+2*i}")
            e(f"v_mov_b32 v{T[3]}, s{sST+2*i+1}")
            e(f"buffer_store_dwordx2 v[{T[2]}:{T[3]}], v{VZERO}, {srd(SRD_WS)}, s{sT0} offen offset:{8*i}")
            e("s_nop 1")
    A.label("L_end")
    A.raw("    s_endpgm")
    A.raw(f""".section .rodata,"a"
.p2align 6
.amdhsa_kernel {NAME}
  .amdhsa_next_free_vgpr 256
  .amdhsa_next_free_sgpr 102
  .amdhsa_accum_offset 256
  .amdhsa_group_segment_fixed_size 0
  .amdhsa_kernarg_size 88
  .amdhsa_user_sgpr_count 2
  .amdhsa_user_sgpr_kernarg_segment_ptr 1
  .amdhsa_system_sgpr_workgroup_id_x 1
  .amdhsa_float_denorm_mode_32 3
.end_amdhsa_kernel""")
    return A.text()

if __name__ == "__main__":
    out = sys.argv[1] if len(sys.argv) > 1 else "sequential_preLN__mha_block_cached__dense_activation_silu__decode.s"
    kw = eval("dict(%s)" % sys.argv[2]) if len(sys.argv) > 2 else {}
    open(out, "w").write(gen(**kw))
```

```python
import sys, struct, os
from asmlib import Asm

NAME = "sequential_preLN__mha_block_cached__dense_activation_silu__decode_kernel"
HEADER = open(os.path.join(os.path.dirname(os.path.abspath(__file__)), "header.txt")).read()
def f32(x): return struct.unpack('<I', struct.pack('<f', x))[0]

WS_PART = 0x000000
WS_Y    = 0x040000
WS_Z    = 0x070000
WS_FB   = 0x0F0000
WS_IN   = 0x100000
WS_P0   = 0x180000
WS_STAMP= 0x300000
WS_SIZE = 0x400000
L_CTL  = 0
L_F    = 32
L_ML   = 64
L_QS   = 128
L_RED  = 1024
L_RQ   = 7168
L_OB   = 19712
L_YR   = 22784
L_H    = 23808
L_LN   = 24064
L_DX   = 26624
L_W    = 27136
LDS_BYTES = L_W + 4*12288
KVBYTES = 2*32*8192*384
OOB = WS_SIZE

def gen(depths=(5,6,7,9), thr=(-60,20,100), cp=18, fb=True, init=1, fbdelay=8, stamps=False, spin_limit=1 << 20, kvflags="nt", wflags="nt", sleep=1,
        wdelay=200, indelay=12, insleep=6, prog=False, cflags='sc1', rot=1, back=1, pol=None, early0=False, mlsleep=100, sl=dict(a=1, h=1, c=1, b=4)):
    dry = False; wpace = 1; wskew = 0; half = None; endn = 0
    stamps = stamps or prog
    A = Asm(); e = A.e
    A.raw(HEADER.rstrip('\n'))
    A.raw(f"; @launch grid=(256,1,1) block=(512,1,1) lds={LDS_BYTES}")
    A.raw('.amdgcn_target "amdgcn-amd-amdhsa--gfx950"\n.text\n.globl %s\n.p2align 8\n.type %s,@function\n%s:' % (NAME, NAME, NAME))
    VLANE, VKV, VZERO = 1, 2, 3
    T = list(range(4, 20))
    VG, VC, VMW, VLW_ = 20, 21, 22, 23
    SRD_X, SRD_K, SRD_V, SRD_WQ, SRD_WA, SRD_OUT, SRD_DBG, SRD_WS, SRD_WB = 28, 32, 36, 40, 44, 48, 52, 56, 96
    sW, sH, sB, sSPL, sMEM, sKVB, sOFF = 60, 61, 62, 63, 64, 65, 66
    sMASK, sR, sRS, sT0, sT1, sT2, sT3, sSPIN, sF0 = 67, 68, 69, 70, 71, 72, 73, 74, 75
    sPLO, sPHI, sXG, sCS = 76, 77, 78, 79
    sLID, sDRY, sOOB, sLIM = 3, 26, 27, 100
    sLVL, sNOW, sPREV, sLAG = 101, 20, 22, 23
    depth = depths[init]; DMAX = depths[-1]
    sST = 80
    def srd(s): return f"s[{s}:{s+3}]"
    nstamp = [0]
    def stamp(p=False):
        if not stamps: return
        if prog and not p and nstamp[0] > 0: return
        i = nstamp[0]; nstamp[0] += 1
        assert i < 8, i
        e(f"s_memrealtime s[{sST+2*i}:{sST+2*i+1}]")
    LOG2E = hex(f32(1.4426950408889634))
    SCALE = hex(f32(192 ** -0.5))
    e("s_cmp_ge_u32 s2, 256")
    e("s_cbranch_scc1 L_end")
    e("s_load_dwordx16 s[4:19], s[0:1], 0")
    e("s_load_dwordx4 s[20:23], s[0:1], 64")
    e("s_load_dwordx2 s[24:25], s[0:1], 80")
    if stamps:
        for i in range(1, 8): e(f"s_mov_b64 s[{sST+2*i}:{sST+2*i+1}], 0")
    stamp()
    e(f"v_lshrrev_b32 v{T[0]}, 6, v0")
    e(f"v_and_b32 v{VLANE}, 63, v0")
    e(f"v_readfirstlane_b32 s{sW}, v{T[0]}")
    e(f"v_lshrrev_b32 v{VG}, 3, v{VLANE}")
    e(f"v_and_b32 v{VC}, 7, v{VLANE}")
    e(f"v_mov_b32 v{VZERO}, 0")
    e(f"v_lshlrev_b32 v{T[1]}, 4, v{VLANE}")
    e(f"v_cmp_gt_u32 vcc, 2, v{VLANE}")
    e(f"v_mov_b32 v{T[4]}, -1")
    e(f"v_cndmask_b32 v{T[4]}, v{T[4]}, v{VZERO}, vcc")
    for i in range(1, 4): e(f"v_mov_b32 v{T[4+i]}, v{T[4]}")
    e(f"ds_write_b128 v{T[1]}, v[{T[4]}:{T[7]}]")
    e(f"s_and_b32 s{sXG}, s2, 7")
    e(f"s_lshr_b32 s{sT1}, s2, 3")
    e(f"s_lshr_b32 s{sT2}, s{sT1}, 3")
    e(f"s_lshl_b32 s{sH}, s{sXG}, 2")
    e(f"s_add_u32 s{sH}, s{sH}, s{sT2}")
    e(f"s_and_b32 s{sMEM}, s{sT1}, 7")
    e(f"s_lshr_b32 s{sB}, s{sMEM}, 2")
    e(f"s_and_b32 s{sSPL}, s{sMEM}, 3")
    e(f"s_mul_i32 s{sCS}, s{sT2}, 5")
    e(f"s_add_u32 s{sCS}, s{sCS}, s{sMEM}")
    e(f"s_lshl_b32 s{sLID}, s{sH}, 3")
    e(f"s_add_u32 s{sLID}, s{sLID}, s{sMEM}")
    e(f"s_mov_b32 s{sMASK}, 0xffff0000")
    e(f"s_mov_b32 s{sLIM}, {spin_limit}")
    e(f"s_mov_b32 s{sDRY}, 0")
    e(f"s_mov_b32 s{sOOB}, 0")
    e(f"s_mul_i32 s{sKVB}, s{sH}, 3145728")
    e(f"s_lshl_b32 s{sT0}, s{sMEM}, 2")
    e(f"s_and_b32 s{sT1}, s{sW}, 3")
    e(f"s_add_u32 s{sT0}, s{sT0}, s{sT1}")
    e(f"s_mul_i32 s{sT0}, s{sT0}, 3072")
    e(f"s_add_u32 s{sKVB}, s{sKVB}, s{sT0}")
    e(f"v_mul_u32_u24 v{VKV}, 384, v{VG}")
    e(f"v_lshl_add_u32 v{VKV}, v{VC}, 4, v{VKV}")
    e("s_waitcnt lgkmcnt(0)")
    def mk(s, p, size):
        e(f"s_mov_b32 s{s}, s{p}"); e(f"s_mov_b32 s{s+1}, s{p+1}"); e(f"s_mov_b32 s{s+2}, {size}"); e(f"s_mov_b32 s{s+3}, 0x20000")
    mk(SRD_K, 6, KVBYTES); mk(SRD_X, 4, 2560); mk(SRD_WQ, 10, 640*6144*2); mk(SRD_WS, 24, WS_SIZE)
    mk(SRD_V, 8, KVBYTES); mk(SRD_OUT, 20, 2560); mk(SRD_DBG, 22, 256)
    e(f"s_cmp_lt_u32 s{sMEM}, 5")
    e(f"s_cselect_b32 s{SRD_WA}, s12, s16"); e(f"s_cselect_b32 s{SRD_WA+1}, s13, s17")
    e(f"s_cselect_b32 s{SRD_WB}, s12, s18"); e(f"s_cselect_b32 s{SRD_WB+1}, s13, s19")
    e(f"s_mov_b32 s{SRD_WA+2}, {640*1536*2}")
    e(f"s_cselect_b32 s{SRD_WA+2}, {6144*640*2}, s{SRD_WA+2}")
    e(f"s_mov_b32 s{SRD_WB+2}, s{SRD_WA+2}")
    e(f"s_mov_b32 s{SRD_WA+3}, 0x20000"); e(f"s_mov_b32 s{SRD_WB+3}, 0x20000")
    e(f"s_cmp_lt_u32 s{sW}, 4")
    e("s_cbranch_scc1 L_helper")

    def wave_reduce(v, op, tmp, n=64):
        for ctl in ("quad_perm:[1,0,3,2]", "quad_perm:[2,3,0,1]", "row_half_mirror", "row_mirror"):
            e(f"v_{op}_dpp v{v}, v{v}, v{v} {ctl} row_mask:0xf bank_mask:0xf")
        e(f"v_mov_b32 v{tmp}, v{v}")
        e(f"v_permlane16_swap_b32 v{v}, v{tmp}")
        e(f"v_{op} v{v}, v{v}, v{tmp}")
        if n == 64:
            e(f"v_mov_b32 v{tmp}, v{v}")
            e(f"v_permlane32_swap_b32 v{v}, v{tmp}")
            e(f"v_{op} v{v}, v{v}, v{tmp}")
    def group_reduce(v, op, tmp):
        e(f"v_{op}_dpp v{v}, v{v}, v{v} row_ror:8 row_mask:0xf bank_mask:0xf")
        e(f"v_mov_b32 v{tmp}, v{v}")
        e(f"v_permlane16_swap_b32 v{v}, v{tmp}")
        e(f"v_{op} v{v}, v{v}, v{tmp}")
        e(f"v_mov_b32 v{tmp}, v{v}")
        e(f"v_permlane32_swap_b32 v{v}, v{tmp}")
        e(f"v_{op} v{v}, v{v}, v{tmp}")
    def bf16r(v):
        e(f"v_cvt_pk_bf16_f32 v{v}, v{v}, v{v}")
        e(f"v_lshlrev_b32 v{v}, 16, v{v}")
    def spin_begin(lbl):
        e(f"s_mov_b32 s{sSPIN}, 0")
        A.label(lbl); A.fence()
    def spin_end(lbl, done_lbl, slp=None):
        slp = sleep if slp is None else slp
        e(f"s_cbranch_vccz {done_lbl}")
        e(f"s_add_u32 s{sSPIN}, s{sSPIN}, 1")
        e(f"s_cmp_ge_u32 s{sSPIN}, s{sLIM}")
        e(f"s_cbranch_scc1 {done_lbl}")
        if slp: e(f"s_sleep {slp}")
        e(f"s_branch {lbl}")
        A.label(done_lbl); A.fence()
    def sentinel_check(regs, tmp):
        n = len(regs)
        e(f"v_max3_u32 v{tmp}, v{regs[0]}, v{regs[1]}, v{regs[2]}")
        i = 3
        while i + 1 < n:
            e(f"v_max3_u32 v{tmp}, v{tmp}, v{regs[i]}, v{regs[i+1]}"); i += 2
        if i < n: e(f"v_max_u32 v{tmp}, v{tmp}, v{regs[i]}")
        e(f"v_cmp_eq_u32 vcc, -1, v{tmp}")
    def rng(a, n): return list(range(a, a+n))
    def poll(name, loads, setA, consume, res, tmp):
        spin_begin(f"L_{name}_spin")
        loads(setA)
        e("s_waitcnt vmcnt(0)")
        consume(setA)
        cur = list(res)
        if len(cur) == 8:
            e(f"v_pk_add_f32 v[{tmp}:{tmp+1}], v[{cur[0]}:{cur[1]}], v[{cur[2]}:{cur[3]}]")
            e(f"v_pk_add_f32 v[{tmp+2}:{tmp+3}], v[{cur[4]}:{cur[5]}], v[{cur[6]}:{cur[7]}]")
            e(f"v_pk_add_f32 v[{tmp}:{tmp+1}], v[{tmp}:{tmp+1}], v[{tmp+2}:{tmp+3}]")
        else:
            e(f"v_pk_add_f32 v[{tmp}:{tmp+1}], v[{cur[0]}:{cur[1]}], v[{cur[2]}:{cur[3]}]")
        e(f"v_cmp_u_f32 vcc, v{tmp}, v{tmp+1}")
        spin_end(f"L_{name}_spin", f"L_{name}_ok", slp=sl[name])
    def ln_stats(HBx):
        s_, t_, q_ = T[0], T[1], T[2]
        e(f"v_pk_add_f32 v[{T[4]}:{T[5]}], v[{HBx}:{HBx+1}], v[{HBx+2}:{HBx+3}]")
        for i in range(4, 20, 2): e(f"v_pk_add_f32 v[{T[4]}:{T[5]}], v[{T[4]}:{T[5]}], v[{HBx+i}:{HBx+i+1}]")
        e(f"v_add_f32 v{s_}, v{T[4]}, v{T[5]}")
        wave_reduce(s_, "add_f32", t_, n=32)
        e(f"v_mul_f32 v{s_}, {hex(f32(-1.0/640))}, v{s_}")
        for i in range(0, 20, 2):
            e(f"v_pk_add_f32 v[{T[6]}:{T[7]}], v[{HBx+i}:{HBx+i+1}], v[{s_}:{s_+1}] op_sel_hi:[1,0]")
            if i == 0: e(f"v_pk_mul_f32 v[{T[4]}:{T[5]}], v[{T[6]}:{T[7]}], v[{T[6]}:{T[7]}]")
            else: e(f"v_pk_fma_f32 v[{T[4]}:{T[5]}], v[{T[6]}:{T[7]}], v[{T[6]}:{T[7]}], v[{T[4]}:{T[5]}]")
        e(f"v_add_f32 v{q_}, v{T[4]}, v{T[5]}")
        wave_reduce(q_, "add_f32", T[3], n=32)
        e(f"v_mul_f32 v{q_}, {hex(f32(1.0/640))}, v{q_}")
        bf16r(s_); bf16r(q_)
        e(f"v_add_f32 v{q_}, {hex(f32(1e-5))}, v{q_}")
        bf16r(q_)
        e(f"v_sqrt_f32 v{q_}, v{q_}")
        bf16r(q_)
        e(f"v_rcp_f32 v{q_}, v{q_}")
        e(f"v_mov_b32 v{T[1]}, v{T[0]}")
        e(f"v_mov_b32 v{T[3]}, v{T[2]}")
        e(f"v_permlane32_swap_b32 v{T[0]}, v{T[1]}")
        e(f"v_permlane32_swap_b32 v{T[2]}, v{T[3]}")
    def norm_pair(a, b_, dst=None):
        sel = "op_sel_hi:[1,0]" if b_ == 0 else "op_sel:[0,1] op_sel_hi:[1,1]"
        e(f"v_pk_add_f32 v[{a}:{a+1}], v[{a}:{a+1}], v[{T[0]}:{T[1]}] {sel}")
        e(f"v_cvt_pk_bf16_f32 v{a+1}, v{a}, v{a+1}")
        e(f"v_lshlrev_b32 v{a}, 16, v{a+1}")
        e(f"v_and_b32 v{a+1}, s{sMASK}, v{a+1}")
        e(f"v_pk_mul_f32 v[{a}:{a+1}], v[{a}:{a+1}], v[{T[2]}:{T[3]}] {sel}")
        if dst is not None:
            e(f"v_cvt_pk_bf16_f32 v{dst}, v{a}, v{a+1}")
        else:
            e(f"v_cvt_pk_bf16_f32 v{a+1}, v{a}, v{a+1}")
            e(f"v_lshlrev_b32 v{a}, 16, v{a+1}")
            e(f"v_and_b32 v{a+1}, s{sMASK}, v{a+1}")
    def write_stamps(slot):
        e("s_waitcnt lgkmcnt(0)")
        e(f"s_lshl_b32 s{sT0}, s2, 7")
        e(f"s_add_u32 s{sT0}, s{sT0}, {WS_STAMP + slot*64}")
        e("s_mov_b64 exec, 1")
        for i in range(8):
            e(f"v_mov_b32 v{T[2]}, s{sST+2*i}")
            e(f"v_mov_b32 v{T[3]}, s{sST+2*i+1}")
            e(f"buffer_store_dwordx2 v[{T[2]}:{T[3]}], v{VZERO}, {srd(SRD_WS)}, s{sT0} offen offset:{8*i}")
            e("s_nop 1")

    Q = 24; ACC = 36; SC = 60; RING = 92; VRED = 252; VRP = 253
    NT = 32
    slots = [RING + 4*i for i in range(40)]
    early = [ACC + 4*i for i in range(6)] + [SC + 8 + 4*i for i in range(6)]
    order = [(k, b_, t, j) for b_ in range(2) for k in 'KV' for t in range(NT) for j in range(3)]
    pos = {L: i for i, L in enumerate(order)}
    free = early + slots
    npre = 51
    slot = {}; tick = {}; m = [0]; last_off = [None]; landed = [0]
    A.vm_issued = 0
    def issue_one():
        L = order[m[0]]; m[0] += 1
        kind, b_, t, j = L
        r = free.pop(0); slot[L] = r
        if last_off[0] != (kind, b_, t):
            e(f"s_add_u32 s{sOFF}, s{sCS}, {t}")
            e(f"s_and_b32 s{sOFF}, s{sOFF}, 31")
            e(f"s_mul_i32 s{sOFF}, s{sOFF}, 98304")
            e(f"s_add_u32 s{sOFF}, s{sOFF}, s{sKVB if b_ == 0 else sF0}")
            last_off[0] = (kind, b_, t)
        sr = SRD_K if kind == 'K' else SRD_V
        tick[L] = e(f"buffer_load_dwordx4 v[{r}:{r+3}], v{VKV}, {srd(sr)}, s{sOFF} offen offset:{j*128} {kvflags if not (pol and (kind + str(b_)) in pol) else ''}")
    def can_issue(): return m[0] < len(order) and free
    def wait_for(L):
        while L not in tick: issue_one()
        if tick[L] > landed[0]:
            A.wait_vm(tick[L]); landed[0] = tick[L]
    nthr = [0]
    def pump():
        if not can_issue(): return
        infl = A.vm_issued - landed[0]
        if infl >= depths[0]:
            if infl >= DMAX:
                tk = A.vm_issued - (DMAX - 1)
                A.wait_vm(tk); landed[0] = tk
            if fb:
                nthr[0] += 1; lbl = f"L_go{nthr[0]}"
                for lv in (3, 2, 1):
                    e(f"s_cmp_ge_u32 s{sLVL}, {lv}")
                    e(f"s_cbranch_scc1 {lbl}")
                    e(f"s_waitcnt vmcnt({depths[lv-1]-1})")
                for I_ in A.hist[-7:]: I_.states = 0
                A.label(lbl)
            elif A.vm_issued - landed[0] >= depth:
                tk = A.vm_issued - (depth - 1)
                A.wait_vm(tk); landed[0] = tk
        issue_one()
    def release(L):
        if slot[L] >= RING: free.append(slot[L])
    e(f"s_mul_i32 s{sCS}, s{sH}, {rot}")
    e(f"s_add_u32 s{sF0}, s{sKVB}, 100663296")
    for _ in range(depth): issue_one()
    e("s_barrier")
    e(f"s_mov_b32 s{sLVL}, {init}")
    e(f"s_mov_b32 s{sNOW}, 0")
    sOK = sPLO; sLAST = sPHI
    e(f"s_mov_b32 s{sOK}, 0")
    e(f"s_mov_b32 s{sR}, 0")
    e(f"s_lshr_b32 s{sT0}, s2, 7"); e(f"s_lshl_b32 s{sT0}, s{sT0}, 3"); e(f"s_add_u32 s{sT0}, s{sT0}, s{sXG}"); e(f"s_lshl_b32 s{sT0}, s{sT0}, 2")
    e(f"s_bfe_u32 s{sT1}, s2, 0x40003")
    e(f"s_cmp_eq_u32 s{sT1}, 3"); e(f"s_cselect_b32 s{sT0}, s{sT0}, {OOB}")
    e(f"s_cmp_eq_u32 s{sW}, 4"); e(f"s_cselect_b32 s{sT0}, s{sT0}, {OOB}")
    e(f"v_mov_b32 v{VRP}, s{sT0}")
    e(f"v_mov_b32 v{T[2]}, {OOB}")
    e(f"v_cmp_eq_u32 vcc, 0, v{VLANE}")
    e(f"v_cndmask_b32 v{VRP}, v{T[2]}, v{VRP}, vcc")
    e(f"v_mul_u32_u24 v{VRED}, 96, v{VC}")
    e(f"v_mul_u32_u24 v{T[2]}, 12, v{VG}")
    e(f"v_add_u32 v{VRED}, v{VRED}, v{T[2]}")
    e(f"s_and_b32 s{sSPL}, s{sW}, 3")
    e(f"s_mul_i32 s{sRS}, s{sSPL}, 768")
    e(f"v_add_u32 v{VRED}, s{sRS}, v{VRED}")
    e(f"v_lshlrev_b32 v{T[14]}, 4, v{VLANE}")
    e(f"v_cmp_gt_u32 vcc, 48, v{VLANE}")
    e(f"v_mov_b32 v{T[15]}, {OOB}")
    e(f"v_cndmask_b32 v{T[15]}, v{T[15]}, v{T[14]}, vcc")
    e(f"v_mov_b32 v{T[13]}, 1")
    for _ in range(npre - depth): pump()
    ncons = [0]
    fbs = dict(ncp=0, due1=None, due=None)
    LOOK = DMAX if fb else depth
    def step(L):
        ncons[0] += 1
        n = ncons[0]
        if m[0] - pos[L] > LOOK:
            if n % 3 == 0: pump()
        else:
            while can_issue() and m[0] - pos[L] <= LOOK: pump()
        wait_for(L)
    def feedback():
        if not fb: return
        n = ncons[0]
        if fbs['due1'] == n:
            e("s_waitcnt lgkmcnt(0)")
            e(f"v_mov_b32 v254, s{sNOW}")
            e(f"s_mov_b32 s{sT0}, {WS_FB + fbs['ncp']*128}")
            e(f"buffer_store_dword v254, v{VRP}, {srd(SRD_WS)}, s{sT0} offen sc1")
            if fbs['ncp'] > back:
                e(f"s_cmp_eq_u32 s{sOK}, 0")
                e(f"s_cbranch_scc1 L_fb{fbs['ncp']}a")
                e(f"s_load_dwordx16 s[4:19], s[24:25], {WS_FB + (fbs['ncp']-back)*128}")
                A.label(f"L_fb{fbs['ncp']}a")
            e(f"ds_read_b32 v255, v{VZERO} offset:{L_CTL+8}")
            fbs['due'] = n + fbdelay
        if fbs['due'] == n:
            e("s_waitcnt lgkmcnt(0)")
            if fbs['ncp'] > back:
                e(f"s_cmp_eq_u32 s{sOK}, 0")
                e(f"s_cbranch_scc1 L_fb{fbs['ncp']}b")
                e(f"s_mov_b32 s{sLAG}, 0")
                for i in range(16):
                    e(f"s_min_u32 s{4+i}, s{4+i}, s{sNOW}")
                    e(f"s_sub_u32 s{4+i}, s{sPREV}, s{4+i}")
                    e(f"s_add_u32 s{sLAG}, s{sLAG}, s{4+i}")
                e(f"s_ashr_i32 s{sLAG}, s{sLAG}, 4")
                e(f"s_mov_b32 s{sLVL}, 0")
                for lv, th in enumerate(thr):
                    e(f"s_cmp_ge_i32 s{sLAG}, {th}"); e(f"s_cselect_b32 s{sLVL}, {lv+1}, s{sLVL}")
                A.label(f"L_fb{fbs['ncp']}b"); A.fence()
                e("s_nop 2")
            e(f"v_readfirstlane_b32 s{sOK}, v255")
        if n >= 84 and n % cp == cp - 1 and n + 2*DMAX + 12 < len(order):
            fbs['ncp'] += 1
            assert fbs['ncp'] < 32
            if back == 1: e(f"s_mov_b32 s{sPREV}, s{sNOW}")
            else:
                e(f"s_mov_b32 s{sPREV}, s{sR}"); e(f"s_mov_b32 s{sR}, s{sNOW}")
            e(f"s_memrealtime s[{sNOW}:{sNOW+1}]")
            fbs['due1'] = n + 1
    def flush(b_):
        a = ACC
        for k in range(12): e(f"v_permlane32_swap_b32 v{a+k}, v{a+k+12}")
        for k in range(12): e(f"v_add_f32 v{a+k}, v{a+k}, v{a+k+12}")
        if b_ == 0: pump()
        for k in range(6): e(f"v_permlane16_swap_b32 v{a+k}, v{a+k+6}")
        for k in range(6): e(f"v_add_f32 v{a+k}, v{a+k}, v{a+k+6}")
        for k in range(3): e(f"v_add_f32_dpp v{a+12+k}, v{a+k}, v{a+k} row_ror:8 row_mask:0xf bank_mask:0x3")
        for k in range(3): e(f"v_add_f32_dpp v{a+12+k}, v{a+3+k}, v{a+3+k} row_ror:8 row_mask:0xf bank_mask:0xc")
        for k in range(3): e(f"v_mul_f32 v{a+12+k}, v{a+12+k}, v{VMW}")
        for k in range(3): e(f"ds_write_b32 v{VRED}, v{a+12+k} offset:{L_RED + 3072*b_ + 4*k}")
        e("s_mov_b64 exec, 1")
        e(f"ds_add_rtn_u32 v{T[12]}, v{VZERO}, v{T[13]} offset:{L_CTL + (4 if b_ == 0 else 16)}")
        e("s_mov_b64 exec, -1")
        if b_ == 0: pump()
        e(f"s_lshl_b32 s{sT1}, s{sLID}, 10")
        if b_ == 0: e(f"s_add_u32 s{sT1}, s{sT1}, {WS_P0}")
        e("s_waitcnt lgkmcnt(0)")
        e(f"v_readfirstlane_b32 s{sLAST}, v{T[12]}")
        e(f"s_cmp_lg_u32 s{sLAST}, 3")
        if b_ == 0: e(f"s_cselect_b32 s{sT1}, {OOB}, s{sT1}")
        e(f"s_cbranch_scc1 L_fl{b_}")
        for w in range(4):
            e(f"ds_read_b128 v[{ACC+4*w}:{ACC+4*w+3}], v{T[14]} offset:{L_RED + 3072*b_ + w*768}")
        e("s_waitcnt lgkmcnt(0)")
        for i in (0, 2):
            e(f"v_pk_add_f32 v[{ACC+i}:{ACC+i+1}], v[{ACC+i}:{ACC+i+1}], v[{ACC+4+i}:{ACC+4+i+1}]")
            e(f"v_pk_add_f32 v[{ACC+8+i}:{ACC+8+i+1}], v[{ACC+8+i}:{ACC+8+i+1}], v[{ACC+12+i}:{ACC+12+i+1}]")
        for i in (0, 2): e(f"v_pk_add_f32 v[{ACC+i}:{ACC+i+1}], v[{ACC+i}:{ACC+i+1}], v[{ACC+8+i}:{ACC+8+i+1}]")
        if b_ == 0:
            A.label("L_fl0"); A.fence()
            return e(f"buffer_store_dwordx4 v[{ACC}:{ACC+3}], v{T[15]}, {srd(SRD_WS)}, s{sT1} offen sc1")
        e(f"buffer_store_dwordx4 v[{ACC}:{ACC+3}], v{T[15]}, {srd(SRD_WS)}, s{sT1} offen sc1")
        e(f"ds_write_b32 v{VZERO}, v{T[13]} offset:{L_CTL+12}")
        if stamps:
            stamp()
            write_stamps(0)
        A.label("L_fl1"); A.fence()
    tk_p0 = None; p0_flagged = False
    for L in order:
        kind, b_, t, j = L
        if prog and j == 0 and (kind, b_, t) in (('K',0,24),('V',0,8),('V',0,24),('K',1,8),('K',1,24),('V',1,8),('V',1,24)): stamp(True)
        if kind == 'K':
            if t == 0 and j == 0:
                e(f"v_lshlrev_b32 v{T[8]}, 4, v{VC}")
                spin_begin(f"L_ql{b_}_spin")
                for jj in range(3):
                    e(f"ds_read_b128 v[{Q+4*jj}:{Q+4*jj+3}], v{T[8]} offset:{L_QS + 384*b_ + 128*jj}")
                e("s_waitcnt lgkmcnt(0)")
                sentinel_check(rng(Q, 12), T[9])
                spin_end(f"L_ql{b_}_spin", f"L_ql{b_}_done")
                if b_ == 0: stamp()
            step(L)
            r = slot[L]
            for i in range(4):
                c = "0" if i == 0 else f"v{T[j]}"
                e(f"v_dot2_f32_bf16 v{T[j]}, v{r+i}, v{Q+4*j+i}, {c}")
            release(L)
            feedback()
            if tk_p0 is not None and not p0_flagged and landed[0] >= tk_p0:
                e(f"s_cmp_lg_u32 s{sLAST}, 3")
                e("s_cbranch_scc1 L_p0f")
                e(f"ds_write_b32 v{VZERO}, v{T[13]} offset:{L_CTL+20}")
                A.label("L_p0f")
                p0_flagged = True
            if j == 2:
                sc = SC + t
                assert all(not (slot[x] <= sc < slot[x]+4) for x in order[pos[L]+1:] if x in slot), "score reg busy"
                e(f"v_add_f32 v{sc}, v{T[0]}, v{T[1]}")
                e(f"v_add_f32 v{sc}, v{sc}, v{T[2]}")
                for ctl in ("quad_perm:[1,0,3,2]", "quad_perm:[2,3,0,1]", "row_half_mirror"):
                    e(f"v_add_f32_dpp v{sc}, v{sc}, v{sc} {ctl} row_mask:0xf bank_mask:0xf")
                bf16r(sc)
                e(f"v_mul_f32 v{sc}, {SCALE}, v{sc}")
                bf16r(sc)
                if t == 0: e(f"v_mov_b32 v{VMW}, v{sc}")
                else: e(f"v_max_f32 v{VMW}, v{VMW}, v{sc}")
            if t == NT-1 and j == 2:
                if b_ == 1: stamp()
                group_reduce(VMW, "max_f32", T[1])
        else:
            if j == 0 and t < 8:
                for t2 in range(4*t, 4*t+4):
                    sc = SC + t2
                    e(f"v_sub_f32 v{sc}, v{sc}, v{VMW}")
                    e(f"v_mul_f32 v{sc}, {LOG2E}, v{sc}")
                    e(f"v_exp_f32 v{sc}, v{sc}")
                    if t2 == 0: e(f"v_mov_b32 v{VLW_}, v{sc}")
                    else: e(f"v_add_f32 v{VLW_}, v{VLW_}, v{sc}")
            if t == 8 and j == 0:
                group_reduce(VLW_, "add_f32", T[8])
                e(f"s_lshl_b32 s{sT0}, s{sSPL}, 3")
                e(f"v_mov_b32 v{T[8]}, s{sT0}")
                e(f"ds_write_b64 v{T[8]}, v[{VMW}:{VLW_}] offset:{L_ML + 32*b_}")
            if t == NT-3 and j == 1:
                e(f"s_lshl_b32 s{sT0}, s{sSPL}, 2")
                e(f"v_mov_b32 v{T[8]}, s{sT0}")
                spin_begin(f"L_mx{b_}_spin")
                e(f"ds_read_b32 v{VMW}, v{T[8]} offset:{L_F + 16*b_}")
                e(f"ds_read_b32 v{T[12]}, v{VZERO} offset:{L_CTL+8}")
                e("s_waitcnt lgkmcnt(0)")
                e(f"v_subrev_u32 v{T[12]}, 1, v{T[12]}")
                e(f"v_max_u32 v{T[12]}, v{T[12]}, v{VMW}")
                e(f"v_cmp_eq_u32 vcc, -1, v{T[12]}")
                spin_end(f"L_mx{b_}_spin", f"L_mx{b_}_done")
            step(L)
            r = slot[L]
            for i in range(4):
                lo, hi = T[(2*i) % 8], T[(2*i+1) % 8]
                e(f"v_lshlrev_b32 v{lo}, 16, v{r+i}")
                e(f"v_and_b32 v{hi}, s{sMASK}, v{r+i}")
                k = ACC + 8*j + 2*i
                op = "v_mul_f32" if t == 0 else "v_fmac_f32"
                e(f"{op} v{k}, v{SC+t}, v{lo}"); e(f"{op} v{k+1}, v{SC+t}, v{hi}")
            release(L)
            feedback()
            if t == NT-1 and j == 2:
                if b_ == 0: tk_p0 = flush(0)
                else:
                    stamp(); flush(1)
    assert p0_flagged
    e("s_endpgm")

    A.label("L_helper"); A.fence()
    nstamp[0] = 1
    e("s_setprio 3")
    e(f"s_mov_b32 s{sPLO}, 0x05040100")
    e(f"s_mov_b32 s{sPHI}, 0x07060302")
    e(f"s_mul_i32 s{sR}, s{sH}, 5")
    e(f"s_add_u32 s{sR}, s{sR}, s{sMEM}")
    e(f"s_mul_i32 s{sF0}, s{sH}, 3")
    e(f"s_add_u32 s{sF0}, s{sF0}, s{sMEM}")
    e(f"s_sub_u32 s{sF0}, s{sF0}, 5")
    e(f"s_lshl_b32 s{sF0}, s{sF0}, 4")
    VL16 = 24; VYA = 25; VA = [26, 27, 28, 29, 30, 31]
    XS = 32
    XO = 42
    HB = 52
    LNV = 72
    QA = 92
    WQB = 108
    r_, c_ = T[0], T[1]
    e(f"v_cmp_le_u32 vcc, 24, v{VLANE}")
    e(f"v_cndmask_b32 v{r_}, 0, 1, vcc")
    e(f"v_mul_u32_u24 v{c_}, 24, v{r_}")
    e(f"v_sub_u32 v{c_}, v{VLANE}, v{c_}")
    e(f"s_mul_i32 s{sT0}, s{sMEM}, 80")
    e(f"s_mul_i32 s{sT1}, s{sW}, 20")
    e(f"s_add_u32 s{sT0}, s{sT0}, s{sT1}")
    e(f"v_mul_u32_u24 v{T[2]}, 10, v{r_}")
    e(f"v_add_u32 v{T[2]}, s{sT0}, v{T[2]}")
    e(f"v_lshlrev_b32 v{VA[0]}, 1, v{T[2]}")
    e(f"v_mul_u32_u24 v{VA[1]}, 40, v{VLANE}")
    e(f"buffer_load_dwordx4 v[{XS}:{XS+3}], v{VA[1]}, {srd(SRD_X)}, 0 offen")
    e(f"buffer_load_dwordx4 v[{XS+4}:{XS+7}], v{VA[1]}, {srd(SRD_X)}, 0 offen offset:16")
    e(f"buffer_load_dwordx2 v[{XS+8}:{XS+9}], v{VA[1]}, {srd(SRD_X)}, 0 offen offset:32")
    XOa = [44, 48]; XOb = [42, 43]
    for b_ in range(2):
        e(f"buffer_load_dwordx4 v[{XOa[b_]}:{XOa[b_]+3}], v{VA[0]}, {srd(SRD_X)}, 0 offen offset:{1280*b_}")
        e(f"buffer_load_dword v{XOb[b_]}, v{VA[0]}, {srd(SRD_X)}, 0 offen offset:{1280*b_+16}")
    e(f"v_mul_u32_u24 v{VA[2]}, 12288, v{T[2]}")
    e(f"v_lshl_add_u32 v{VA[2]}, v{c_}, 4, v{VA[2]}")
    e(f"s_mul_i32 s{sT0}, s{sH}, 384")
    e(f"v_add_u32 v{VA[2]}, s{sT0}, v{VA[2]}")
    e(f"v_cmp_gt_u32 vcc, 48, v{VLANE}")
    e(f"v_mov_b32 v{T[3]}, 0x7f000000")
    e(f"v_cndmask_b32 v{VA[2]}, v{T[3]}, v{VA[2]}, vcc")
    for i in range(10):
        if i: e(f"s_mov_b32 s{sOFF}, {i*12288}")
        so = f"s{sOFF}" if i else "0"
        e(f"buffer_load_dwordx4 v[{WQB+4*i}:{WQB+4*i+3}], v{VA[2]}, {srd(SRD_WQ)}, {so} offen {wflags}")
    e(f"v_mul_u32_u24 v{VA[3]}, 1536, v{r_}")
    e(f"v_lshl_add_u32 v{VA[3]}, v{c_}, 5, v{VA[3]}")
    e(f"s_mul_i32 s{sT0}, s{sW}, 3072")
    e(f"v_add_u32 v{VA[3]}, s{sT0}, v{VA[3]}")
    e(f"v_lshlrev_b32 v{VL16}, 4, v{VLANE}")
    e(f"v_mul_u32_u24 v{VYA}, 2560, v{VG}")
    e(f"v_lshl_add_u32 v{VYA}, v{VC}, 4, v{VYA}")
    e(f"s_mul_i32 s{sT0}, s{sXG}, 5120")
    e(f"s_lshl_b32 s{sT1}, s{sCS}, 7")
    e(f"s_add_u32 s{sT0}, s{sT0}, s{sT1}")
    e(f"s_add_u32 s{sT0}, s{sT0}, {WS_Y}")
    e(f"s_cmp_ge_u32 s{sMEM}, 5")
    e(f"s_cselect_b32 s{sT0}, {OOB}, s{sT0}")
    e(f"v_add_u32 v{VYA}, s{sT0}, v{VYA}")
    e(f"v_cmp_le_u32 vcc, 16, v{VLANE}")
    e(f"v_mov_b32 v{T[3]}, {OOB}")
    e(f"v_cndmask_b32 v{VYA}, v{VYA}, v{T[3]}, vcc")
    for i in range(4): e(f"v_mov_b32 v{T[4+i]}, -1")
    e(f"s_cmp_lg_u32 s{sW}, 3")
    e("s_cbranch_scc1 L_clr_done")
    e(f"s_mul_i32 s{sT1}, s{sR}, 3072")
    e(f"s_add_u32 s{sT1}, s{sT1}, {WS_Z}")
    e(f"s_cmp_ge_u32 s{sMEM}, 5")
    e(f"s_cselect_b32 s{sT1}, {OOB}, s{sT1}")
    for i in range(3):
        e(f"buffer_store_dwordx4 v[{T[4]}:{T[7]}], v{VL16}, {srd(SRD_WS)}, s{sT1} offen offset:{1024*i} {cflags}")
    e(f"s_lshl_b32 s{sT0}, s{sLID}, 10")
    e(f"buffer_store_dwordx4 v[{T[4]}:{T[7]}], v{VL16}, {srd(SRD_WS)}, s{sT0} offen {cflags}")
    e(f"buffer_store_dwordx4 v[{T[4]}:{T[7]}], v{VYA}, {srd(SRD_WS)}, 0 offen {cflags}")
    e(f"s_cmp_lg_u32 s{sLID}, 7")
    e("s_cbranch_scc1 L_clr_done")
    e(f"s_mov_b32 s{sT0}, {WS_FB}")
    for i in range(4):
        e(f"buffer_store_dwordx4 v[{T[4]}:{T[7]}], v{VL16}, {srd(SRD_WS)}, s{sT0} offen offset:{1024*i} {cflags}")
    A.label("L_clr_done"); A.fence()
    e("s_barrier")
    e(f"s_cmp_lg_u32 s{sW}, 3")
    e("s_cbranch_scc1 L_h3w")
    e("s_waitcnt vmcnt(0)")
    A.label("L_h3w"); A.fence()
    e("s_waitcnt vmcnt(10)")
    for i in range(10):
        e(f"v_lshlrev_b32 v{HB+2*i}, 16, v{XS+i}")
        e(f"v_and_b32 v{HB+2*i+1}, s{sMASK}, v{XS+i}")
    ln_stats(HB)
    for b_ in range(2):
        src = [XOa[b_]+i for i in range(4)] + [XOb[b_]]
        for i in range(5):
            a_ = LNV + 10*b_ + 2*i
            e(f"v_lshlrev_b32 v{a_}, 16, v{src[i]}")
            e(f"v_and_b32 v{a_+1}, s{sMASK}, v{src[i]}")
            norm_pair(a_, b_)
    for i in range(10):
        e(f"s_waitcnt vmcnt({9-i})")
        r = WQB + 4*i
        for d in range(4):
            lo, hi = T[(2*d) % 8 + 4], T[(2*d+1) % 8 + 4]
            e(f"v_lshlrev_b32 v{lo}, 16, v{r+d}")
            e(f"v_and_b32 v{hi}, s{sMASK}, v{r+d}")
            for b_ in range(2):
                k = QA + 8*b_ + 2*d; p = LNV + 10*b_ + i
                op = "v_mul_f32" if i == 0 else "v_fmac_f32"
                e(f"{op} v{k}, v{p}, v{lo}"); e(f"{op} v{k+1}, v{p}, v{hi}")
    e(f"v_cmp_gt_u32 vcc, 48, v{VLANE}")
    e(f"s_and_saveexec_b64 s[{sT2}:{sT3}], vcc")
    for b_ in range(2):
        e(f"ds_write_b128 v{VA[3]}, v[{QA+8*b_}:{QA+8*b_+3}] offset:{L_RQ + 768*b_}")
        e(f"ds_write_b128 v{VA[3]}, v[{QA+8*b_+4}:{QA+8*b_+7}] offset:{L_RQ + 768*b_ + 16}")
    e("s_mov_b64 exec, 1")
    e(f"v_mov_b32 v{T[0]}, 1")
    e(f"ds_add_rtn_u32 v{T[1]}, v{VZERO}, v{T[0]} offset:{L_CTL}")
    e("s_mov_b64 exec, -1")
    e("s_waitcnt lgkmcnt(0)")
    e(f"v_readfirstlane_b32 s{sT0}, v{T[1]}")
    e(f"v_cmp_gt_u32 vcc, 48, v{VLANE}")
    e(f"v_mov_b32 v{T[3]}, {OOB}")
    e(f"v_cndmask_b32 v{VA[4]}, v{T[3]}, v{VL16}, vcc")
    e(f"s_cmp_lg_u32 s{sT0}, 3")
    e("s_cbranch_scc1 L_q_skip")
    for b_ in range(2):
        for k in range(8):
            d = WQB + 32*b_ + 4*k
            e(f"ds_read_b128 v[{d}:{d+3}], v{VL16} offset:{L_RQ + (2*k + b_)*768}")
        e("s_waitcnt lgkmcnt(0)")
    for b_ in range(2):
        for st in (1, 2, 4):
            for k in range(0, 8, 2*st):
                for i in (0, 2):
                    a_, b2 = WQB+32*b_+4*k+i, WQB+32*b_+4*(k+st)+i
                    e(f"v_pk_add_f32 v[{a_}:{a_+1}], v[{a_}:{a_+1}], v[{b2}:{b2+1}]")
    e(f"s_mul_i32 s{sT0}, s{sLID}, 1536")
    e(f"s_add_u32 s{sT0}, s{sT0}, {WS_IN}")
    e(f"buffer_store_dwordx4 v[{WQB}:{WQB+3}], v{VA[4]}, {srd(SRD_WS)}, s{sT0} offen sc1")
    e(f"buffer_store_dwordx4 v[{WQB+32}:{WQB+35}], v{VA[4]}, {srd(SRD_WS)}, s{sT0} offen offset:768 sc1")
    stamp()
    e(f"s_lshl_b32 s{sT0}, s{sH}, 3")
    e(f"s_add_u32 s{sT2}, s22, s{sT0}")
    e(f"s_addc_u32 s{sT3}, s23, 0")
    e(f"s_mov_b32 s{sT1}, 1")
    e(f"v_lshlrev_b32 v{VA[5]}, 10, v{VLANE}")
    e(f"s_lshl_b32 s{sT0}, s{sH}, 13")
    e(f"s_add_u32 s{sT0}, s{sT0}, 1008")
    e(f"s_lshl_b32 s{sOFF}, s{sLID}, 10")
    e(f"s_add_u32 s{sOFF}, s{sOFF}, 1008")
    e("s_waitcnt vmcnt(0) lgkmcnt(0)")
    e(f"s_atomic_add s{sT1}, s[{sT2}:{sT3}], 0 glc")
    e("s_waitcnt lgkmcnt(0)")
    e(f"s_and_b32 s{sT1}, s{sT1}, 7")
    e(f"s_cmp_lg_u32 s{sT1}, 7")
    e("s_cbranch_scc1 L_qf_wait")
    e("s_mov_b64 exec, 0xff")
    e(f"buffer_store_dword v{VZERO}, v{VA[5]}, {srd(SRD_WS)}, s{sT0} offen sc1")
    e("s_mov_b64 exec, -1")
    e("s_branch L_qf_done")
    A.label("L_qf_wait"); A.fence()
    if indelay: e(f"s_sleep {indelay}")
    spin_begin("L_qf_spin")
    e(f"buffer_load_dword v{T[14]}, v{VZERO}, {srd(SRD_WS)}, s{sOFF} offen sc1")
    e("s_waitcnt vmcnt(0)")
    e(f"v_cmp_eq_u32 vcc, -1, v{T[14]}")
    spin_end("L_qf_spin", "L_qf_done", slp=insleep)
    stamp()
    e(f"s_mul_i32 s{sT0}, s{sH}, {8*1536}")
    e(f"s_add_u32 s{sT0}, s{sT0}, {WS_IN}")
    IB = 108
    for k in range(8):
        if k: e(f"s_add_u32 s{sT0}, s{sT0}, 1536")
        for b_ in range(2):
            d = IB + 32*b_ + 4*k
            e(f"buffer_load_dwordx4 v[{d}:{d+3}], v{VA[4]}, {srd(SRD_WS)}, s{sT0} offen offset:{768*b_} sc1")
    e("s_waitcnt vmcnt(0)")
    for b_ in range(2):
        ib = IB + 32*b_
        for k in range(1, 8):
            for i in (0, 2):
                e(f"v_pk_add_f32 v[{ib+i}:{ib+i+1}], v[{ib+i}:{ib+i+1}], v[{ib+4*k+i}:{ib+4*k+i+1}]")
        e(f"v_cvt_pk_bf16_f32 v{T[4+2*b_]}, v{ib}, v{ib+1}")
        e(f"v_cvt_pk_bf16_f32 v{T[5+2*b_]}, v{ib+2}, v{ib+3}")
    for i in range(4): e(f"v_min_u32 v{T[4+i]}, -2, v{T[4+i]}")
    e(f"v_lshlrev_b32 v{T[0]}, 3, v{VLANE}")
    e(f"v_cmp_gt_u32 vcc, 48, v{VLANE}")
    e(f"s_and_saveexec_b64 s[{sT2}:{sT3}], vcc")
    e(f"ds_write_b64 v{T[0]}, v[{T[4]}:{T[5]}] offset:{L_QS}")
    e(f"ds_write_b64 v{T[0]}, v[{T[6]}:{T[7]}] offset:{L_QS+384}")
    e("s_mov_b64 exec, -1")
    stamp()
    if stamps and not prog:
        write_stamps(1)
        e("s_mov_b64 exec, -1")
    A.label("L_q_skip"); A.fence()
    nstamp[0] = 1
    for _ in range(wdelay // 100): e("s_sleep 100")
    if wskew:
        e(f"s_mov_b32 s{sT0}, 0")
        A.label("L_skew"); A.fence()
        e(f"s_cmp_ge_u32 s{sT0}, s{sW}")
        e("s_cbranch_scc1 L_skew_done")
        for _ in range(wskew // 100): e("s_sleep 100")
        e(f"s_add_u32 s{sT0}, s{sT0}, 1")
        e("s_branch L_skew")
        A.label("L_skew_done"); A.fence()
    e(f"s_cmp_lg_u32 s{sW}, 1")
    e("s_cbranch_scc1 L_all_skip")
    e(f"v_and_b32 v{T[0]}, 31, v{VLANE}")
    e(f"v_lshlrev_b32 v{T[0]}, 3, v{T[0]}")
    spin_begin("L_all_spin")
    e(f"buffer_load_dword v{T[1]}, v{T[0]}, {srd(SRD_DBG)}, 0 offen sc1")
    e("s_waitcnt vmcnt(0)")
    e(f"v_cmp_gt_u32 vcc, 8, v{T[1]}")
    spin_end("L_all_spin", "L_all_done", slp=64)
    e(f"v_mov_b32 v{T[1]}, 1")
    e(f"ds_write_b32 v{VZERO}, v{T[1]} offset:{L_CTL+8}")
    A.label("L_all_skip"); A.fence()
    WB_ = 32
    FRG = 128
    gA, gB, lA, lB = VA[0], VA[1], VA[2], VA[3]
    e(f"s_mul_i32 s{sRS}, s{sW}, 12288")
    e(f"s_add_u32 s{sRS}, s{sRS}, {L_W}")
    e(f"s_cmp_ge_u32 s{sMEM}, 5")
    e("s_cbranch_scc1 L_wadr_mlp")
    def wo_addr(g_, l_, add):
        u, cb, u3 = T[0], T[1], T[2]
        e(f"v_lshrrev_b32 v{u}, 2, v{VLANE}")
        if add: e(f"v_add_u32 v{u}, {add}, v{u}")
        e(f"v_and_b32 v{cb}, 3, v{VLANE}")
        e(f"v_mul_u32_u24 v{u3}, 43, v{u}")
        e(f"v_lshrrev_b32 v{u3}, 7, v{u3}")
        e(f"v_mul_u32_u24 v{T[3]}, 3, v{u3}")
        e(f"v_sub_u32 v{T[3]}, v{u}, v{T[3]}")
        e(f"v_lshlrev_b32 v{T[3]}, 6, v{T[3]}")
        e(f"v_lshl_add_u32 v{T[3]}, v{u3}, 3, v{T[3]}")
        e(f"v_add_u32 v{T[3]}, s{sT0}, v{T[3]}")
        e(f"v_mul_u32_u24 v{g_}, 1280, v{T[3]}")
        e(f"v_lshl_add_u32 v{g_}, v{cb}, 4, v{g_}")
        e(f"v_add_u32 v{g_}, s{sT1}, v{g_}")
        e(f"v_lshrrev_b32 v{T[3]}, 1, v{cb}")
        e(f"v_mul_u32_u24 v{T[3]}, 6, v{T[3]}")
        e(f"v_lshrrev_b32 v{u3}, 2, v{u}")
        e(f"v_add_u32 v{T[3]}, v{T[3]}, v{u3}")
        e(f"v_lshlrev_b32 v{l_}, 10, v{T[3]}")
        e(f"v_and_b32 v{u3}, 3, v{u}")
        e(f"v_lshl_add_u32 v{l_}, v{u3}, 8, v{l_}")
        e(f"v_and_b32 v{u3}, 1, v{cb}")
        e(f"v_lshl_add_u32 v{l_}, v{u3}, 7, v{l_}")
        e(f"v_add_u32 v{l_}, s{sRS}, v{l_}")
    e(f"s_lshl_b32 s{sT0}, s{sXG}, 2")
    e(f"s_add_u32 s{sT0}, s{sT0}, s{sW}")
    e(f"s_mul_i32 s{sT0}, s{sT0}, 192")
    e(f"s_lshl_b32 s{sT1}, s{sCS}, 6")
    wo_addr(gA, lA, 0); wo_addr(gB, lB, 16)
    e(f"s_movk_i32 s{sT2}, 64"); e(f"s_movk_i32 s{sT3}, 32")
    e(f"s_movk_i32 s{sOFF}, 1280")
    e("s_branch L_wadr_done")
    A.label("L_wadr_mlp"); A.fence()
    e(f"v_lshrrev_b32 v{T[0]}, 1, v{VLANE}")
    e(f"s_mul_i32 s{sT0}, s{sW}, 20")
    e(f"v_add_u32 v{T[0]}, s{sT0}, v{T[0]}")
    e(f"v_mul_u32_u24 v{gA}, 24576, v{T[0]}")
    e(f"v_and_b32 v{T[1]}, 1, v{VLANE}")
    e(f"v_lshl_add_u32 v{gA}, v{T[1]}, 4, v{gA}")
    e(f"s_lshl_b32 s{sT0}, s{sF0}, 1")
    e(f"v_add_u32 v{gA}, s{sT0}, v{gA}")
    e(f"v_lshlrev_b32 v{lA}, 7, v{VLANE}")
    e(f"v_add_u32 v{lA}, s{sRS}, v{lA}")
    e(f"v_cmp_le_u32 vcc, 20, v{VLANE}")
    e(f"v_cndmask_b32 v{T[0]}, 0, 1, vcc")
    e(f"v_mul_u32_u24 v{T[1]}, 20, v{T[0]}")
    e(f"v_sub_u32 v{T[1]}, v{VLANE}, v{T[1]}")
    e(f"v_mul_u32_u24 v{gB}, 10240, v{T[0]}")
    e(f"v_lshl_add_u32 v{gB}, v{T[1]}, 4, v{gB}")
    e(f"s_mul_i32 s{sT0}, s{sF0}, 1280")
    e(f"s_mul_i32 s{sT1}, s{sW}, 320")
    e(f"s_add_u32 s{sT0}, s{sT0}, s{sT1}")
    e(f"v_add_u32 v{gB}, s{sT0}, v{gB}")
    e(f"v_lshrrev_b32 v{lB}, 1, v{T[1]}")
    e(f"v_lshlrev_b32 v{lB}, 9, v{lB}")
    e(f"v_lshl_add_u32 v{lB}, v{T[0]}, 8, v{lB}")
    e(f"v_and_b32 v{T[1]}, 1, v{T[1]}")
    e(f"v_lshl_add_u32 v{lB}, v{T[1]}, 7, v{lB}")
    e(f"s_add_u32 s{sT0}, s{sRS}, 6144")
    e(f"v_add_u32 v{lB}, s{sT0}, v{lB}")
    e(f"s_movk_i32 s{sT2}, 40"); e(f"s_movk_i32 s{sT3}, 40")
    e(f"s_movk_i32 s{sOFF}, 3072")
    A.label("L_wadr_done"); A.fence()
    for rnd, (g_, l_, sN, sr) in enumerate(((gA, lA, sT2, SRD_WA), (gB, lB, sT3, SRD_WB))):
        e(f"v_cmp_gt_u32 vcc, s{sN}, v{VLANE}")
        e("s_mov_b64 exec, vcc")
        for kk in range(8):
            if kk == 0: so = "0"
            else:
                if rnd == 0: e(f"s_mul_i32 s{sT0}, s{sOFF}, {kk}")
                else: e(f"s_movk_i32 s{sT0}, {1280*kk}")
                so = f"s{sT0}"
            e(f"buffer_load_dwordx4 v[{WB_+4*kk}:{WB_+4*kk+3}], v{g_}, {srd(sr)}, {so} offen {wflags}")
            if wpace == 1 and kk % 2 == 1 and kk < 7: e("s_waitcnt vmcnt(1)")
            if wpace == 2 and kk < 7: e("s_waitcnt vmcnt(0)")
            if wpace == 3 and kk < 7:
                e("s_waitcnt vmcnt(0)"); e("s_sleep 16")
        e("s_waitcnt vmcnt(0)")
        for i in range(4):
            tb = WB_ + 32 + 8*i
            for kp in range(4):
                e(f"v_perm_b32 v{tb+kp}, v{WB_+4*(2*kp+1)+i}, v{WB_+4*(2*kp)+i}, s{sPLO}")
                e(f"v_perm_b32 v{tb+4+kp}, v{WB_+4*(2*kp+1)+i}, v{WB_+4*(2*kp)+i}, s{sPHI}")
            e(f"ds_write_b128 v{l_}, v[{tb}:{tb+3}] offset:{32*i}")
            e(f"ds_write_b128 v{l_}, v[{tb+4}:{tb+7}] offset:{32*i+16}")
        e("s_mov_b64 exec, -1")
        e("s_waitcnt lgkmcnt(0)")
    e(f"s_cmp_lg_u32 s{sW}, 0")
    e("s_cbranch_scc1 L_ml_skip")
    e(f"v_lshlrev_b32 v{VA[5]}, 10, v{VC}")
    for b_ in range(2):
        spin_begin(f"L_ml1{b_}_spin")
        e(f"ds_read_b128 v[{T[0]}:{T[3]}], v{VZERO} offset:{L_ML + 32*b_}")
        e(f"ds_read_b128 v[{T[4]}:{T[7]}], v{VZERO} offset:{L_ML + 32*b_ + 16}")
        e(f"ds_read_b32 v{T[8]}, v{VZERO} offset:{L_CTL+20}")
        e("s_waitcnt lgkmcnt(0)")
        if b_ == 1: e(f"v_subrev_u32 v{T[8]}, 1, v{T[8]}")
        sentinel_check(rng(T[0], 9), T[9])
        spin_end(f"L_ml1{b_}_spin", f"L_ml1{b_}_done", slp=32)
        mw = [T[0], T[2], T[4], T[6]]; lw = [T[1], T[3], T[5], T[7]]; tmp = [T[10], T[11], T[12], T[13]]
        e(f"v_max3_f32 v{T[8]}, v{mw[0]}, v{mw[1]}, v{mw[2]}")
        e(f"v_max_f32 v{T[8]}, v{T[8]}, v{mw[3]}")
        for i in range(4):
            e(f"v_sub_f32 v{tmp[i]}, v{mw[i]}, v{T[8]}")
            e(f"v_mul_f32 v{tmp[i]}, {LOG2E}, v{tmp[i]}")
            e(f"v_exp_f32 v{tmp[i]}, v{tmp[i]}")
        e(f"v_mul_f32 v{T[9]}, v{tmp[0]}, v{lw[0]}")
        for i in range(1, 4): e(f"v_fmac_f32 v{T[9]}, v{tmp[i]}, v{lw[i]}")
        e(f"s_lshl_b32 s{sT0}, s{sLID}, 10")
        e(f"s_add_u32 s{sT0}, s{sT0}, {768 + 8*b_}")
        e("s_mov_b64 exec, 1")
        e(f"buffer_store_dwordx2 v[{T[8]}:{T[9]}], v{VZERO}, {srd(SRD_WS)}, s{sT0} offen sc1")
        e("s_mov_b64 exec, -1")
        e(f"s_lshl_b32 s{sT0}, s{sH}, 13")
        e(f"s_add_u32 s{sT0}, s{sT0}, {768 + 8*b_}")
        e("s_sleep 64")
        spin_begin(f"L_ml2{b_}_spin")
        e("s_mov_b64 exec, 0xff")
        e(f"buffer_load_dwordx2 v[{T[8]}:{T[9]}], v{VA[5]}, {srd(SRD_WS)}, s{sT0} offen sc1")
        e("s_waitcnt vmcnt(0)")
        e(f"v_max_u32 v{T[10]}, v{T[8]}, v{T[9]}")
        e(f"v_cmp_eq_u32 vcc, -1, v{T[10]}")
        spin_end(f"L_ml2{b_}_spin", f"L_ml2{b_}_done", slp=mlsleep)
        e(f"v_mov_b32 v{T[10]}, v{T[8]}")
        for ctl in ("quad_perm:[1,0,3,2]", "quad_perm:[2,3,0,1]", "row_half_mirror"):
            e(f"v_max_f32_dpp v{T[10]}, v{T[10]}, v{T[10]} {ctl} row_mask:0xf bank_mask:0xf")
        e(f"v_sub_f32 v{T[8]}, v{T[8]}, v{T[10]}")
        e(f"v_mul_f32 v{T[8]}, {LOG2E}, v{T[8]}")
        e(f"v_exp_f32 v{T[8]}, v{T[8]}")
        e(f"v_mul_f32 v{T[9]}, v{T[9]}, v{T[8]}")
        for ctl in ("quad_perm:[1,0,3,2]", "quad_perm:[2,3,0,1]", "row_half_mirror"):
            e(f"v_add_f32_dpp v{T[9]}, v{T[9]}, v{T[9]} {ctl} row_mask:0xf bank_mask:0xf")
        e(f"v_rcp_f32 v{T[9]}, v{T[9]}")
        for i in range(4):
            e(f"v_sub_f32 v{T[12+i]}, v{mw[i]}, v{T[10]}")
            e(f"v_mul_f32 v{T[12+i]}, {LOG2E}, v{T[12+i]}")
            e(f"v_exp_f32 v{T[12+i]}, v{T[12+i]}")
            e(f"v_mul_f32 v{T[12+i]}, v{T[12+i]}, v{T[9]}")
            e(f"v_min_u32 v{T[12+i]}, -2, v{T[12+i]}")
        e("s_mov_b64 exec, 1")
        e(f"ds_write_b128 v{VZERO}, v[{T[12]}:{T[15]}] offset:{L_F + 16*b_}")
        e("s_mov_b64 exec, -1")
    A.label("L_ml_skip"); A.fence()
    i_, g4 = VA[0], VA[1]
    e(f"v_and_b32 v{i_}, 15, v{VLANE}")
    e(f"v_lshrrev_b32 v{g4}, 4, v{VLANE}")
    e(f"v_add_u32 v{T[0]}, s{sRS}, v{VL16}")
    if dry:
        e(f"s_mov_b32 s{sDRY}, 1"); e(f"s_mov_b32 s{sOOB}, {OOB}"); e(f"s_mov_b32 s{sLIM}, 1")
    def barrier(lbl):
        if dry:
            e(f"s_cmp_lg_u32 s{sDRY}, 0")
            e(f"s_cbranch_scc1 {lbl}")
        e("s_barrier")
        if dry:
            A.label(lbl); A.fence()
    def wait_progress(lbl):
        e(f"s_mov_b32 s{sDRY}, 0"); e(f"s_mov_b32 s{sOOB}, 0"); e(f"s_mov_b32 s{sLIM}, {spin_limit}")
        e("s_mov_b64 exec, -1")
        e("s_waitcnt vmcnt(0) lgkmcnt(0)")
        spin_begin(lbl)
        e(f"ds_read_b32 v{T[0]}, v{VZERO} offset:{L_CTL+12}")
        e("s_waitcnt lgkmcnt(0)")
        e(f"v_cmp_eq_u32 vcc, 0, v{T[0]}")
        spin_end(lbl, lbl + "_done", slp=2)
    e(f"s_cmp_ge_u32 s{sMEM}, 5")
    e("s_cbranch_scc1 L_mlp")
    for f in range(12):
        e(f"ds_read_b128 v[{FRG+4*f}:{FRG+4*f+3}], v{T[0]} offset:{f*1024}")
    VOW, VBA, VYW, VM = VA[2], VA[3], VA[5], 96
    e(f"s_mul_i32 s{sT1}, s{sW}, 768")
    e(f"v_lshlrev_b32 v{VOW}, 3, v{VLANE}")
    e(f"v_add_u32 v{VOW}, s{sT1}, v{VOW}")
    e(f"v_and_b32 v{T[1]}, 1, v{i_}")
    e(f"v_mul_u32_u24 v{VBA}, 384, v{T[1]}")
    e(f"v_lshl_add_u32 v{VBA}, v{g4}, 4, v{VBA}")
    e(f"v_add_u32 v{VBA}, s{sT1}, v{VBA}")
    e(f"v_lshlrev_b32 v{VYW}, 7, v{T[1]}")
    e(f"v_lshl_add_u32 v{VYW}, v{g4}, 4, v{VYW}")
    e(f"s_lshl_b32 s{sT1}, s{sW}, 8")
    e(f"v_add_u32 v{VYW}, s{sT1}, v{VYW}")
    e(f"v_mov_b32 v{VM}, 768")
    col, VOUT, VXH, VYS = 97, 98, 99, 100
    e(f"v_and_b32 v{col}, 1, v{VLANE}")
    e(f"v_lshlrev_b32 v{col}, 2, v{col}")
    e(f"v_lshrrev_b32 v{T[1]}, 5, v{VLANE}")
    e(f"v_lshl_add_u32 v{col}, v{T[1]}, 1, v{col}")
    e(f"v_bfe_u32 v{T[1]}, v{VLANE}, 4, 1")
    e(f"v_add_u32 v{col}, v{col}, v{T[1]}")
    e(f"s_lshl_b32 s{sT0}, s{sR}, 3")
    e(f"v_add_u32 v{col}, s{sT0}, v{col}")
    e(f"v_lshlrev_b32 v{VOUT}, 1, v{col}")
    e(f"buffer_load_ushort v{VXH}, v{VOUT}, {srd(SRD_X)}, 0 offen")
    e(f"v_bfe_u32 v{T[3]}, v{VLANE}, 1, 3")
    e(f"v_mul_u32_u24 v{VYS}, 5120, v{T[3]}")
    e(f"v_lshl_add_u32 v{VYS}, v{col}, 2, v{VYS}")
    e(f"v_cmp_ne_u32 vcc, 0, v{T[3]}")
    e(f"v_mov_b32 v{T[3]}, {OOB}")
    e("s_waitcnt vmcnt(0) lgkmcnt(0)")
    e(f"v_cndmask_b32 v{VOUT}, v{VOUT}, v{T[3]}, vcc")
    e(f"v_lshlrev_b32 v{VXH}, 16, v{VXH}")
    PO = 32
    e(f"s_lshl_b32 s{sT0}, s{sXG}, 2")
    e(f"s_add_u32 s{sT0}, s{sT0}, s{sW}")
    e(f"s_lshl_b32 s{sOFF}, s{sT0}, 13")
    def a_loads(base):
        for s_ in range(8):
            so = sT0 if s_ < 4 else sT1
            e(f"buffer_load_dwordx4 v[{base+4*s_}:{base+4*s_+3}], v{VA[4]}, {srd(SRD_WS)}, s{so} offen offset:{1024*(s_&3)} sc1")
    def a_cons(base):
        o = T[8]
        for st in (1, 2, 4):
            for k in range(0, 8, 2*st):
                for i in (0, 2):
                    a_, b2 = base+4*k+i, base+4*(k+st)+i
                    d_ = o + i if st == 4 else a_
                    e(f"v_pk_add_f32 v[{d_}:{d_+1}], v[{a_}:{a_+1}], v[{b2}:{b2+1}]")
    def a_write(b_):
        e(f"v_cvt_pk_bf16_f32 v{T[4]}, v{T[8]}, v{T[9]}")
        e(f"v_cvt_pk_bf16_f32 v{T[5]}, v{T[10]}, v{T[11]}")
        e("s_mov_b32 exec_hi, 0xffff")
        e(f"ds_write_b64 v{VOW}, v[{T[4]}:{T[5]}] offset:{L_OB + 384*b_}")
        e("s_mov_b64 exec, -1")
    spin_begin("L_mid_spin")
    e(f"ds_read_b32 v{T[0]}, v{VZERO} offset:{L_F+16}")
    e(f"ds_read_b32 v{T[1]}, v{VZERO} offset:{L_CTL+8}")
    e("s_waitcnt lgkmcnt(0)")
    e(f"v_subrev_u32 v{T[1]}, 1, v{T[1]}")
    e(f"v_max_u32 v{T[0]}, v{T[0]}, v{T[1]}")
    e(f"v_cmp_eq_u32 vcc, -1, v{T[0]}")
    spin_end("L_mid_spin", "L_mid_done", slp=32)
    e(f"v_lshlrev_b32 v{T[2]}, 10, v{VC}")
    e(f"s_add_u32 s{sT0}, s{sOFF}, 776")
    spin_begin("L_p0_spin")
    e("s_mov_b64 exec, 0xff")
    e(f"buffer_load_dword v{T[0]}, v{T[2]}, {srd(SRD_WS)}, s{sT0} offen sc1")
    e("s_waitcnt vmcnt(0)")
    e(f"v_cmp_eq_u32 vcc, -1, v{T[0]}")
    spin_end("L_p0_spin", "L_p0_done", slp=mlsleep)
    e("s_mov_b64 exec, -1")
    if early0:
        e(f"s_add_u32 s{sT0}, s{sOFF}, {WS_P0}")
        e(f"s_add_u32 s{sT1}, s{sT0}, 4096")
        a_loads(PO)
        e("s_waitcnt vmcnt(0)")
        a_cons(PO); a_write(0)
        e(f"s_mov_b32 s{sT0}, s{sOFF}")
        e(f"s_add_u32 s{sT1}, s{sT0}, 4096")
        wait_progress("L_wo_wait0")
    else:
        e(f"s_add_u32 s{sT0}, s{sOFF}, {WS_P0}")
        e(f"s_add_u32 s{sT1}, s{sT0}, 4096")
        wait_progress("L_wo_wait0")
        a_loads(208)
        e(f"s_mov_b32 s{sT0}, s{sOFF}")
        e(f"s_add_u32 s{sT1}, s{sT0}, 4096")
        a_loads(PO)
        e("s_waitcnt vmcnt(8)")
        a_cons(208); a_write(0)
        e("s_waitcnt vmcnt(0)")
        a_cons(PO)
        e(f"v_pk_add_f32 v[{T[0]}:{T[1]}], v[{T[8]}:{T[9]}], v[{T[10]}:{T[11]}]")
        e(f"v_cmp_u_f32 vcc, v{T[0]}, v{T[1]}")
        e("s_cbranch_vccz L_a_ok")
    poll("a", a_loads, PO, a_cons, rng(T[8], 4), T[0])
    a_write(1)
    BF = 180
    for ks in range(6):
        e(f"ds_read_b128 v[{BF+4*ks}:{BF+4*ks+3}], v{VBA} offset:{L_OB + 64*ks}")
    D0, D1 = T[8], T[12]
    for ks in range(6):
        e(f"s_waitcnt lgkmcnt({5-ks})")
        for tl, D in ((0, D0), (1, D1)):
            c = "0" if ks == 0 else f"v[{D}:{D+3}]"
            f = FRG + 4*(6*tl + ks)
            e(f"v_mfma_f32_16x16x32_bf16 v[{D}:{D+3}], v[{f}:{f+3}], v[{BF+4*ks}:{BF+4*ks+3}], {c}")
    e("s_mov_b32 exec_lo, 0x00030003")
    e("s_mov_b32 exec_hi, 0x00030003")
    e(f"ds_write_b128 v{VYW}, v[{D0}:{D0+3}] offset:{L_YR}")
    e(f"ds_write_b128 v{VYW}, v[{D1}:{D1+3}] offset:{L_YR+64}")
    e("s_mov_b64 exec, -1")
    e("s_waitcnt lgkmcnt(0)")
    barrier("L_bar1")
    e(f"s_cmp_lg_u32 s{sW}, 0")
    e("s_cbranch_scc1 L_wo_exit")
    e(f"v_lshlrev_b32 v{T[0]}, 4, v{i_}")
    YS = 64
    for hh_ in range(4):
        e(f"ds_read_b128 v[{YS+4*hh_}:{YS+4*hh_+3}], v{T[0]} offset:{L_YR + 256*hh_}")
    e("s_waitcnt lgkmcnt(0)")
    for i in (0, 2):
        e(f"v_pk_add_f32 v[{YS+i}:{YS+i+1}], v[{YS+i}:{YS+i+1}], v[{YS+4+i}:{YS+4+i+1}]")
        e(f"v_pk_add_f32 v[{YS+8+i}:{YS+8+i+1}], v[{YS+8+i}:{YS+8+i+1}], v[{YS+12+i}:{YS+12+i+1}]")
    for i in (0, 2): e(f"v_pk_add_f32 v[{YS+i}:{YS+i+1}], v[{YS+i}:{YS+i+1}], v[{YS+8+i}:{YS+8+i+1}]")
    e(f"buffer_store_dwordx4 v[{YS}:{YS+3}], v{VYA}, {srd(SRD_WS)}, s{sOOB} offen sc1")
    stamp()
    Yr = 80
    e(f"s_mov_b32 s{sT0}, {WS_Y}")
    spin_begin("L_b_spin")
    e(f"buffer_load_dword v{Yr}, v{VYS}, {srd(SRD_WS)}, s{sT0} offen sc1")
    e("s_waitcnt vmcnt(0)")
    e(f"v_cmp_eq_u32 vcc, -1, v{Yr}")
    spin_end("L_b_spin", "L_b_done", slp=sl["b"])
    e(f"v_add_f32_dpp v{Yr}, v{Yr}, v{Yr} quad_perm:[2,3,0,1] row_mask:0xf bank_mask:0xf")
    e(f"v_mov_b32 v{T[6]}, v{Yr}")
    e(f"v_add_f32_dpp v{Yr}, v{T[6]}, v{T[6]} row_shr:4 row_mask:0xf bank_mask:0xa")
    e(f"v_add_f32_dpp v{Yr}, v{T[6]}, v{T[6]} row_shl:4 row_mask:0xf bank_mask:0x5")
    e(f"v_add_f32_dpp v{Yr}, v{Yr}, v{Yr} row_ror:8 row_mask:0xf bank_mask:0xf")
    bf16r(Yr)
    e(f"v_add_f32 v{Yr}, v{VXH}, v{Yr}")
    bf16r(Yr)
    stamp()
    Zr = 84
    e(f"s_mul_i32 s{sT0}, s{sR}, 3072")
    e(f"s_add_u32 s{sT0}, s{sT0}, {WS_Z}")
    def c_loads(base):
        for i in range(3):
            e(f"buffer_load_dwordx4 v[{base+4*i}:{base+4*i+3}], v{VL16}, {srd(SRD_WS)}, s{sT0} offen offset:{1024*i} sc1")
    def c_cons(base):
        for i in (0, 2):
            e(f"v_pk_add_f32 v[{Zr+i}:{Zr+i+1}], v[{base+i}:{base+i+1}], v[{base+4+i}:{base+4+i+1}]")
            e(f"v_pk_add_f32 v[{Zr+i}:{Zr+i+1}], v[{Zr+i}:{Zr+i+1}], v[{base+8+i}:{base+8+i+1}]")
    poll("c", c_loads, 32, c_cons, rng(Zr, 4), T[0])
    y = Zr
    e(f"v_permlane32_swap_b32 v{y}, v{y+2}")
    e(f"v_permlane32_swap_b32 v{y+1}, v{y+3}")
    e(f"v_add_f32 v{y}, v{y}, v{y+2}")
    e(f"v_add_f32 v{y+1}, v{y+1}, v{y+3}")
    e(f"v_permlane16_swap_b32 v{y}, v{y+1}")
    e(f"v_add_f32 v{y}, v{y}, v{y+1}")
    for k in (8, 4, 2):
        e(f"v_add_f32_dpp v{y}, v{y}, v{y} row_ror:{k} row_mask:0xf bank_mask:0xf")
    bf16r(y)
    e(f"v_add_f32 v{y}, v{y}, v{Yr}")
    e(f"v_cvt_pk_bf16_f32 v{y}, v{y}, v{y}")
    e(f"buffer_store_short v{y}, v{VOUT}, {srd(SRD_OUT)}, s{sOOB} offen")
    stamp()
    A.label("L_wo_exit"); A.fence()
    if dry:
        e(f"s_cmp_eq_u32 s{sDRY}, 0")
        e("s_cbranch_scc1 L_fin")
        wait_progress("L_wo_wait")
        e("s_branch L_wo_tail")
    else:
        e("s_branch L_fin")
    A.label("L_mlp"); A.fence()
    nstamp[0] = 1
    F1 = FRG; F2 = FRG + 24
    for ks in range(5):
        e(f"ds_read_b128 v[{F1+4*ks}:{F1+4*ks+3}], v{T[0]} offset:{ks*1024}")
    e(f"v_lshrrev_b32 v{T[3]}, 1, v{g4}")
    e(f"v_lshlrev_b32 v{T[3]}, 8, v{T[3]}")
    e(f"v_lshl_add_u32 v{T[3]}, v{i_}, 4, v{T[3]}")
    e(f"v_and_b32 v{T[4]}, 1, v{g4}")
    e(f"v_lshl_add_u32 v{T[3]}, v{T[4]}, 3, v{T[3]}")
    e(f"v_add_u32 v{T[3]}, s{sRS}, v{T[3]}")
    for tt in range(10):
        e(f"ds_read_b64 v[{F2+2*tt}:{F2+2*tt+1}], v{T[3]} offset:{6144 + tt*512}")
    VGA, VLW, VLR, VZA, VHR, VDW, VDR = VA[2], VA[3], VA[5], 96, 97, 98, 99
    XH = 100
    e(f"s_mul_i32 s{sT0}, s{sW}, 640")
    e(f"v_add_u32 v{VGA}, s{sT0}, v{VL16}")
    e(f"v_cmp_gt_u32 vcc, 40, v{VLANE}")
    e(f"v_mov_b32 v{T[1]}, {OOB}")
    e(f"v_cndmask_b32 v{VGA}, v{T[1]}, v{VGA}, vcc")
    e(f"v_cmp_eq_u32 vcc, 40, v{VLANE}")
    e(f"v_cndmask_b32 v{VGA}, v{VGA}, v{VZERO}, vcc")
    e(f"v_lshrrev_b32 v{T[1]}, 1, v{VGA}")
    e(f"buffer_load_dwordx2 v[{T[8]}:{T[9]}], v{T[1]}, {srd(SRD_X)}, 0 offen")
    e(f"buffer_load_dwordx2 v[{T[10]}:{T[11]}], v{T[1]}, {srd(SRD_X)}, 0 offen offset:1280")
    e(f"s_mul_i32 s{sT0}, s{sW}, 640")
    e(f"s_add_u32 s{sT0}, s{sT0}, {L_LN}")
    e(f"v_lshlrev_b32 v{VLW}, 3, v{VLANE}")
    e(f"v_add_u32 v{VLW}, s{sT0}, v{VLW}")
    e(f"v_and_b32 v{T[4]}, 1, v{i_}")
    e(f"v_mul_u32_u24 v{VLR}, 320, v{T[4]}")
    e(f"v_lshl_add_u32 v{VLR}, v{g4}, 4, v{VLR}")
    e(f"v_add_u32 v{VLR}, s{sT0}, v{VLR}")
    e(f"v_lshlrev_b32 v{VDR}, 6, v{T[4]}")
    e(f"v_lshl_add_u32 v{VDR}, v{g4}, 4, v{VDR}")
    e(f"s_lshl_b32 s{sT0}, s{sW}, 7")
    e(f"v_add_u32 v{VDW}, s{sT0}, v{VDR}")
    e(f"v_mul_u32_u24 v{VZA}, 80, v{i_}")
    e(f"v_lshrrev_b32 v{T[4]}, 1, v{g4}")
    e(f"v_add_u32 v{VZA}, v{VZA}, v{T[4]}")
    e(f"s_mul_i32 s{sT0}, s{sW}, 20")
    e(f"v_add_u32 v{VZA}, s{sT0}, v{VZA}")
    e(f"v_mul_u32_u24 v{VZA}, 3072, v{VZA}")
    e(f"v_and_b32 v{T[4]}, 1, v{g4}")
    e(f"v_lshl_add_u32 v{VZA}, v{T[4]}, 4, v{VZA}")
    e(f"s_lshl_b32 s{sT0}, s{sF0}, 1")
    e(f"s_add_u32 s{sT0}, s{sT0}, {WS_Z}")
    e(f"v_add_u32 v{VZA}, s{sT0}, v{VZA}")
    e(f"v_cmp_lt_u32 vcc, 1, v{i_}")
    e(f"v_mov_b32 v{T[4]}, {OOB}")
    e(f"v_cndmask_b32 v{VZA}, v{VZA}, v{T[4]}, vcc")
    e(f"v_lshlrev_b32 v{VHR}, 2, v{g4}")
    e(f"s_lshl_b32 s{sT0}, s{sW}, 4")
    e(f"v_add_u32 v{VHR}, s{sT0}, v{VHR}")
    e("s_waitcnt vmcnt(0) lgkmcnt(0)")
    for i in range(4):
        e(f"v_lshlrev_b32 v{XH+2*i}, 16, v{T[8+i]}")
        e(f"v_and_b32 v{XH+2*i+1}, s{sMASK}, v{T[8+i]}")
    if not dry: wait_progress("L_mlp_wait0")
    A.label("L_mlp_tail"); A.fence()
    YB = 108
    GA, GB = 32, 192
    def h_loads(base):
        for x in range(8):
            e(f"s_mov_b32 s{sT0}, {WS_Y + 5120*x}")
            for b_ in range(2):
                d = base + 8*x + 4*b_
                e(f"buffer_load_dwordx4 v[{d}:{d+3}], v{VGA}, {srd(SRD_WS)}, s{sT0} offen offset:{2560*b_} sc1")
    def h_cons(base):
        for st in (1, 2, 4):
            for x in range(0, 8, 2*st):
                for i in range(0, 8, 2):
                    a_, b2 = base+8*x+i, base+8*(x+st)+i
                    d_ = YB + i if st == 4 else a_
                    e(f"v_pk_add_f32 v[{d_}:{d_+1}], v[{a_}:{a_+1}], v[{b2}:{b2+1}]")
    poll("h", h_loads, GA, h_cons, rng(YB, 8), T[0])
    stamp()
    for i in range(0, 8, 2):
        e(f"v_cvt_pk_bf16_f32 v{YB+i+1}, v{YB+i}, v{YB+i+1}")
        e(f"v_lshlrev_b32 v{YB+i}, 16, v{YB+i+1}")
        e(f"v_and_b32 v{YB+i+1}, s{sMASK}, v{YB+i+1}")
        e(f"v_pk_add_f32 v[{YB+i}:{YB+i+1}], v[{YB+i}:{YB+i+1}], v[{XH+i}:{XH+i+1}]")
        e(f"v_cvt_pk_bf16_f32 v{YB+i+1}, v{YB+i}, v{YB+i+1}")
        e(f"v_lshlrev_b32 v{YB+i}, 16, v{YB+i+1}")
        e(f"v_and_b32 v{YB+i+1}, s{sMASK}, v{YB+i+1}")
    e(f"v_readlane_b32 s{sT2}, v{YB}, 40")
    e(f"v_readlane_b32 s{sT3}, v{YB+4}, 40")
    S1 = [T[4], T[5]]; S2 = [T[6], T[7]]; DD = 48
    for r_ in S1 + S2: e(f"v_mov_b32 v{r_}, 0")
    e("s_mov_b32 exec_lo, -1"); e("s_mov_b32 exec_hi, 0xff")
    for b_ in range(2):
        for i in range(4): e(f"v_subrev_f32 v{DD+4*b_+i}, s{sT2+b_}, v{YB+4*b_+i}")
    for b_ in range(2):
        d = DD + 4*b_
        e(f"v_add_f32 v{S1[b_]}, v{d}, v{d+1}")
        e(f"v_mul_f32 v{S2[b_]}, v{d}, v{d}")
    for b_ in range(2):
        d = DD + 4*b_
        e(f"v_add_f32 v{S1[b_]}, v{S1[b_]}, v{d+2}")
        e(f"v_fmac_f32 v{S2[b_]}, v{d+1}, v{d+1}")
    for b_ in range(2):
        d = DD + 4*b_
        e(f"v_add_f32 v{S1[b_]}, v{S1[b_]}, v{d+3}")
        e(f"v_fmac_f32 v{S2[b_]}, v{d+2}, v{d+2}")
    for b_ in range(2): e(f"v_fmac_f32 v{S2[b_]}, v{DD+4*b_+3}, v{DD+4*b_+3}")
    e("s_mov_b64 exec, -1")
    e(f"v_permlane32_swap_b32 v{S1[0]}, v{S2[0]}")
    e(f"v_permlane32_swap_b32 v{S1[1]}, v{S2[1]}")
    e(f"v_add_f32 v{S1[0]}, v{S1[0]}, v{S2[0]}")
    e(f"v_add_f32 v{S1[1]}, v{S1[1]}, v{S2[1]}")
    e(f"v_permlane16_swap_b32 v{S1[0]}, v{S1[1]}")
    e(f"v_add_f32 v{S1[0]}, v{S1[0]}, v{S1[1]}")
    for ctl in ("quad_perm:[1,0,3,2]", "quad_perm:[2,3,0,1]", "row_half_mirror", "row_mirror"):
        e(f"v_add_f32_dpp v{S1[0]}, v{S1[0]}, v{S1[0]} {ctl} row_mask:0xf bank_mask:0xf")
    e("s_mov_b32 exec_lo, 0x00010001"); e("s_mov_b32 exec_hi, 0x00010001")
    e(f"ds_write_b32 v{VHR}, v{S1[0]} offset:{L_H}")
    e("s_mov_b64 exec, -1")
    e("s_waitcnt lgkmcnt(0)")
    barrier("L_bar2")
    for w in range(4):
        e(f"ds_read_b128 v[{DD+4*w}:{DD+4*w+3}], v{VZERO} offset:{L_H + 16*w}")
    e(f"v_mov_b32 v{T[8]}, s{sT2}")
    e(f"v_mov_b32 v{T[9]}, s{sT3}")
    e(f"s_mov_b32 s{sT0}, {hex(f32(1.0/640))}")
    e(f"v_mov_b32 v{T[10]}, s{sT0}")
    e("s_waitcnt lgkmcnt(0)")
    for i in (0, 2):
        e(f"v_pk_add_f32 v[{DD+i}:{DD+i+1}], v[{DD+i}:{DD+i+1}], v[{DD+4+i}:{DD+4+i+1}]")
        e(f"v_pk_add_f32 v[{DD+8+i}:{DD+8+i+1}], v[{DD+8+i}:{DD+8+i+1}], v[{DD+12+i}:{DD+12+i+1}]")
    for i in (0, 2): e(f"v_pk_add_f32 v[{DD+i}:{DD+i+1}], v[{DD+i}:{DD+i+1}], v[{DD+8+i}:{DD+8+i+1}]")
    for i in (0, 2): e(f"v_pk_mul_f32 v[{DD+i}:{DD+i+1}], v[{DD+i}:{DD+i+1}], v[{T[10]}:{T[11]}] op_sel_hi:[1,0]")
    e(f"v_pk_add_f32 v[{T[0]}:{T[1]}], v[{DD}:{DD+1}], v[{T[8]}:{T[9]}] neg_lo:[1,1] neg_hi:[1,1]")
    e(f"v_pk_fma_f32 v[{T[2]}:{T[3]}], v[{DD}:{DD+1}], v[{DD}:{DD+1}], v[{DD+2}:{DD+3}] neg_lo:[1,0,0] neg_hi:[1,0,0]")
    def bf16r2(a_):
        e(f"v_cvt_pk_bf16_f32 v{a_+1}, v{a_}, v{a_+1}")
        e(f"v_lshlrev_b32 v{a_}, 16, v{a_+1}")
        e(f"v_and_b32 v{a_+1}, s{sMASK}, v{a_+1}")
    for i in range(2): e(f"v_max_f32 v{T[2+i]}, 0, v{T[2+i]}")
    bf16r2(T[2]); bf16r2(T[0])
    for i in range(2): e(f"v_add_f32 v{T[2+i]}, {hex(f32(1e-5))}, v{T[2+i]}")
    bf16r2(T[2])
    for i in range(2): e(f"v_sqrt_f32 v{T[2+i]}, v{T[2+i]}")
    bf16r2(T[2])
    for i in range(2): e(f"v_rcp_f32 v{T[2+i]}, v{T[2+i]}")
    for b_ in range(2):
        for i in range(2):
            norm_pair(YB + 4*b_ + 2*i, b_, dst=T[8 + 2*b_ + i])
    e(f"v_cmp_gt_u32 vcc, 40, v{VLANE}")
    e("s_mov_b64 exec, vcc")
    e(f"ds_write_b64 v{VLW}, v[{T[8]}:{T[9]}]")
    e(f"ds_write_b64 v{VLW}, v[{T[10]}:{T[11]}] offset:320")
    e("s_mov_b64 exec, -1")
    BF = 72
    for ks in range(5):
        e(f"ds_read_b128 v[{BF+4*ks}:{BF+4*ks+3}], v{VLR} offset:{64*ks}")
    D = T[8]
    for ks in range(5):
        e(f"s_waitcnt lgkmcnt({4-ks})")
        c = "0" if ks == 0 else f"v[{D}:{D+3}]"
        e(f"v_mfma_f32_16x16x32_bf16 v[{D}:{D+3}], v[{F1+4*ks}:{F1+4*ks+3}], v[{BF+4*ks}:{BF+4*ks+3}], {c}")
    e("s_mov_b32 exec_lo, 0x00030003")
    e("s_mov_b32 exec_hi, 0x00030003")
    e(f"ds_write_b128 v{VDW}, v[{D}:{D+3}] offset:{L_DX}")
    e("s_mov_b64 exec, -1")
    e("s_waitcnt lgkmcnt(0)")
    barrier("L_bar3")
    for w in range(4):
        e(f"ds_read_b128 v[{YB+4*w}:{YB+4*w+3}], v{VDR} offset:{L_DX + 128*w}")
    e("s_waitcnt lgkmcnt(0)")
    for i in (0, 2):
        e(f"v_pk_add_f32 v[{YB+i}:{YB+i+1}], v[{YB+i}:{YB+i+1}], v[{YB+4+i}:{YB+4+i+1}]")
        e(f"v_pk_add_f32 v[{YB+8+i}:{YB+8+i+1}], v[{YB+8+i}:{YB+8+i+1}], v[{YB+12+i}:{YB+12+i+1}]")
    for i in (0, 2): e(f"v_pk_add_f32 v[{YB+i}:{YB+i+1}], v[{YB+i}:{YB+i+1}], v[{YB+8+i}:{YB+8+i+1}]")
    D = YB
    for i in range(4): bf16r(D+i)
    for i in range(4): e(f"v_mul_f32 v{T[i]}, {hex(f32(-1.4426950408889634))}, v{D+i}")
    for i in range(4): e(f"v_exp_f32 v{T[i]}, v{T[i]}")
    for i in range(4): e(f"v_add_f32 v{T[i]}, 1.0, v{T[i]}")
    for i in range(4): e(f"v_rcp_f32 v{T[i]}, v{T[i]}")
    for i in range(4): e(f"v_mul_f32 v{D+i}, v{D+i}, v{T[i]}")
    e(f"v_cvt_pk_bf16_f32 v{T[4]}, v{D}, v{D+1}")
    e(f"v_cvt_pk_bf16_f32 v{T[5]}, v{D+2}, v{D+3}")
    ZD = 180
    for tt in range(10):
        e(f"v_mfma_f32_16x16x16_bf16 v[{ZD+4*tt}:{ZD+4*tt+3}], v[{F2+2*tt}:{F2+2*tt+1}], v[{T[4]}:{T[5]}], 0")
    for tt in range(10):
        e(f"s_add_u32 s{sT0}, s{sOOB}, {tt*6144}")
        e(f"buffer_store_dwordx4 v[{ZD+4*tt}:{ZD+4*tt+3}], v{VZA}, {srd(SRD_WS)}, s{sT0} offen sc1")
    stamp()
    if dry:
        e(f"s_cmp_eq_u32 s{sDRY}, 0")
        e("s_cbranch_scc1 L_fin")
        wait_progress("L_mlp_wait")
        e("s_branch L_mlp_tail")
    A.label("L_fin"); A.fence()
    if stamps and not prog:
        e(f"s_cmp_lg_u32 s{sW}, 0")
        e("s_cbranch_scc1 L_end")
        e("s_waitcnt lgkmcnt(0)")
        e(f"s_lshl_b32 s{sT0}, s2, 7")
        e(f"s_add_u32 s{sT0}, s{sT0}, {WS_STAMP + 64 + 32}")
        e("s_mov_b64 exec, 1")
        for i in range(1, 4):
            e(f"v_mov_b32 v{T[2]}, s{sST+2*i}")
            e(f"v_mov_b32 v{T[3]}, s{sST+2*i+1}")
            e(f"buffer_store_dwordx2 v[{T[2]}:{T[3]}], v{VZERO}, {srd(SRD_WS)}, s{sT0} offen offset:{8*i}")
            e("s_nop 1")
    A.label("L_end")
    A.raw("    s_endpgm")
    A.raw(f""".section .rodata,"a"
.p2align 6
.amdhsa_kernel {NAME}
  .amdhsa_next_free_vgpr 256
  .amdhsa_next_free_sgpr 102
  .amdhsa_accum_offset 256
  .amdhsa_group_segment_fixed_size 0
  .amdhsa_kernarg_size 88
  .amdhsa_user_sgpr_count 2
  .amdhsa_user_sgpr_kernarg_segment_ptr 1
  .amdhsa_system_sgpr_workgroup_id_x 1
  .amdhsa_float_denorm_mode_32 3
.end_amdhsa_kernel""")
    return A.text()

if __name__ == "__main__":
    out = sys.argv[1] if len(sys.argv) > 1 else "sequential_preLN__mha_block_cached__dense_activation_silu__decode.s"
    kw = eval("dict(%s)" % sys.argv[2]) if len(sys.argv) > 2 else {}
    open(out, "w").write(gen(**kw))
```

```python
import sys, struct, os
from asmlib import Asm

NAME = "sequential_preLN__mha_block_cached__dense_activation_silu__decode_kernel"
HEADER = open(os.path.join(os.path.dirname(os.path.abspath(__file__)), "header.txt")).read()
def f32(x): return struct.unpack('<I', struct.pack('<f', x))[0]

WS_PART = 0x000000
WS_Y    = 0x040000
WS_Z    = 0x070000
WS_FB   = 0x0F0000
WS_IN   = 0x100000
WS_P0   = 0x180000
WS_STAMP= 0x300000
WS_SIZE = 0x400000
L_CTL  = 0
L_F    = 32
L_ML   = 64
L_QS   = 128
L_RED  = 1024
L_RQ   = 7168
L_OB   = 19712
L_YR   = 22784
L_H    = 23808
L_LN   = 24064
L_DX   = 26624
L_W    = 27136
LDS_BYTES = L_W + 4*12288
KVBYTES = 2*32*8192*384
OOB = WS_SIZE

def gen(depths=(5,6,7,9), thr=(-60,20,100), cp=18, fb=True, init=1, fbdelay=8, stamps=False, spin_limit=1 << 20, kvflags="nt", wflags="nt", sleep=1,
        wdelay=200, indelay=12, insleep=6, prog=False, cflags='sc1', rot=9, back=1, pol=None, late=False, latet=32, early0=False, mlsleep=100, sl=dict(a=1, h=1, c=1, b=4)):
    dry = False; wpace = 1; wskew = 0; half = None; endn = 0
    stamps = stamps or prog
    A = Asm(); e = A.e
    A.raw(HEADER.rstrip('\n'))
    A.raw(f"; @launch grid=(256,1,1) block=(512,1,1) lds={LDS_BYTES}")
    A.raw('.amdgcn_target "amdgcn-amd-amdhsa--gfx950"\n.text\n.globl %s\n.p2align 8\n.type %s,@function\n%s:' % (NAME, NAME, NAME))
    VLANE, VKV, VZERO = 1, 2, 3
    T = list(range(4, 20))
    VG, VC, VMW, VLW_ = 20, 21, 22, 23
    SRD_X, SRD_K, SRD_V, SRD_WQ, SRD_WA, SRD_OUT, SRD_DBG, SRD_WS, SRD_WB = 28, 32, 36, 40, 44, 48, 52, 56, 96
    sW, sH, sB, sSPL, sMEM, sKVB, sOFF = 60, 61, 62, 63, 64, 65, 66
    sMASK, sR, sRS, sT0, sT1, sT2, sT3, sSPIN, sF0 = 67, 68, 69, 70, 71, 72, 73, 74, 75
    sPLO, sPHI, sXG, sCS = 76, 77, 78, 79
    sLID, sDRY, sOOB, sLIM = 3, 26, 27, 100
    sLVL, sNOW, sPREV, sLAG = 101, 20, 22, 23
    depth = depths[init]; DMAX = depths[-1]
    sST = 80
    def srd(s): return f"s[{s}:{s+3}]"
    nstamp = [0]
    def stamp(p=False):
        if not stamps: return
        if prog and not p and nstamp[0] > 0: return
        i = nstamp[0]; nstamp[0] += 1
        assert i < 8, i
        e(f"s_memrealtime s[{sST+2*i}:{sST+2*i+1}]")
    LOG2E = hex(f32(1.4426950408889634))
    SCALE = hex(f32(192 ** -0.5))
    e("s_cmp_ge_u32 s2, 256")
    e("s_cbranch_scc1 L_end")
    e("s_load_dwordx16 s[4:19], s[0:1], 0")
    e("s_load_dwordx4 s[20:23], s[0:1], 64")
    e("s_load_dwordx2 s[24:25], s[0:1], 80")
    if stamps:
        for i in range(1, 8): e(f"s_mov_b64 s[{sST+2*i}:{sST+2*i+1}], 0")
    stamp()
    e(f"v_lshrrev_b32 v{T[0]}, 6, v0")
    e(f"v_and_b32 v{VLANE}, 63, v0")
    e(f"v_readfirstlane_b32 s{sW}, v{T[0]}")
    e(f"v_lshrrev_b32 v{VG}, 3, v{VLANE}")
    e(f"v_and_b32 v{VC}, 7, v{VLANE}")
    e(f"v_mov_b32 v{VZERO}, 0")
    e(f"v_lshlrev_b32 v{T[1]}, 4, v{VLANE}")
    e(f"v_cmp_gt_u32 vcc, 2, v{VLANE}")
    e(f"v_mov_b32 v{T[4]}, -1")
    e(f"v_cndmask_b32 v{T[4]}, v{T[4]}, v{VZERO}, vcc")
    for i in range(1, 4): e(f"v_mov_b32 v{T[4+i]}, v{T[4]}")
    e(f"ds_write_b128 v{T[1]}, v[{T[4]}:{T[7]}]")
    e(f"s_and_b32 s{sXG}, s2, 7")
    e(f"s_lshr_b32 s{sT1}, s2, 3")
    e(f"s_lshr_b32 s{sT2}, s{sT1}, 3")
    e(f"s_lshl_b32 s{sH}, s{sXG}, 2")
    e(f"s_add_u32 s{sH}, s{sH}, s{sT2}")
    e(f"s_and_b32 s{sMEM}, s{sT1}, 7")
    e(f"s_lshr_b32 s{sB}, s{sMEM}, 2")
    e(f"s_and_b32 s{sSPL}, s{sMEM}, 3")
    e(f"s_mul_i32 s{sCS}, s{sT2}, 5")
    e(f"s_add_u32 s{sCS}, s{sCS}, s{sMEM}")
    e(f"s_lshl_b32 s{sLID}, s{sH}, 3")
    e(f"s_add_u32 s{sLID}, s{sLID}, s{sMEM}")
    e(f"s_mov_b32 s{sMASK}, 0xffff0000")
    e(f"s_mov_b32 s{sLIM}, {spin_limit}")
    e(f"s_mov_b32 s{sDRY}, 0")
    e(f"s_mov_b32 s{sOOB}, 0")
    e(f"s_mul_i32 s{sKVB}, s{sH}, 3145728")
    e(f"s_lshl_b32 s{sT0}, s{sMEM}, 2")
    e(f"s_and_b32 s{sT1}, s{sW}, 3")
    e(f"s_add_u32 s{sT0}, s{sT0}, s{sT1}")
    e(f"s_mul_i32 s{sT0}, s{sT0}, 3072")
    e(f"s_add_u32 s{sKVB}, s{sKVB}, s{sT0}")
    e(f"v_mul_u32_u24 v{VKV}, 384, v{VG}")
    e(f"v_lshl_add_u32 v{VKV}, v{VC}, 4, v{VKV}")
    def mkc(s, size):
        e(f"s_mov_b32 s{s+2}, {size}"); e(f"s_mov_b32 s{s+3}, 0x20000")
    def mkb(s, p):
        e(f"s_mov_b32 s{s}, s{p}"); e(f"s_mov_b32 s{s+1}, s{p+1}")
    mkc(SRD_K, KVBYTES); mkc(SRD_X, 2560); mkc(SRD_WQ, 640*6144*2); mkc(SRD_WS, WS_SIZE)
    mkc(SRD_V, KVBYTES); mkc(SRD_OUT, 2560); mkc(SRD_DBG, 256)
    e(f"s_cmp_lt_u32 s{sW}, 4")
    e("s_cbranch_scc1 L_helper")

    def wave_reduce(v, op, tmp, n=64):
        for ctl in ("quad_perm:[1,0,3,2]", "quad_perm:[2,3,0,1]", "row_half_mirror", "row_mirror"):
            e(f"v_{op}_dpp v{v}, v{v}, v{v} {ctl} row_mask:0xf bank_mask:0xf")
        e(f"v_mov_b32 v{tmp}, v{v}")
        e(f"v_permlane16_swap_b32 v{v}, v{tmp}")
        e(f"v_{op} v{v}, v{v}, v{tmp}")
        if n == 64:
            e(f"v_mov_b32 v{tmp}, v{v}")
            e(f"v_permlane32_swap_b32 v{v}, v{tmp}")
            e(f"v_{op} v{v}, v{v}, v{tmp}")
    def group_reduce(v, op, tmp):
        e(f"v_{op}_dpp v{v}, v{v}, v{v} row_ror:8 row_mask:0xf bank_mask:0xf")
        e(f"v_mov_b32 v{tmp}, v{v}")
        e(f"v_permlane16_swap_b32 v{v}, v{tmp}")
        e(f"v_{op} v{v}, v{v}, v{tmp}")
        e(f"v_mov_b32 v{tmp}, v{v}")
        e(f"v_permlane32_swap_b32 v{v}, v{tmp}")
        e(f"v_{op} v{v}, v{v}, v{tmp}")
    def bf16r(v):
        e(f"v_cvt_pk_bf16_f32 v{v}, v{v}, v{v}")
        e(f"v_lshlrev_b32 v{v}, 16, v{v}")
    def spin_begin(lbl):
        e(f"s_mov_b32 s{sSPIN}, 0")
        A.label(lbl); A.fence()
    def spin_end(lbl, done_lbl, slp=None):
        slp = sleep if slp is None else slp
        e(f"s_cbranch_vccz {done_lbl}")
        e(f"s_add_u32 s{sSPIN}, s{sSPIN}, 1")
        e(f"s_cmp_ge_u32 s{sSPIN}, s{sLIM}")
        e(f"s_cbranch_scc1 {done_lbl}")
        if slp: e(f"s_sleep {slp}")
        e(f"s_branch {lbl}")
        A.label(done_lbl); A.fence()
    def sentinel_check(regs, tmp):
        n = len(regs)
        e(f"v_max3_u32 v{tmp}, v{regs[0]}, v{regs[1]}, v{regs[2]}")
        i = 3
        while i + 1 < n:
            e(f"v_max3_u32 v{tmp}, v{tmp}, v{regs[i]}, v{regs[i+1]}"); i += 2
        if i < n: e(f"v_max_u32 v{tmp}, v{tmp}, v{regs[i]}")
        e(f"v_cmp_eq_u32 vcc, -1, v{tmp}")
    def rng(a, n): return list(range(a, a+n))
    def poll(name, loads, setA, consume, res, tmp):
        spin_begin(f"L_{name}_spin")
        loads(setA)
        e("s_waitcnt vmcnt(0)")
        consume(setA)
        cur = list(res)
        if len(cur) == 8:
            e(f"v_pk_add_f32 v[{tmp}:{tmp+1}], v[{cur[0]}:{cur[1]}], v[{cur[2]}:{cur[3]}]")
            e(f"v_pk_add_f32 v[{tmp+2}:{tmp+3}], v[{cur[4]}:{cur[5]}], v[{cur[6]}:{cur[7]}]")
            e(f"v_pk_add_f32 v[{tmp}:{tmp+1}], v[{tmp}:{tmp+1}], v[{tmp+2}:{tmp+3}]")
        else:
            e(f"v_pk_add_f32 v[{tmp}:{tmp+1}], v[{cur[0]}:{cur[1]}], v[{cur[2]}:{cur[3]}]")
        e(f"v_cmp_u_f32 vcc, v{tmp}, v{tmp+1}")
        spin_end(f"L_{name}_spin", f"L_{name}_ok", slp=sl[name])
    def ln_stats(HBx):
        s_, t_, q_ = T[0], T[1], T[2]
        e(f"v_pk_add_f32 v[{T[4]}:{T[5]}], v[{HBx}:{HBx+1}], v[{HBx+2}:{HBx+3}]")
        for i in range(4, 20, 2): e(f"v_pk_add_f32 v[{T[4]}:{T[5]}], v[{T[4]}:{T[5]}], v[{HBx+i}:{HBx+i+1}]")
        e(f"v_add_f32 v{s_}, v{T[4]}, v{T[5]}")
        wave_reduce(s_, "add_f32", t_, n=32)
        e(f"v_mul_f32 v{s_}, {hex(f32(-1.0/640))}, v{s_}")
        for i in range(0, 20, 2):
            e(f"v_pk_add_f32 v[{T[6]}:{T[7]}], v[{HBx+i}:{HBx+i+1}], v[{s_}:{s_+1}] op_sel_hi:[1,0]")
            if i == 0: e(f"v_pk_mul_f32 v[{T[4]}:{T[5]}], v[{T[6]}:{T[7]}], v[{T[6]}:{T[7]}]")
            else: e(f"v_pk_fma_f32 v[{T[4]}:{T[5]}], v[{T[6]}:{T[7]}], v[{T[6]}:{T[7]}], v[{T[4]}:{T[5]}]")
        e(f"v_add_f32 v{q_}, v{T[4]}, v{T[5]}")
        wave_reduce(q_, "add_f32", T[3], n=32)
        e(f"v_mul_f32 v{q_}, {hex(f32(1.0/640))}, v{q_}")
        bf16r(s_); bf16r(q_)
        e(f"v_add_f32 v{q_}, {hex(f32(1e-5))}, v{q_}")
        bf16r(q_)
        e(f"v_sqrt_f32 v{q_}, v{q_}")
        bf16r(q_)
        e(f"v_rcp_f32 v{q_}, v{q_}")
        e(f"v_mov_b32 v{T[1]}, v{T[0]}")
        e(f"v_mov_b32 v{T[3]}, v{T[2]}")
        e(f"v_permlane32_swap_b32 v{T[0]}, v{T[1]}")
        e(f"v_permlane32_swap_b32 v{T[2]}, v{T[3]}")
    def norm_pair(a, b_, dst=None):
        sel = "op_sel_hi:[1,0]" if b_ == 0 else "op_sel:[0,1] op_sel_hi:[1,1]"
        e(f"v_pk_add_f32 v[{a}:{a+1}], v[{a}:{a+1}], v[{T[0]}:{T[1]}] {sel}")
        e(f"v_cvt_pk_bf16_f32 v{a+1}, v{a}, v{a+1}")
        e(f"v_lshlrev_b32 v{a}, 16, v{a+1}")
        e(f"v_and_b32 v{a+1}, s{sMASK}, v{a+1}")
        e(f"v_pk_mul_f32 v[{a}:{a+1}], v[{a}:{a+1}], v[{T[2]}:{T[3]}] {sel}")
        if dst is not None:
            e(f"v_cvt_pk_bf16_f32 v{dst}, v{a}, v{a+1}")
        else:
            e(f"v_cvt_pk_bf16_f32 v{a+1}, v{a}, v{a+1}")
            e(f"v_lshlrev_b32 v{a}, 16, v{a+1}")
            e(f"v_and_b32 v{a+1}, s{sMASK}, v{a+1}")
    def write_stamps(slot):
        e("s_waitcnt lgkmcnt(0)")
        e(f"s_lshl_b32 s{sT0}, s2, 7")
        e(f"s_add_u32 s{sT0}, s{sT0}, {WS_STAMP + slot*64}")
        e("s_mov_b64 exec, 1")
        for i in range(8):
            e(f"v_mov_b32 v{T[2]}, s{sST+2*i}")
            e(f"v_mov_b32 v{T[3]}, s{sST+2*i+1}")
            e(f"buffer_store_dwordx2 v[{T[2]}:{T[3]}], v{VZERO}, {srd(SRD_WS)}, s{sT0} offen offset:{8*i}")
            e("s_nop 1")

    Q = 24; ACC = 36; SC = 60; RING = 92; VRED = 252; VRP = 253
    NT = 32
    slots = [RING + 4*i for i in range(40)]
    early = [ACC + 4*i for i in range(6)] + [SC + 8 + 4*i for i in range(6)]
    order = [(k, b_, t, j) for b_ in range(2) for k in 'KV' for t in range(NT) for j in range(3)]
    pos = {L: i for i, L in enumerate(order)}
    free = early + slots
    npre = 51
    slot = {}; tick = {}; m = [0]; last_off = [None]; landed = [0]
    A.vm_issued = 0
    def issue_one():
        L = order[m[0]]; m[0] += 1
        kind, b_, t, j = L
        r = free.pop(0); slot[L] = r
        if last_off[0] != (kind, b_, t):
            e(f"s_add_u32 s{sOFF}, s{sCS}, {t}")
            e(f"s_and_b32 s{sOFF}, s{sOFF}, 31")
            e(f"s_mul_i32 s{sOFF}, s{sOFF}, 98304")
            e(f"s_add_u32 s{sOFF}, s{sOFF}, s{sKVB if b_ == 0 else sF0}")
            last_off[0] = (kind, b_, t)
        sr = SRD_K if kind == 'K' else SRD_V
        tick[L] = e(f"buffer_load_dwordx4 v[{r}:{r+3}], v{VKV}, {srd(sr)}, s{sOFF} offen offset:{j*128} {kvflags if not (pol and (kind + str(b_)) in pol) else ''}")
    def can_issue(): return m[0] < len(order) and free
    def wait_for(L):
        while L not in tick: issue_one()
        if tick[L] > landed[0]:
            A.wait_vm(tick[L]); landed[0] = tick[L]
    nthr = [0]
    def pump():
        if not can_issue(): return
        infl = A.vm_issued - landed[0]
        if infl >= depths[0]:
            if infl >= DMAX:
                tk = A.vm_issued - (DMAX - 1)
                A.wait_vm(tk); landed[0] = tk
            if fb:
                nthr[0] += 1; lbl = f"L_go{nthr[0]}"
                for lv in (3, 2, 1):
                    e(f"s_cmp_ge_u32 s{sLVL}, {lv}")
                    e(f"s_cbranch_scc1 {lbl}")
                    e(f"s_waitcnt vmcnt({depths[lv-1]-1})")
                for I_ in A.hist[-7:]: I_.states = 0
                A.label(lbl)
            elif A.vm_issued - landed[0] >= depth:
                tk = A.vm_issued - (depth - 1)
                A.wait_vm(tk); landed[0] = tk
        issue_one()
    def release(L):
        if slot[L] >= RING: free.append(slot[L])
    e(f"s_mul_i32 s{sCS}, s{sH}, {rot}")
    e(f"s_add_u32 s{sF0}, s{sKVB}, 100663296")
    e("s_waitcnt lgkmcnt(0)")
    mkb(SRD_K, 6)
    for _ in range(depth): issue_one()
    mkb(SRD_V, 8); mkb(SRD_WS, 24)
    e("s_barrier")
    e(f"s_mov_b32 s{sLVL}, {init}")
    e(f"s_mov_b32 s{sNOW}, 0")
    sOK = sPLO; sLAST = sPHI
    e(f"s_mov_b32 s{sOK}, 0")
    e(f"s_mov_b32 s{sR}, 0")
    e(f"s_lshr_b32 s{sT0}, s2, 7"); e(f"s_lshl_b32 s{sT0}, s{sT0}, 3"); e(f"s_add_u32 s{sT0}, s{sT0}, s{sXG}"); e(f"s_lshl_b32 s{sT0}, s{sT0}, 2")
    e(f"s_bfe_u32 s{sT1}, s2, 0x40003")
    e(f"s_cmp_eq_u32 s{sT1}, 3"); e(f"s_cselect_b32 s{sT0}, s{sT0}, {OOB}")
    e(f"s_cmp_eq_u32 s{sW}, 4"); e(f"s_cselect_b32 s{sT0}, s{sT0}, {OOB}")
    e(f"v_mov_b32 v{VRP}, s{sT0}")
    e(f"v_mov_b32 v{T[2]}, {OOB}")
    e(f"v_cmp_eq_u32 vcc, 0, v{VLANE}")
    e(f"v_cndmask_b32 v{VRP}, v{T[2]}, v{VRP}, vcc")
    e(f"v_mul_u32_u24 v{VRED}, 96, v{VC}")
    e(f"v_mul_u32_u24 v{T[2]}, 12, v{VG}")
    e(f"v_add_u32 v{VRED}, v{VRED}, v{T[2]}")
    e(f"s_and_b32 s{sSPL}, s{sW}, 3")
    e(f"s_mul_i32 s{sRS}, s{sSPL}, 768")
    e(f"v_add_u32 v{VRED}, s{sRS}, v{VRED}")
    e(f"v_lshlrev_b32 v{T[14]}, 4, v{VLANE}")
    e(f"v_cmp_gt_u32 vcc, 48, v{VLANE}")
    e(f"v_mov_b32 v{T[15]}, {OOB}")
    e(f"v_cndmask_b32 v{T[15]}, v{T[15]}, v{T[14]}, vcc")
    e(f"v_mov_b32 v{T[13]}, 1")
    for _ in range(npre - depth): pump()
    ncons = [0]
    fbs = dict(ncp=0, due1=None, due=None)
    LOOK = DMAX if fb else depth
    def step(L):
        ncons[0] += 1
        n = ncons[0]
        if m[0] - pos[L] > LOOK:
            if n % 3 == 0: pump()
        else:
            while can_issue() and m[0] - pos[L] <= LOOK: pump()
        wait_for(L)
    def feedback():
        if not fb: return
        n = ncons[0]
        if fbs['due1'] == n:
            e("s_waitcnt lgkmcnt(0)")
            e(f"v_mov_b32 v254, s{sNOW}")
            e(f"s_mov_b32 s{sT0}, {WS_FB + fbs['ncp']*128}")
            e(f"buffer_store_dword v254, v{VRP}, {srd(SRD_WS)}, s{sT0} offen sc1")
            if fbs['ncp'] > back:
                e(f"s_cmp_eq_u32 s{sOK}, 0")
                e(f"s_cbranch_scc1 L_fb{fbs['ncp']}a")
                e(f"s_load_dwordx16 s[4:19], s[24:25], {WS_FB + (fbs['ncp']-back)*128}")
                A.label(f"L_fb{fbs['ncp']}a")
            e(f"ds_read_b32 v255, v{VZERO} offset:{L_CTL+8}")
            fbs['due'] = n + fbdelay
        if fbs['due'] == n:
            e("s_waitcnt lgkmcnt(0)")
            if fbs['ncp'] > back:
                e(f"s_cmp_eq_u32 s{sOK}, 0")
                e(f"s_cbranch_scc1 L_fb{fbs['ncp']}b")
                e(f"s_mov_b32 s{sLAG}, 0")
                for i in range(16):
                    e(f"s_min_u32 s{4+i}, s{4+i}, s{sNOW}")
                    e(f"s_sub_u32 s{4+i}, s{sPREV}, s{4+i}")
                    e(f"s_add_u32 s{sLAG}, s{sLAG}, s{4+i}")
                e(f"s_ashr_i32 s{sLAG}, s{sLAG}, 4")
                e(f"s_mov_b32 s{sLVL}, 0")
                for lv, th in enumerate(thr):
                    e(f"s_cmp_ge_i32 s{sLAG}, {th}"); e(f"s_cselect_b32 s{sLVL}, {lv+1}, s{sLVL}")
                A.label(f"L_fb{fbs['ncp']}b"); A.fence()
                e("s_nop 2")
            e(f"v_readfirstlane_b32 s{sOK}, v255")
        if n >= 84 and n % cp == cp - 1 and n + 2*DMAX + 12 < len(order):
            fbs['ncp'] += 1
            assert fbs['ncp'] < 32
            if back == 1: e(f"s_mov_b32 s{sPREV}, s{sNOW}")
            else:
                e(f"s_mov_b32 s{sPREV}, s{sR}"); e(f"s_mov_b32 s{sR}, s{sNOW}")
            e(f"s_memrealtime s[{sNOW}:{sNOW+1}]")
            fbs['due1'] = n + 1
    def flush(b_):
        a = ACC
        for k in range(12): e(f"v_permlane32_swap_b32 v{a+k}, v{a+k+12}")
        for k in range(12): e(f"v_add_f32 v{a+k}, v{a+k}, v{a+k+12}")
        if b_ == 0: pump()
        for k in range(6): e(f"v_permlane16_swap_b32 v{a+k}, v{a+k+6}")
        for k in range(6): e(f"v_add_f32 v{a+k}, v{a+k}, v{a+k+6}")
        for k in range(3): e(f"v_add_f32_dpp v{a+12+k}, v{a+k}, v{a+k} row_ror:8 row_mask:0xf bank_mask:0x3")
        for k in range(3): e(f"v_add_f32_dpp v{a+12+k}, v{a+3+k}, v{a+3+k} row_ror:8 row_mask:0xf bank_mask:0xc")
        for k in range(3): e(f"v_mul_f32 v{a+12+k}, v{a+12+k}, v{VMW}")
        for k in range(3): e(f"ds_write_b32 v{VRED}, v{a+12+k} offset:{L_RED + 3072*b_ + 4*k}")
        e("s_mov_b64 exec, 1")
        e(f"ds_add_rtn_u32 v{T[12]}, v{VZERO}, v{T[13]} offset:{L_CTL + (4 if b_ == 0 else 16)}")
        e("s_mov_b64 exec, -1")
        if b_ == 0: pump()
        e(f"s_lshl_b32 s{sT1}, s{sLID}, 10")
        if b_ == 0: e(f"s_add_u32 s{sT1}, s{sT1}, {WS_P0}")
        e("s_waitcnt lgkmcnt(0)")
        e(f"v_readfirstlane_b32 s{sLAST}, v{T[12]}")
        e(f"s_cmp_lg_u32 s{sLAST}, 3")
        if b_ == 0: e(f"s_cselect_b32 s{sT1}, {OOB}, s{sT1}")
        e(f"s_cbranch_scc1 L_fl{b_}")
        for w in range(4):
            e(f"ds_read_b128 v[{ACC+4*w}:{ACC+4*w+3}], v{T[14]} offset:{L_RED + 3072*b_ + w*768}")
        e("s_waitcnt lgkmcnt(0)")
        for i in (0, 2):
            e(f"v_pk_add_f32 v[{ACC+i}:{ACC+i+1}], v[{ACC+i}:{ACC+i+1}], v[{ACC+4+i}:{ACC+4+i+1}]")
            e(f"v_pk_add_f32 v[{ACC+8+i}:{ACC+8+i+1}], v[{ACC+8+i}:{ACC+8+i+1}], v[{ACC+12+i}:{ACC+12+i+1}]")
        for i in (0, 2): e(f"v_pk_add_f32 v[{ACC+i}:{ACC+i+1}], v[{ACC+i}:{ACC+i+1}], v[{ACC+8+i}:{ACC+8+i+1}]")
        if b_ == 0:
            A.label("L_fl0"); A.fence()
            return e(f"buffer_store_dwordx4 v[{ACC}:{ACC+3}], v{T[15]}, {srd(SRD_WS)}, s{sT1} offen sc1")
        e(f"buffer_store_dwordx4 v[{ACC}:{ACC+3}], v{T[15]}, {srd(SRD_WS)}, s{sT1} offen sc1")
        e(f"ds_write_b32 v{VZERO}, v{T[13]} offset:{L_CTL+12}")
        if stamps:
            stamp()
            write_stamps(0)
        A.label("L_fl1"); A.fence()
    tk_p0 = None; p0_flagged = False
    for L in order:
        kind, b_, t, j = L
        if prog and j == 0 and (kind, b_, t) in (('K',0,24),('V',0,8),('V',0,24),('K',1,8),('K',1,24),('V',1,8),('V',1,24)): stamp(True)
        if kind == 'K':
            if t == 0 and j == 0:
                e(f"v_lshlrev_b32 v{T[8]}, 4, v{VC}")
                spin_begin(f"L_ql{b_}_spin")
                for jj in range(3):
                    e(f"ds_read_b128 v[{Q+4*jj}:{Q+4*jj+3}], v{T[8]} offset:{L_QS + 384*b_ + 128*jj}")
                e("s_waitcnt lgkmcnt(0)")
                sentinel_check(rng(Q, 12), T[9])
                spin_end(f"L_ql{b_}_spin", f"L_ql{b_}_done")
                if b_ == 0: stamp()
            step(L)
            r = slot[L]
            for i in range(4):
                c = "0" if i == 0 else f"v{T[j]}"
                e(f"v_dot2_f32_bf16 v{T[j]}, v{r+i}, v{Q+4*j+i}, {c}")
            release(L)
            feedback()
            if tk_p0 is not None and not p0_flagged and landed[0] >= tk_p0:
                e(f"s_cmp_lg_u32 s{sLAST}, 3")
                e("s_cbranch_scc1 L_p0f")
                e(f"ds_write_b32 v{VZERO}, v{T[13]} offset:{L_CTL+20}")
                A.label("L_p0f")
                p0_flagged = True
            if j == 2:
                sc = SC + t
                assert all(not (slot[x] <= sc < slot[x]+4) for x in order[pos[L]+1:] if x in slot), "score reg busy"
                e(f"v_add_f32 v{sc}, v{T[0]}, v{T[1]}")
                e(f"v_add_f32 v{sc}, v{sc}, v{T[2]}")
                for ctl in ("quad_perm:[1,0,3,2]", "quad_perm:[2,3,0,1]", "row_half_mirror"):
                    e(f"v_add_f32_dpp v{sc}, v{sc}, v{sc} {ctl} row_mask:0xf bank_mask:0xf")
                bf16r(sc)
                e(f"v_mul_f32 v{sc}, {SCALE}, v{sc}")
                bf16r(sc)
                if t == 0: e(f"v_mov_b32 v{VMW}, v{sc}")
                else: e(f"v_max_f32 v{VMW}, v{VMW}, v{sc}")
            if t == NT-1 and j == 2:
                if b_ == 1: stamp()
                group_reduce(VMW, "max_f32", T[1])
        else:
            if j == 0 and t < 8:
                for t2 in range(4*t, 4*t+4):
                    sc = SC + t2
                    e(f"v_sub_f32 v{sc}, v{sc}, v{VMW}")
                    e(f"v_mul_f32 v{sc}, {LOG2E}, v{sc}")
                    e(f"v_exp_f32 v{sc}, v{sc}")
                    if t2 == 0: e(f"v_mov_b32 v{VLW_}, v{sc}")
                    else: e(f"v_add_f32 v{VLW_}, v{VLW_}, v{sc}")
            if t == 8 and j == 0:
                group_reduce(VLW_, "add_f32", T[8])
                e(f"s_lshl_b32 s{sT0}, s{sSPL}, 3")
                e(f"v_mov_b32 v{T[8]}, s{sT0}")
                e(f"ds_write_b64 v{T[8]}, v[{VMW}:{VLW_}] offset:{L_ML + 32*b_}")
            if b_ == 1 and t == latet and j == 0:
                e(f"ds_write_b32 v{VZERO}, v{T[13]} offset:{L_CTL+24}")
            if t == NT-3 and j == 1:
                e(f"s_lshl_b32 s{sT0}, s{sSPL}, 2")
                e(f"v_mov_b32 v{T[8]}, s{sT0}")
                spin_begin(f"L_mx{b_}_spin")
                e(f"ds_read_b32 v{VMW}, v{T[8]} offset:{L_F + 16*b_}")
                e(f"ds_read_b32 v{T[12]}, v{VZERO} offset:{L_CTL+8}")
                e("s_waitcnt lgkmcnt(0)")
                e(f"v_subrev_u32 v{T[12]}, 1, v{T[12]}")
                e(f"v_max_u32 v{T[12]}, v{T[12]}, v{VMW}")
                e(f"v_cmp_eq_u32 vcc, -1, v{T[12]}")
                spin_end(f"L_mx{b_}_spin", f"L_mx{b_}_done")
            step(L)
            r = slot[L]
            for i in range(4):
                lo, hi = T[(2*i) % 8], T[(2*i+1) % 8]
                e(f"v_lshlrev_b32 v{lo}, 16, v{r+i}")
                e(f"v_and_b32 v{hi}, s{sMASK}, v{r+i}")
                k = ACC + 8*j + 2*i
                op = "v_mul_f32" if t == 0 else "v_fmac_f32"
                e(f"{op} v{k}, v{SC+t}, v{lo}"); e(f"{op} v{k+1}, v{SC+t}, v{hi}")
            release(L)
            feedback()
            if t == NT-1 and j == 2:
                if b_ == 0: tk_p0 = flush(0)
                else:
                    stamp(); flush(1)
    assert p0_flagged
    e("s_endpgm")

    A.label("L_helper"); A.fence()
    nstamp[0] = 1
    e("s_setprio 3")
    e(f"s_mov_b32 s{sPLO}, 0x05040100")
    e(f"s_mov_b32 s{sPHI}, 0x07060302")
    e(f"s_mul_i32 s{sR}, s{sH}, 5")
    e(f"s_add_u32 s{sR}, s{sR}, s{sMEM}")
    e(f"s_mul_i32 s{sF0}, s{sH}, 3")
    e(f"s_add_u32 s{sF0}, s{sF0}, s{sMEM}")
    e(f"s_sub_u32 s{sF0}, s{sF0}, 5")
    e(f"s_lshl_b32 s{sF0}, s{sF0}, 4")
    VL16 = 24; VYA = 25; VA = [26, 27, 28, 29, 30, 31]
    XS = 32
    XO = 42
    HB = 52
    LNV = 72
    QA = 92
    WQB = 108
    r_, c_ = T[0], T[1]
    e(f"v_cmp_le_u32 vcc, 24, v{VLANE}")
    e(f"v_cndmask_b32 v{r_}, 0, 1, vcc")
    e(f"v_mul_u32_u24 v{c_}, 24, v{r_}")
    e(f"v_sub_u32 v{c_}, v{VLANE}, v{c_}")
    e(f"s_mul_i32 s{sT0}, s{sMEM}, 80")
    e(f"s_mul_i32 s{sT1}, s{sW}, 20")
    e(f"s_add_u32 s{sT0}, s{sT0}, s{sT1}")
    e(f"v_mul_u32_u24 v{T[2]}, 10, v{r_}")
    e(f"v_add_u32 v{T[2]}, s{sT0}, v{T[2]}")
    e(f"v_lshlrev_b32 v{VA[0]}, 1, v{T[2]}")
    e(f"v_mul_u32_u24 v{VA[1]}, 40, v{VLANE}")
    e(f"v_mul_u32_u24 v{VA[2]}, 12288, v{T[2]}")
    e(f"v_lshl_add_u32 v{VA[2]}, v{c_}, 4, v{VA[2]}")
    e(f"s_mul_i32 s{sT0}, s{sH}, 384")
    e(f"v_add_u32 v{VA[2]}, s{sT0}, v{VA[2]}")
    e(f"v_cmp_gt_u32 vcc, 48, v{VLANE}")
    e(f"v_mov_b32 v{T[3]}, 0x7f000000")
    e(f"v_cndmask_b32 v{VA[2]}, v{T[3]}, v{VA[2]}, vcc")
    e("s_waitcnt lgkmcnt(0)")
    mkb(SRD_X, 4); mkb(SRD_WQ, 10)
    e(f"buffer_load_dwordx4 v[{XS}:{XS+3}], v{VA[1]}, {srd(SRD_X)}, 0 offen")
    e(f"buffer_load_dwordx4 v[{XS+4}:{XS+7}], v{VA[1]}, {srd(SRD_X)}, 0 offen offset:16")
    e(f"buffer_load_dwordx2 v[{XS+8}:{XS+9}], v{VA[1]}, {srd(SRD_X)}, 0 offen offset:32")
    XOa = [44, 48]; XOb = [42, 43]
    for b_ in range(2):
        e(f"buffer_load_dwordx4 v[{XOa[b_]}:{XOa[b_]+3}], v{VA[0]}, {srd(SRD_X)}, 0 offen offset:{1280*b_}")
        e(f"buffer_load_dword v{XOb[b_]}, v{VA[0]}, {srd(SRD_X)}, 0 offen offset:{1280*b_+16}")
    for i in range(10):
        if i: e(f"s_mov_b32 s{sOFF}, {i*12288}")
        so = f"s{sOFF}" if i else "0"
        e(f"buffer_load_dwordx4 v[{WQB+4*i}:{WQB+4*i+3}], v{VA[2]}, {srd(SRD_WQ)}, {so} offen {wflags}")
    mkb(SRD_WS, 24); mkb(SRD_OUT, 20); mkb(SRD_DBG, 22)
    e(f"s_cmp_lt_u32 s{sMEM}, 5")
    e(f"s_cselect_b32 s{SRD_WA}, s12, s16"); e(f"s_cselect_b32 s{SRD_WA+1}, s13, s17")
    e(f"s_cselect_b32 s{SRD_WB}, s12, s18"); e(f"s_cselect_b32 s{SRD_WB+1}, s13, s19")
    e(f"s_mov_b32 s{SRD_WA+2}, {640*1536*2}")
    e(f"s_cselect_b32 s{SRD_WA+2}, {6144*640*2}, s{SRD_WA+2}")
    e(f"s_mov_b32 s{SRD_WB+2}, s{SRD_WA+2}")
    e(f"s_mov_b32 s{SRD_WA+3}, 0x20000"); e(f"s_mov_b32 s{SRD_WB+3}, 0x20000")
    e(f"v_mul_u32_u24 v{VA[3]}, 1536, v{r_}")
    e(f"v_lshl_add_u32 v{VA[3]}, v{c_}, 5, v{VA[3]}")
    e(f"s_mul_i32 s{sT0}, s{sW}, 3072")
    e(f"v_add_u32 v{VA[3]}, s{sT0}, v{VA[3]}")
    e(f"v_lshlrev_b32 v{VL16}, 4, v{VLANE}")
    e(f"v_mul_u32_u24 v{VYA}, 2560, v{VG}")
    e(f"v_lshl_add_u32 v{VYA}, v{VC}, 4, v{VYA}")
    e(f"s_mul_i32 s{sT0}, s{sXG}, 5120")
    e(f"s_lshl_b32 s{sT1}, s{sCS}, 7")
    e(f"s_add_u32 s{sT0}, s{sT0}, s{sT1}")
    e(f"s_add_u32 s{sT0}, s{sT0}, {WS_Y}")
    e(f"s_cmp_ge_u32 s{sMEM}, 5")
    e(f"s_cselect_b32 s{sT0}, {OOB}, s{sT0}")
    e(f"v_add_u32 v{VYA}, s{sT0}, v{VYA}")
    e(f"v_cmp_le_u32 vcc, 16, v{VLANE}")
    e(f"v_mov_b32 v{T[3]}, {OOB}")
    e(f"v_cndmask_b32 v{VYA}, v{VYA}, v{T[3]}, vcc")
    for i in range(4): e(f"v_mov_b32 v{T[4+i]}, -1")
    e(f"s_cmp_lg_u32 s{sW}, 3")
    e("s_cbranch_scc1 L_clr_done")
    e(f"s_mul_i32 s{sT1}, s{sR}, 3072")
    e(f"s_add_u32 s{sT1}, s{sT1}, {WS_Z}")
    e(f"s_cmp_ge_u32 s{sMEM}, 5")
    e(f"s_cselect_b32 s{sT1}, {OOB}, s{sT1}")
    for i in range(3):
        e(f"buffer_store_dwordx4 v[{T[4]}:{T[7]}], v{VL16}, {srd(SRD_WS)}, s{sT1} offen offset:{1024*i} {cflags}")
    e(f"s_lshl_b32 s{sT0}, s{sLID}, 10")
    e(f"buffer_store_dwordx4 v[{T[4]}:{T[7]}], v{VL16}, {srd(SRD_WS)}, s{sT0} offen {cflags}")
    e(f"buffer_store_dwordx4 v[{T[4]}:{T[7]}], v{VYA}, {srd(SRD_WS)}, 0 offen {cflags}")
    e(f"s_cmp_lg_u32 s{sLID}, 7")
    e("s_cbranch_scc1 L_clr_done")
    e(f"s_mov_b32 s{sT0}, {WS_FB}")
    for i in range(4):
        e(f"buffer_store_dwordx4 v[{T[4]}:{T[7]}], v{VL16}, {srd(SRD_WS)}, s{sT0} offen offset:{1024*i} {cflags}")
    A.label("L_clr_done"); A.fence()
    e("s_barrier")
    e(f"s_cmp_lg_u32 s{sW}, 3")
    e("s_cbranch_scc1 L_h3w")
    e("s_waitcnt vmcnt(0)")
    A.label("L_h3w"); A.fence()
    e("s_waitcnt vmcnt(10)")
    for i in range(10):
        e(f"v_lshlrev_b32 v{HB+2*i}, 16, v{XS+i}")
        e(f"v_and_b32 v{HB+2*i+1}, s{sMASK}, v{XS+i}")
    ln_stats(HB)
    for b_ in range(2):
        src = [XOa[b_]+i for i in range(4)] + [XOb[b_]]
        for i in range(5):
            a_ = LNV + 10*b_ + 2*i
            e(f"v_lshlrev_b32 v{a_}, 16, v{src[i]}")
            e(f"v_and_b32 v{a_+1}, s{sMASK}, v{src[i]}")
            norm_pair(a_, b_)
    for i in range(10):
        e(f"s_waitcnt vmcnt({9-i})")
        r = WQB + 4*i
        for d in range(4):
            lo, hi = T[(2*d) % 8 + 4], T[(2*d+1) % 8 + 4]
            e(f"v_lshlrev_b32 v{lo}, 16, v{r+d}")
            e(f"v_and_b32 v{hi}, s{sMASK}, v{r+d}")
            for b_ in range(2):
                k = QA + 8*b_ + 2*d; p = LNV + 10*b_ + i
                op = "v_mul_f32" if i == 0 else "v_fmac_f32"
                e(f"{op} v{k}, v{p}, v{lo}"); e(f"{op} v{k+1}, v{p}, v{hi}")
    e(f"v_cmp_gt_u32 vcc, 48, v{VLANE}")
    e(f"s_and_saveexec_b64 s[{sT2}:{sT3}], vcc")
    for b_ in range(2):
        e(f"ds_write_b128 v{VA[3]}, v[{QA+8*b_}:{QA+8*b_+3}] offset:{L_RQ + 768*b_}")
        e(f"ds_write_b128 v{VA[3]}, v[{QA+8*b_+4}:{QA+8*b_+7}] offset:{L_RQ + 768*b_ + 16}")
    e("s_mov_b64 exec, 1")
    e(f"v_mov_b32 v{T[0]}, 1")
    e(f"ds_add_rtn_u32 v{T[1]}, v{VZERO}, v{T[0]} offset:{L_CTL}")
    e("s_mov_b64 exec, -1")
    e("s_waitcnt lgkmcnt(0)")
    e(f"v_readfirstlane_b32 s{sT0}, v{T[1]}")
    e(f"v_cmp_gt_u32 vcc, 48, v{VLANE}")
    e(f"v_mov_b32 v{T[3]}, {OOB}")
    e(f"v_cndmask_b32 v{VA[4]}, v{T[3]}, v{VL16}, vcc")
    e(f"s_cmp_lg_u32 s{sT0}, 3")
    e("s_cbranch_scc1 L_q_skip")
    for b_ in range(2):
        for k in range(8):
            d = WQB + 32*b_ + 4*k
            e(f"ds_read_b128 v[{d}:{d+3}], v{VL16} offset:{L_RQ + (2*k + b_)*768}")
        e("s_waitcnt lgkmcnt(0)")
    for b_ in range(2):
        for st in (1, 2, 4):
            for k in range(0, 8, 2*st):
                for i in (0, 2):
                    a_, b2 = WQB+32*b_+4*k+i, WQB+32*b_+4*(k+st)+i
                    e(f"v_pk_add_f32 v[{a_}:{a_+1}], v[{a_}:{a_+1}], v[{b2}:{b2+1}]")
    e(f"s_mul_i32 s{sT0}, s{sLID}, 1536")
    e(f"s_add_u32 s{sT0}, s{sT0}, {WS_IN}")
    e(f"buffer_store_dwordx4 v[{WQB}:{WQB+3}], v{VA[4]}, {srd(SRD_WS)}, s{sT0} offen sc1")
    e(f"buffer_store_dwordx4 v[{WQB+32}:{WQB+35}], v{VA[4]}, {srd(SRD_WS)}, s{sT0} offen offset:768 sc1")
    stamp()
    e(f"s_lshl_b32 s{sT0}, s{sH}, 3")
    e(f"s_add_u32 s{sT2}, s22, s{sT0}")
    e(f"s_addc_u32 s{sT3}, s23, 0")
    e(f"s_mov_b32 s{sT1}, 1")
    e(f"v_lshlrev_b32 v{VA[5]}, 10, v{VLANE}")
    e(f"s_lshl_b32 s{sT0}, s{sH}, 13")
    e(f"s_add_u32 s{sT0}, s{sT0}, 1008")
    e(f"s_lshl_b32 s{sOFF}, s{sLID}, 10")
    e(f"s_add_u32 s{sOFF}, s{sOFF}, 1008")
    e("s_waitcnt vmcnt(0) lgkmcnt(0)")
    e(f"s_atomic_add s{sT1}, s[{sT2}:{sT3}], 0 glc")
    e("s_waitcnt lgkmcnt(0)")
    e(f"s_and_b32 s{sT1}, s{sT1}, 7")
    e(f"s_cmp_lg_u32 s{sT1}, 7")
    e("s_cbranch_scc1 L_qf_wait")
    e("s_mov_b64 exec, 0xff")
    e(f"buffer_store_dword v{VZERO}, v{VA[5]}, {srd(SRD_WS)}, s{sT0} offen sc1")
    e("s_mov_b64 exec, -1")
    e("s_branch L_qf_done")
    A.label("L_qf_wait"); A.fence()
    if indelay: e(f"s_sleep {indelay}")
    spin_begin("L_qf_spin")
    e(f"buffer_load_dword v{T[14]}, v{VZERO}, {srd(SRD_WS)}, s{sOFF} offen sc1")
    e("s_waitcnt vmcnt(0)")
    e(f"v_cmp_eq_u32 vcc, -1, v{T[14]}")
    spin_end("L_qf_spin", "L_qf_done", slp=insleep)
    stamp()
    e(f"s_mul_i32 s{sT0}, s{sH}, {8*1536}")
    e(f"s_add_u32 s{sT0}, s{sT0}, {WS_IN}")
    IB = 108
    for k in range(8):
        if k: e(f"s_add_u32 s{sT0}, s{sT0}, 1536")
        for b_ in range(2):
            d = IB + 32*b_ + 4*k
            e(f"buffer_load_dwordx4 v[{d}:{d+3}], v{VA[4]}, {srd(SRD_WS)}, s{sT0} offen offset:{768*b_} sc1")
    e("s_waitcnt vmcnt(0)")
    for b_ in range(2):
        ib = IB + 32*b_
        for k in range(1, 8):
            for i in (0, 2):
                e(f"v_pk_add_f32 v[{ib+i}:{ib+i+1}], v[{ib+i}:{ib+i+1}], v[{ib+4*k+i}:{ib+4*k+i+1}]")
        e(f"v_cvt_pk_bf16_f32 v{T[4+2*b_]}, v{ib}, v{ib+1}")
        e(f"v_cvt_pk_bf16_f32 v{T[5+2*b_]}, v{ib+2}, v{ib+3}")
    for i in range(4): e(f"v_min_u32 v{T[4+i]}, -2, v{T[4+i]}")
    e(f"v_lshlrev_b32 v{T[0]}, 3, v{VLANE}")
    e(f"v_cmp_gt_u32 vcc, 48, v{VLANE}")
    e(f"s_and_saveexec_b64 s[{sT2}:{sT3}], vcc")
    e(f"ds_write_b64 v{T[0]}, v[{T[4]}:{T[5]}] offset:{L_QS}")
    e(f"ds_write_b64 v{T[0]}, v[{T[6]}:{T[7]}] offset:{L_QS+384}")
    e("s_mov_b64 exec, -1")
    stamp()
    if stamps and not prog:
        write_stamps(1)
        e("s_mov_b64 exec, -1")
    A.label("L_q_skip"); A.fence()
    nstamp[0] = 1
    for _ in range(wdelay // 100): e("s_sleep 100")
    if wskew:
        e(f"s_mov_b32 s{sT0}, 0")
        A.label("L_skew"); A.fence()
        e(f"s_cmp_ge_u32 s{sT0}, s{sW}")
        e("s_cbranch_scc1 L_skew_done")
        for _ in range(wskew // 100): e("s_sleep 100")
        e(f"s_add_u32 s{sT0}, s{sT0}, 1")
        e("s_branch L_skew")
        A.label("L_skew_done"); A.fence()
    e(f"s_cmp_lg_u32 s{sW}, 1")
    e("s_cbranch_scc1 L_all_skip")
    e(f"v_and_b32 v{T[0]}, 31, v{VLANE}")
    e(f"v_lshlrev_b32 v{T[0]}, 3, v{T[0]}")
    spin_begin("L_all_spin")
    e(f"buffer_load_dword v{T[1]}, v{T[0]}, {srd(SRD_DBG)}, 0 offen sc1")
    e("s_waitcnt vmcnt(0)")
    e(f"v_cmp_gt_u32 vcc, 8, v{T[1]}")
    spin_end("L_all_spin", "L_all_done", slp=64)
    e(f"v_mov_b32 v{T[1]}, 1")
    e(f"ds_write_b32 v{VZERO}, v{T[1]} offset:{L_CTL+8}")
    A.label("L_all_skip"); A.fence()
    WB_ = 32
    FRG = 128
    gA, gB, lA, lB = VA[0], VA[1], VA[2], VA[3]
    e(f"s_mul_i32 s{sRS}, s{sW}, 12288")
    e(f"s_add_u32 s{sRS}, s{sRS}, {L_W}")
    e(f"s_cmp_ge_u32 s{sMEM}, 5")
    e("s_cbranch_scc1 L_wadr_mlp")
    def wo_addr(g_, l_, add):
        u, cb, u3 = T[0], T[1], T[2]
        e(f"v_lshrrev_b32 v{u}, 2, v{VLANE}")
        if add: e(f"v_add_u32 v{u}, {add}, v{u}")
        e(f"v_and_b32 v{cb}, 3, v{VLANE}")
        e(f"v_mul_u32_u24 v{u3}, 43, v{u}")
        e(f"v_lshrrev_b32 v{u3}, 7, v{u3}")
        e(f"v_mul_u32_u24 v{T[3]}, 3, v{u3}")
        e(f"v_sub_u32 v{T[3]}, v{u}, v{T[3]}")
        e(f"v_lshlrev_b32 v{T[3]}, 6, v{T[3]}")
        e(f"v_lshl_add_u32 v{T[3]}, v{u3}, 3, v{T[3]}")
        e(f"v_add_u32 v{T[3]}, s{sT0}, v{T[3]}")
        e(f"v_mul_u32_u24 v{g_}, 1280, v{T[3]}")
        e(f"v_lshl_add_u32 v{g_}, v{cb}, 4, v{g_}")
        e(f"v_add_u32 v{g_}, s{sT1}, v{g_}")
        e(f"v_lshrrev_b32 v{T[3]}, 1, v{cb}")
        e(f"v_mul_u32_u24 v{T[3]}, 6, v{T[3]}")
        e(f"v_lshrrev_b32 v{u3}, 2, v{u}")
        e(f"v_add_u32 v{T[3]}, v{T[3]}, v{u3}")
        e(f"v_lshlrev_b32 v{l_}, 10, v{T[3]}")
        e(f"v_and_b32 v{u3}, 3, v{u}")
        e(f"v_lshl_add_u32 v{l_}, v{u3}, 8, v{l_}")
        e(f"v_and_b32 v{u3}, 1, v{cb}")
        e(f"v_lshl_add_u32 v{l_}, v{u3}, 7, v{l_}")
        e(f"v_add_u32 v{l_}, s{sRS}, v{l_}")
    e(f"s_lshl_b32 s{sT0}, s{sXG}, 2")
    e(f"s_add_u32 s{sT0}, s{sT0}, s{sW}")
    e(f"s_mul_i32 s{sT0}, s{sT0}, 192")
    e(f"s_lshl_b32 s{sT1}, s{sCS}, 6")
    wo_addr(gA, lA, 0); wo_addr(gB, lB, 16)
    e(f"s_movk_i32 s{sT2}, 64"); e(f"s_movk_i32 s{sT3}, 32")
    e(f"s_movk_i32 s{sOFF}, 1280")
    e("s_branch L_wadr_done")
    A.label("L_wadr_mlp"); A.fence()
    e(f"v_lshrrev_b32 v{T[0]}, 1, v{VLANE}")
    e(f"s_mul_i32 s{sT0}, s{sW}, 20")
    e(f"v_add_u32 v{T[0]}, s{sT0}, v{T[0]}")
    e(f"v_mul_u32_u24 v{gA}, 24576, v{T[0]}")
    e(f"v_and_b32 v{T[1]}, 1, v{VLANE}")
    e(f"v_lshl_add_u32 v{gA}, v{T[1]}, 4, v{gA}")
    e(f"s_lshl_b32 s{sT0}, s{sF0}, 1")
    e(f"v_add_u32 v{gA}, s{sT0}, v{gA}")
    e(f"v_lshlrev_b32 v{lA}, 7, v{VLANE}")
    e(f"v_add_u32 v{lA}, s{sRS}, v{lA}")
    e(f"v_cmp_le_u32 vcc, 20, v{VLANE}")
    e(f"v_cndmask_b32 v{T[0]}, 0, 1, vcc")
    e(f"v_mul_u32_u24 v{T[1]}, 20, v{T[0]}")
    e(f"v_sub_u32 v{T[1]}, v{VLANE}, v{T[1]}")
    e(f"v_mul_u32_u24 v{gB}, 10240, v{T[0]}")
    e(f"v_lshl_add_u32 v{gB}, v{T[1]}, 4, v{gB}")
    e(f"s_mul_i32 s{sT0}, s{sF0}, 1280")
    e(f"s_mul_i32 s{sT1}, s{sW}, 320")
    e(f"s_add_u32 s{sT0}, s{sT0}, s{sT1}")
    e(f"v_add_u32 v{gB}, s{sT0}, v{gB}")
    e(f"v_lshrrev_b32 v{lB}, 1, v{T[1]}")
    e(f"v_lshlrev_b32 v{lB}, 9, v{lB}")
    e(f"v_lshl_add_u32 v{lB}, v{T[0]}, 8, v{lB}")
    e(f"v_and_b32 v{T[1]}, 1, v{T[1]}")
    e(f"v_lshl_add_u32 v{lB}, v{T[1]}, 7, v{lB}")
    e(f"s_add_u32 s{sT0}, s{sRS}, 6144")
    e(f"v_add_u32 v{lB}, s{sT0}, v{lB}")
    e(f"s_movk_i32 s{sT2}, 40"); e(f"s_movk_i32 s{sT3}, 40")
    e(f"s_movk_i32 s{sOFF}, 3072")
    if late:
        for i, r_ in enumerate((gA, gB, lA, lB)): e(f"v_mov_b32 v{124+i}, v{r_}")
        e("s_branch L_stage_done")
    A.label("L_wadr_done"); A.fence()
    for rnd, (g_, l_, sN, sr) in enumerate(((gA, lA, sT2, SRD_WA), (gB, lB, sT3, SRD_WB))):
        e(f"v_cmp_gt_u32 vcc, s{sN}, v{VLANE}")
        e("s_mov_b64 exec, vcc")
        for kk in range(8):
            if kk == 0: so = "0"
            else:
                if rnd == 0: e(f"s_mul_i32 s{sT0}, s{sOFF}, {kk}")
                else: e(f"s_movk_i32 s{sT0}, {1280*kk}")
                so = f"s{sT0}"
            e(f"buffer_load_dwordx4 v[{WB_+4*kk}:{WB_+4*kk+3}], v{g_}, {srd(sr)}, {so} offen {wflags}")
            if wpace == 1 and kk % 2 == 1 and kk < 7: e("s_waitcnt vmcnt(1)")
            if wpace == 2 and kk < 7: e("s_waitcnt vmcnt(0)")
            if wpace == 3 and kk < 7:
                e("s_waitcnt vmcnt(0)"); e("s_sleep 16")
        e("s_waitcnt vmcnt(0)")
        for i in range(4):
            tb = WB_ + 32 + 8*i
            for kp in range(4):
                e(f"v_perm_b32 v{tb+kp}, v{WB_+4*(2*kp+1)+i}, v{WB_+4*(2*kp)+i}, s{sPLO}")
                e(f"v_perm_b32 v{tb+4+kp}, v{WB_+4*(2*kp+1)+i}, v{WB_+4*(2*kp)+i}, s{sPHI}")
            e(f"ds_write_b128 v{l_}, v[{tb}:{tb+3}] offset:{32*i}")
            e(f"ds_write_b128 v{l_}, v[{tb+4}:{tb+7}] offset:{32*i+16}")
        e("s_mov_b64 exec, -1")
        e("s_waitcnt lgkmcnt(0)")
    A.label("L_stage_done"); A.fence()
    e(f"s_cmp_lg_u32 s{sW}, 0")
    e("s_cbranch_scc1 L_ml_skip")
    e(f"v_lshlrev_b32 v{VA[5]}, 10, v{VC}")
    for b_ in range(2):
        spin_begin(f"L_ml1{b_}_spin")
        e(f"ds_read_b128 v[{T[0]}:{T[3]}], v{VZERO} offset:{L_ML + 32*b_}")
        e(f"ds_read_b128 v[{T[4]}:{T[7]}], v{VZERO} offset:{L_ML + 32*b_ + 16}")
        e(f"ds_read_b32 v{T[8]}, v{VZERO} offset:{L_CTL+20}")
        e("s_waitcnt lgkmcnt(0)")
        if b_ == 1: e(f"v_subrev_u32 v{T[8]}, 1, v{T[8]}")
        sentinel_check(rng(T[0], 9), T[9])
        spin_end(f"L_ml1{b_}_spin", f"L_ml1{b_}_done", slp=32)
        mw = [T[0], T[2], T[4], T[6]]; lw = [T[1], T[3], T[5], T[7]]; tmp = [T[10], T[11], T[12], T[13]]
        e(f"v_max3_f32 v{T[8]}, v{mw[0]}, v{mw[1]}, v{mw[2]}")
        e(f"v_max_f32 v{T[8]}, v{T[8]}, v{mw[3]}")
        for i in range(4):
            e(f"v_sub_f32 v{tmp[i]}, v{mw[i]}, v{T[8]}")
            e(f"v_mul_f32 v{tmp[i]}, {LOG2E}, v{tmp[i]}")
            e(f"v_exp_f32 v{tmp[i]}, v{tmp[i]}")
        e(f"v_mul_f32 v{T[9]}, v{tmp[0]}, v{lw[0]}")
        for i in range(1, 4): e(f"v_fmac_f32 v{T[9]}, v{tmp[i]}, v{lw[i]}")
        e(f"s_lshl_b32 s{sT0}, s{sLID}, 10")
        e(f"s_add_u32 s{sT0}, s{sT0}, {768 + 8*b_}")
        e("s_mov_b64 exec, 1")
        e(f"buffer_store_dwordx2 v[{T[8]}:{T[9]}], v{VZERO}, {srd(SRD_WS)}, s{sT0} offen sc1")
        e("s_mov_b64 exec, -1")
        e(f"s_lshl_b32 s{sT0}, s{sH}, 13")
        e(f"s_add_u32 s{sT0}, s{sT0}, {768 + 8*b_}")
        e("s_sleep 64")
        spin_begin(f"L_ml2{b_}_spin")
        e("s_mov_b64 exec, 0xff")
        e(f"buffer_load_dwordx2 v[{T[8]}:{T[9]}], v{VA[5]}, {srd(SRD_WS)}, s{sT0} offen sc1")
        e("s_waitcnt vmcnt(0)")
        e(f"v_max_u32 v{T[10]}, v{T[8]}, v{T[9]}")
        e(f"v_cmp_eq_u32 vcc, -1, v{T[10]}")
        spin_end(f"L_ml2{b_}_spin", f"L_ml2{b_}_done", slp=mlsleep)
        e(f"v_mov_b32 v{T[10]}, v{T[8]}")
        for ctl in ("quad_perm:[1,0,3,2]", "quad_perm:[2,3,0,1]", "row_half_mirror"):
            e(f"v_max_f32_dpp v{T[10]}, v{T[10]}, v{T[10]} {ctl} row_mask:0xf bank_mask:0xf")
        e(f"v_sub_f32 v{T[8]}, v{T[8]}, v{T[10]}")
        e(f"v_mul_f32 v{T[8]}, {LOG2E}, v{T[8]}")
        e(f"v_exp_f32 v{T[8]}, v{T[8]}")
        e(f"v_mul_f32 v{T[9]}, v{T[9]}, v{T[8]}")
        for ctl in ("quad_perm:[1,0,3,2]", "quad_perm:[2,3,0,1]", "row_half_mirror"):
            e(f"v_add_f32_dpp v{T[9]}, v{T[9]}, v{T[9]} {ctl} row_mask:0xf bank_mask:0xf")
        e(f"v_rcp_f32 v{T[9]}, v{T[9]}")
        for i in range(4):
            e(f"v_sub_f32 v{T[12+i]}, v{mw[i]}, v{T[10]}")
            e(f"v_mul_f32 v{T[12+i]}, {LOG2E}, v{T[12+i]}")
            e(f"v_exp_f32 v{T[12+i]}, v{T[12+i]}")
            e(f"v_mul_f32 v{T[12+i]}, v{T[12+i]}, v{T[9]}")
            e(f"v_min_u32 v{T[12+i]}, -2, v{T[12+i]}")
        e("s_mov_b64 exec, 1")
        e(f"ds_write_b128 v{VZERO}, v[{T[12]}:{T[15]}] offset:{L_F + 16*b_}")
        e("s_mov_b64 exec, -1")
    A.label("L_ml_skip"); A.fence()
    i_, g4 = VA[0], VA[1]
    e(f"v_and_b32 v{i_}, 15, v{VLANE}")
    e(f"v_lshrrev_b32 v{g4}, 4, v{VLANE}")
    e(f"v_add_u32 v{T[0]}, s{sRS}, v{VL16}")
    if dry:
        e(f"s_mov_b32 s{sDRY}, 1"); e(f"s_mov_b32 s{sOOB}, {OOB}"); e(f"s_mov_b32 s{sLIM}, 1")
    def barrier(lbl):
        if dry:
            e(f"s_cmp_lg_u32 s{sDRY}, 0")
            e(f"s_cbranch_scc1 {lbl}")
        e("s_barrier")
        if dry:
            A.label(lbl); A.fence()
    def wait_progress(lbl):
        e(f"s_mov_b32 s{sDRY}, 0"); e(f"s_mov_b32 s{sOOB}, 0"); e(f"s_mov_b32 s{sLIM}, {spin_limit}")
        e("s_mov_b64 exec, -1")
        e("s_waitcnt vmcnt(0) lgkmcnt(0)")
        spin_begin(lbl)
        e(f"ds_read_b32 v{T[0]}, v{VZERO} offset:{L_CTL+12}")
        e("s_waitcnt lgkmcnt(0)")
        e(f"v_cmp_eq_u32 vcc, 0, v{T[0]}")
        spin_end(lbl, lbl + "_done", slp=2)
    e(f"s_cmp_ge_u32 s{sMEM}, 5")
    e("s_cbranch_scc1 L_mlp")
    for f in range(12):
        e(f"ds_read_b128 v[{FRG+4*f}:{FRG+4*f+3}], v{T[0]} offset:{f*1024}")
    VOW, VBA, VYW, VM = VA[2], VA[3], VA[5], 96
    e(f"s_mul_i32 s{sT1}, s{sW}, 768")
    e(f"v_lshlrev_b32 v{VOW}, 3, v{VLANE}")
    e(f"v_add_u32 v{VOW}, s{sT1}, v{VOW}")
    e(f"v_and_b32 v{T[1]}, 1, v{i_}")
    e(f"v_mul_u32_u24 v{VBA}, 384, v{T[1]}")
    e(f"v_lshl_add_u32 v{VBA}, v{g4}, 4, v{VBA}")
    e(f"v_add_u32 v{VBA}, s{sT1}, v{VBA}")
    e(f"v_lshlrev_b32 v{VYW}, 7, v{T[1]}")
    e(f"v_lshl_add_u32 v{VYW}, v{g4}, 4, v{VYW}")
    e(f"s_lshl_b32 s{sT1}, s{sW}, 8")
    e(f"v_add_u32 v{VYW}, s{sT1}, v{VYW}")
    e(f"v_mov_b32 v{VM}, 768")
    col, VOUT, VXH, VYS = 97, 98, 99, 100
    e(f"v_and_b32 v{col}, 1, v{VLANE}")
    e(f"v_lshlrev_b32 v{col}, 2, v{col}")
    e(f"v_lshrrev_b32 v{T[1]}, 5, v{VLANE}")
    e(f"v_lshl_add_u32 v{col}, v{T[1]}, 1, v{col}")
    e(f"v_bfe_u32 v{T[1]}, v{VLANE}, 4, 1")
    e(f"v_add_u32 v{col}, v{col}, v{T[1]}")
    e(f"s_lshl_b32 s{sT0}, s{sR}, 3")
    e(f"v_add_u32 v{col}, s{sT0}, v{col}")
    e(f"v_lshlrev_b32 v{VOUT}, 1, v{col}")
    e(f"buffer_load_ushort v{VXH}, v{VOUT}, {srd(SRD_X)}, 0 offen")
    e(f"v_bfe_u32 v{T[3]}, v{VLANE}, 1, 3")
    e(f"v_mul_u32_u24 v{VYS}, 5120, v{T[3]}")
    e(f"v_lshl_add_u32 v{VYS}, v{col}, 2, v{VYS}")
    e(f"v_cmp_ne_u32 vcc, 0, v{T[3]}")
    e(f"v_mov_b32 v{T[3]}, {OOB}")
    e("s_waitcnt vmcnt(0) lgkmcnt(0)")
    e(f"v_cndmask_b32 v{VOUT}, v{VOUT}, v{T[3]}, vcc")
    e(f"v_lshlrev_b32 v{VXH}, 16, v{VXH}")
    PO = 32
    e(f"s_lshl_b32 s{sT0}, s{sXG}, 2")
    e(f"s_add_u32 s{sT0}, s{sT0}, s{sW}")
    e(f"s_lshl_b32 s{sOFF}, s{sT0}, 13")
    def a_loads(base):
        for s_ in range(8):
            so = sT0 if s_ < 4 else sT1
            e(f"buffer_load_dwordx4 v[{base+4*s_}:{base+4*s_+3}], v{VA[4]}, {srd(SRD_WS)}, s{so} offen offset:{1024*(s_&3)} sc1")
    def a_cons(base):
        o = T[8]
        for st in (1, 2, 4):
            for k in range(0, 8, 2*st):
                for i in (0, 2):
                    a_, b2 = base+4*k+i, base+4*(k+st)+i
                    d_ = o + i if st == 4 else a_
                    e(f"v_pk_add_f32 v[{d_}:{d_+1}], v[{a_}:{a_+1}], v[{b2}:{b2+1}]")
    def a_write(b_):
        e(f"v_cvt_pk_bf16_f32 v{T[4]}, v{T[8]}, v{T[9]}")
        e(f"v_cvt_pk_bf16_f32 v{T[5]}, v{T[10]}, v{T[11]}")
        e("s_mov_b32 exec_hi, 0xffff")
        e(f"ds_write_b64 v{VOW}, v[{T[4]}:{T[5]}] offset:{L_OB + 384*b_}")
        e("s_mov_b64 exec, -1")
    spin_begin("L_mid_spin")
    e(f"ds_read_b32 v{T[0]}, v{VZERO} offset:{L_F+16}")
    e(f"ds_read_b32 v{T[1]}, v{VZERO} offset:{L_CTL+8}")
    e("s_waitcnt lgkmcnt(0)")
    e(f"v_subrev_u32 v{T[1]}, 1, v{T[1]}")
    e(f"v_max_u32 v{T[0]}, v{T[0]}, v{T[1]}")
    e(f"v_cmp_eq_u32 vcc, -1, v{T[0]}")
    spin_end("L_mid_spin", "L_mid_done", slp=32)
    e(f"v_lshlrev_b32 v{T[2]}, 10, v{VC}")
    e(f"s_add_u32 s{sT0}, s{sOFF}, 776")
    spin_begin("L_p0_spin")
    e("s_mov_b64 exec, 0xff")
    e(f"buffer_load_dword v{T[0]}, v{T[2]}, {srd(SRD_WS)}, s{sT0} offen sc1")
    e("s_waitcnt vmcnt(0)")
    e(f"v_cmp_eq_u32 vcc, -1, v{T[0]}")
    spin_end("L_p0_spin", "L_p0_done", slp=mlsleep)
    e("s_mov_b64 exec, -1")
    if early0:
        e(f"s_add_u32 s{sT0}, s{sOFF}, {WS_P0}")
        e(f"s_add_u32 s{sT1}, s{sT0}, 4096")
        a_loads(PO)
        e("s_waitcnt vmcnt(0)")
        a_cons(PO); a_write(0)
        e(f"s_mov_b32 s{sT0}, s{sOFF}")
        e(f"s_add_u32 s{sT1}, s{sT0}, 4096")
        wait_progress("L_wo_wait0")
    else:
        e(f"s_add_u32 s{sT0}, s{sOFF}, {WS_P0}")
        e(f"s_add_u32 s{sT1}, s{sT0}, 4096")
        wait_progress("L_wo_wait0")
        a_loads(208)
        e(f"s_mov_b32 s{sT0}, s{sOFF}")
        e(f"s_add_u32 s{sT1}, s{sT0}, 4096")
        a_loads(PO)
        e("s_waitcnt vmcnt(8)")
        a_cons(208); a_write(0)
        e("s_waitcnt vmcnt(0)")
        a_cons(PO)
        e(f"v_pk_add_f32 v[{T[0]}:{T[1]}], v[{T[8]}:{T[9]}], v[{T[10]}:{T[11]}]")
        e(f"v_cmp_u_f32 vcc, v{T[0]}, v{T[1]}")
        e("s_cbranch_vccz L_a_ok")
    poll("a", a_loads, PO, a_cons, rng(T[8], 4), T[0])
    a_write(1)
    BF = 180
    for ks in range(6):
        e(f"ds_read_b128 v[{BF+4*ks}:{BF+4*ks+3}], v{VBA} offset:{L_OB + 64*ks}")
    D0, D1 = T[8], T[12]
    for ks in range(6):
        e(f"s_waitcnt lgkmcnt({5-ks})")
        for tl, D in ((0, D0), (1, D1)):
            c = "0" if ks == 0 else f"v[{D}:{D+3}]"
            f = FRG + 4*(6*tl + ks)
            e(f"v_mfma_f32_16x16x32_bf16 v[{D}:{D+3}], v[{f}:{f+3}], v[{BF+4*ks}:{BF+4*ks+3}], {c}")
    e("s_mov_b32 exec_lo, 0x00030003")
    e("s_mov_b32 exec_hi, 0x00030003")
    e(f"ds_write_b128 v{VYW}, v[{D0}:{D0+3}] offset:{L_YR}")
    e(f"ds_write_b128 v{VYW}, v[{D1}:{D1+3}] offset:{L_YR+64}")
    e("s_mov_b64 exec, -1")
    e("s_waitcnt lgkmcnt(0)")
    barrier("L_bar1")
    e(f"s_cmp_lg_u32 s{sW}, 0")
    e("s_cbranch_scc1 L_wo_exit")
    e(f"v_lshlrev_b32 v{T[0]}, 4, v{i_}")
    YS = 64
    for hh_ in range(4):
        e(f"ds_read_b128 v[{YS+4*hh_}:{YS+4*hh_+3}], v{T[0]} offset:{L_YR + 256*hh_}")
    e("s_waitcnt lgkmcnt(0)")
    for i in (0, 2):
        e(f"v_pk_add_f32 v[{YS+i}:{YS+i+1}], v[{YS+i}:{YS+i+1}], v[{YS+4+i}:{YS+4+i+1}]")
        e(f"v_pk_add_f32 v[{YS+8+i}:{YS+8+i+1}], v[{YS+8+i}:{YS+8+i+1}], v[{YS+12+i}:{YS+12+i+1}]")
    for i in (0, 2): e(f"v_pk_add_f32 v[{YS+i}:{YS+i+1}], v[{YS+i}:{YS+i+1}], v[{YS+8+i}:{YS+8+i+1}]")
    e(f"buffer_store_dwordx4 v[{YS}:{YS+3}], v{VYA}, {srd(SRD_WS)}, s{sOOB} offen sc1")
    stamp()
    Yr = 80
    e(f"s_mov_b32 s{sT0}, {WS_Y}")
    spin_begin("L_b_spin")
    e(f"buffer_load_dword v{Yr}, v{VYS}, {srd(SRD_WS)}, s{sT0} offen sc1")
    e("s_waitcnt vmcnt(0)")
    e(f"v_cmp_eq_u32 vcc, -1, v{Yr}")
    spin_end("L_b_spin", "L_b_done", slp=sl["b"])
    e(f"v_add_f32_dpp v{Yr}, v{Yr}, v{Yr} quad_perm:[2,3,0,1] row_mask:0xf bank_mask:0xf")
    e(f"v_mov_b32 v{T[6]}, v{Yr}")
    e(f"v_add_f32_dpp v{Yr}, v{T[6]}, v{T[6]} row_shr:4 row_mask:0xf bank_mask:0xa")
    e(f"v_add_f32_dpp v{Yr}, v{T[6]}, v{T[6]} row_shl:4 row_mask:0xf bank_mask:0x5")
    e(f"v_add_f32_dpp v{Yr}, v{Yr}, v{Yr} row_ror:8 row_mask:0xf bank_mask:0xf")
    bf16r(Yr)
    e(f"v_add_f32 v{Yr}, v{VXH}, v{Yr}")
    bf16r(Yr)
    stamp()
    Zr = 84
    e(f"s_mul_i32 s{sT0}, s{sR}, 3072")
    e(f"s_add_u32 s{sT0}, s{sT0}, {WS_Z}")
    def c_loads(base):
        for i in range(3):
            e(f"buffer_load_dwordx4 v[{base+4*i}:{base+4*i+3}], v{VL16}, {srd(SRD_WS)}, s{sT0} offen offset:{1024*i} sc1")
    def c_cons(base):
        for i in (0, 2):
            e(f"v_pk_add_f32 v[{Zr+i}:{Zr+i+1}], v[{base+i}:{base+i+1}], v[{base+4+i}:{base+4+i+1}]")
            e(f"v_pk_add_f32 v[{Zr+i}:{Zr+i+1}], v[{Zr+i}:{Zr+i+1}], v[{base+8+i}:{base+8+i+1}]")
    poll("c", c_loads, 32, c_cons, rng(Zr, 4), T[0])
    y = Zr
    e(f"v_permlane32_swap_b32 v{y}, v{y+2}")
    e(f"v_permlane32_swap_b32 v{y+1}, v{y+3}")
    e(f"v_add_f32 v{y}, v{y}, v{y+2}")
    e(f"v_add_f32 v{y+1}, v{y+1}, v{y+3}")
    e(f"v_permlane16_swap_b32 v{y}, v{y+1}")
    e(f"v_add_f32 v{y}, v{y}, v{y+1}")
    for k in (8, 4, 2):
        e(f"v_add_f32_dpp v{y}, v{y}, v{y} row_ror:{k} row_mask:0xf bank_mask:0xf")
    bf16r(y)
    e(f"v_add_f32 v{y}, v{y}, v{Yr}")
    e(f"v_cvt_pk_bf16_f32 v{y}, v{y}, v{y}")
    e(f"buffer_store_short v{y}, v{VOUT}, {srd(SRD_OUT)}, s{sOOB} offen")
    stamp()
    A.label("L_wo_exit"); A.fence()
    if dry:
        e(f"s_cmp_eq_u32 s{sDRY}, 0")
        e("s_cbranch_scc1 L_fin")
        wait_progress("L_wo_wait")
        e("s_branch L_wo_tail")
    else:
        e("s_branch L_fin")
    A.label("L_mlp"); A.fence()
    nstamp[0] = 1
    F1 = FRG; F2 = FRG + 24
    VF1, VF2 = 176, 177
    e(f"v_mov_b32 v{VF1}, v{T[0]}")
    e(f"v_lshrrev_b32 v{VF2}, 1, v{g4}")
    e(f"v_lshlrev_b32 v{VF2}, 8, v{VF2}")
    e(f"v_lshl_add_u32 v{VF2}, v{i_}, 4, v{VF2}")
    e(f"v_and_b32 v{T[4]}, 1, v{g4}")
    e(f"v_lshl_add_u32 v{VF2}, v{T[4]}, 3, v{VF2}")
    e(f"v_add_u32 v{VF2}, s{sRS}, v{VF2}")
    def frag_reads():
        for ks in range(5):
            e(f"ds_read_b128 v[{F1+4*ks}:{F1+4*ks+3}], v{VF1} offset:{ks*1024}")
        for tt in range(10):
            e(f"ds_read_b64 v[{F2+2*tt}:{F2+2*tt+1}], v{VF2} offset:{6144 + tt*512}")
    if not late: frag_reads()
    VGA, VLW, VLR, VZA, VHR, VDW, VDR = VA[2], VA[3], VA[5], 96, 97, 98, 99
    XH = 100
    e(f"s_mul_i32 s{sT0}, s{sW}, 640")
    e(f"v_add_u32 v{VGA}, s{sT0}, v{VL16}")
    e(f"v_cmp_gt_u32 vcc, 40, v{VLANE}")
    e(f"v_mov_b32 v{T[1]}, {OOB}")
    e(f"v_cndmask_b32 v{VGA}, v{T[1]}, v{VGA}, vcc")
    e(f"v_cmp_eq_u32 vcc, 40, v{VLANE}")
    e(f"v_cndmask_b32 v{VGA}, v{VGA}, v{VZERO}, vcc")
    e(f"v_lshrrev_b32 v{T[1]}, 1, v{VGA}")
    e(f"buffer_load_dwordx2 v[{T[8]}:{T[9]}], v{T[1]}, {srd(SRD_X)}, 0 offen")
    e(f"buffer_load_dwordx2 v[{T[10]}:{T[11]}], v{T[1]}, {srd(SRD_X)}, 0 offen offset:1280")
    e(f"s_mul_i32 s{sT0}, s{sW}, 640")
    e(f"s_add_u32 s{sT0}, s{sT0}, {L_LN}")
    e(f"v_lshlrev_b32 v{VLW}, 3, v{VLANE}")
    e(f"v_add_u32 v{VLW}, s{sT0}, v{VLW}")
    e(f"v_and_b32 v{T[4]}, 1, v{i_}")
    e(f"v_mul_u32_u24 v{VLR}, 320, v{T[4]}")
    e(f"v_lshl_add_u32 v{VLR}, v{g4}, 4, v{VLR}")
    e(f"v_add_u32 v{VLR}, s{sT0}, v{VLR}")
    e(f"v_lshlrev_b32 v{VDR}, 6, v{T[4]}")
    e(f"v_lshl_add_u32 v{VDR}, v{g4}, 4, v{VDR}")
    e(f"s_lshl_b32 s{sT0}, s{sW}, 7")
    e(f"v_add_u32 v{VDW}, s{sT0}, v{VDR}")
    e(f"v_mul_u32_u24 v{VZA}, 80, v{i_}")
    e(f"v_lshrrev_b32 v{T[4]}, 1, v{g4}")
    e(f"v_add_u32 v{VZA}, v{VZA}, v{T[4]}")
    e(f"s_mul_i32 s{sT0}, s{sW}, 20")
    e(f"v_add_u32 v{VZA}, s{sT0}, v{VZA}")
    e(f"v_mul_u32_u24 v{VZA}, 3072, v{VZA}")
    e(f"v_and_b32 v{T[4]}, 1, v{g4}")
    e(f"v_lshl_add_u32 v{VZA}, v{T[4]}, 4, v{VZA}")
    e(f"s_lshl_b32 s{sT0}, s{sF0}, 1")
    e(f"s_add_u32 s{sT0}, s{sT0}, {WS_Z}")
    e(f"v_add_u32 v{VZA}, s{sT0}, v{VZA}")
    e(f"v_cmp_lt_u32 vcc, 1, v{i_}")
    e(f"v_mov_b32 v{T[4]}, {OOB}")
    e(f"v_cndmask_b32 v{VZA}, v{VZA}, v{T[4]}, vcc")
    e(f"v_lshlrev_b32 v{VHR}, 2, v{g4}")
    e(f"s_lshl_b32 s{sT0}, s{sW}, 4")
    e(f"v_add_u32 v{VHR}, s{sT0}, v{VHR}")
    e("s_waitcnt vmcnt(0) lgkmcnt(0)")
    for i in range(4):
        e(f"v_lshlrev_b32 v{XH+2*i}, 16, v{T[8+i]}")
        e(f"v_and_b32 v{XH+2*i+1}, s{sMASK}, v{T[8+i]}")
    spin_begin("L_mid2_spin")
    e(f"ds_read_b32 v{T[0]}, v{VZERO} offset:{L_F+16}")
    e("s_waitcnt lgkmcnt(0)")
    e(f"v_cmp_eq_u32 vcc, -1, v{T[0]}")
    spin_end("L_mid2_spin", "L_mid2_done", slp=32)
    if late:
        spin_begin("L_late_spin")
        e(f"ds_read_b32 v{T[0]}, v{VZERO} offset:{L_CTL + (12 if latet >= 32 else 24)}")
        e("s_waitcnt lgkmcnt(0)")
        e(f"v_cmp_eq_u32 vcc, 0, v{T[0]}")
        spin_end("L_late_spin", "L_late_done", slp=2)
        e("s_mov_b32 exec_hi, 0xff")
        for rnd, (g_, sr, rs) in enumerate(((124, SRD_WA, 3072), (125, SRD_WB, 1280))):
            for kk in range(8):
                if kk: e(f"s_movk_i32 s{sT0}, {rs*kk}")
                d = 32 + 32*rnd + 4*kk
                e(f"buffer_load_dwordx4 v[{d}:{d+3}], v{g_}, {srd(sr)}, {'s%d' % sT0 if kk else '0'} offen {wflags}")
        for rnd in range(2):
            e(f"s_waitcnt vmcnt({8 - 8*rnd})")
            wb = 32 + 32*rnd
            for i in range(4):
                tb = 192 + 32*rnd + 8*i
                for kp in range(4):
                    e(f"v_perm_b32 v{tb+kp}, v{wb+4*(2*kp+1)+i}, v{wb+4*(2*kp)+i}, s{sPLO}")
                    e(f"v_perm_b32 v{tb+4+kp}, v{wb+4*(2*kp+1)+i}, v{wb+4*(2*kp)+i}, s{sPHI}")
                e(f"ds_write_b128 v{126+rnd}, v[{tb}:{tb+3}] offset:{32*i}")
                e(f"ds_write_b128 v{126+rnd}, v[{tb+4}:{tb+7}] offset:{32*i+16}")
            e("s_waitcnt lgkmcnt(0)")
        e("s_mov_b64 exec, -1")
        frag_reads()
    wait_progress("L_mlp_wait0")
    A.label("L_mlp_tail"); A.fence()
    YB = 108
    GA, GB = 32, 192
    def h_loads(base):
        for x in range(8):
            e(f"s_mov_b32 s{sT0}, {WS_Y + 5120*x}")
            for b_ in range(2):
                d = base + 8*x + 4*b_
                e(f"buffer_load_dwordx4 v[{d}:{d+3}], v{VGA}, {srd(SRD_WS)}, s{sT0} offen offset:{2560*b_} sc1")
    def h_cons(base):
        for st in (1, 2, 4):
            for x in range(0, 8, 2*st):
                for i in range(0, 8, 2):
                    a_, b2 = base+8*x+i, base+8*(x+st)+i
                    d_ = YB + i if st == 4 else a_
                    e(f"v_pk_add_f32 v[{d_}:{d_+1}], v[{a_}:{a_+1}], v[{b2}:{b2+1}]")
    poll("h", h_loads, GA, h_cons, rng(YB, 8), T[0])
    stamp()
    for i in range(0, 8, 2):
        e(f"v_cvt_pk_bf16_f32 v{YB+i+1}, v{YB+i}, v{YB+i+1}")
        e(f"v_lshlrev_b32 v{YB+i}, 16, v{YB+i+1}")
        e(f"v_and_b32 v{YB+i+1}, s{sMASK}, v{YB+i+1}")
        e(f"v_pk_add_f32 v[{YB+i}:{YB+i+1}], v[{YB+i}:{YB+i+1}], v[{XH+i}:{XH+i+1}]")
        e(f"v_cvt_pk_bf16_f32 v{YB+i+1}, v{YB+i}, v{YB+i+1}")
        e(f"v_lshlrev_b32 v{YB+i}, 16, v{YB+i+1}")
        e(f"v_and_b32 v{YB+i+1}, s{sMASK}, v{YB+i+1}")
    e(f"v_readlane_b32 s{sT2}, v{YB}, 40")
    e(f"v_readlane_b32 s{sT3}, v{YB+4}, 40")
    S1 = [T[4], T[5]]; S2 = [T[6], T[7]]; DD = 48
    for r_ in S1 + S2: e(f"v_mov_b32 v{r_}, 0")
    e("s_mov_b32 exec_lo, -1"); e("s_mov_b32 exec_hi, 0xff")
    for b_ in range(2):
        for i in range(4): e(f"v_subrev_f32 v{DD+4*b_+i}, s{sT2+b_}, v{YB+4*b_+i}")
    for b_ in range(2):
        d = DD + 4*b_
        e(f"v_add_f32 v{S1[b_]}, v{d}, v{d+1}")
        e(f"v_mul_f32 v{S2[b_]}, v{d}, v{d}")
    for b_ in range(2):
        d = DD + 4*b_
        e(f"v_add_f32 v{S1[b_]}, v{S1[b_]}, v{d+2}")
        e(f"v_fmac_f32 v{S2[b_]}, v{d+1}, v{d+1}")
    for b_ in range(2):
        d = DD + 4*b_
        e(f"v_add_f32 v{S1[b_]}, v{S1[b_]}, v{d+3}")
        e(f"v_fmac_f32 v{S2[b_]}, v{d+2}, v{d+2}")
    for b_ in range(2): e(f"v_fmac_f32 v{S2[b_]}, v{DD+4*b_+3}, v{DD+4*b_+3}")
    e("s_mov_b64 exec, -1")
    e(f"v_permlane32_swap_b32 v{S1[0]}, v{S2[0]}")
    e(f"v_permlane32_swap_b32 v{S1[1]}, v{S2[1]}")
    e(f"v_add_f32 v{S1[0]}, v{S1[0]}, v{S2[0]}")
    e(f"v_add_f32 v{S1[1]}, v{S1[1]}, v{S2[1]}")
    e(f"v_permlane16_swap_b32 v{S1[0]}, v{S1[1]}")
    e(f"v_add_f32 v{S1[0]}, v{S1[0]}, v{S1[1]}")
    for ctl in ("quad_perm:[1,0,3,2]", "quad_perm:[2,3,0,1]", "row_half_mirror", "row_mirror"):
        e(f"v_add_f32_dpp v{S1[0]}, v{S1[0]}, v{S1[0]} {ctl} row_mask:0xf bank_mask:0xf")
    e("s_mov_b32 exec_lo, 0x00010001"); e("s_mov_b32 exec_hi, 0x00010001")
    e(f"ds_write_b32 v{VHR}, v{S1[0]} offset:{L_H}")
    e("s_mov_b64 exec, -1")
    e("s_waitcnt lgkmcnt(0)")
    barrier("L_bar2")
    for w in range(4):
        e(f"ds_read_b128 v[{DD+4*w}:{DD+4*w+3}], v{VZERO} offset:{L_H + 16*w}")
    e(f"v_mov_b32 v{T[8]}, s{sT2}")
    e(f"v_mov_b32 v{T[9]}, s{sT3}")
    e(f"s_mov_b32 s{sT0}, {hex(f32(1.0/640))}")
    e(f"v_mov_b32 v{T[10]}, s{sT0}")
    e("s_waitcnt lgkmcnt(0)")
    for i in (0, 2):
        e(f"v_pk_add_f32 v[{DD+i}:{DD+i+1}], v[{DD+i}:{DD+i+1}], v[{DD+4+i}:{DD+4+i+1}]")
        e(f"v_pk_add_f32 v[{DD+8+i}:{DD+8+i+1}], v[{DD+8+i}:{DD+8+i+1}], v[{DD+12+i}:{DD+12+i+1}]")
    for i in (0, 2): e(f"v_pk_add_f32 v[{DD+i}:{DD+i+1}], v[{DD+i}:{DD+i+1}], v[{DD+8+i}:{DD+8+i+1}]")
    for i in (0, 2): e(f"v_pk_mul_f32 v[{DD+i}:{DD+i+1}], v[{DD+i}:{DD+i+1}], v[{T[10]}:{T[11]}] op_sel_hi:[1,0]")
    e(f"v_pk_add_f32 v[{T[0]}:{T[1]}], v[{DD}:{DD+1}], v[{T[8]}:{T[9]}] neg_lo:[1,1] neg_hi:[1,1]")
    e(f"v_pk_fma_f32 v[{T[2]}:{T[3]}], v[{DD}:{DD+1}], v[{DD}:{DD+1}], v[{DD+2}:{DD+3}] neg_lo:[1,0,0] neg_hi:[1,0,0]")
    def bf16r2(a_):
        e(f"v_cvt_pk_bf16_f32 v{a_+1}, v{a_}, v{a_+1}")
        e(f"v_lshlrev_b32 v{a_}, 16, v{a_+1}")
        e(f"v_and_b32 v{a_+1}, s{sMASK}, v{a_+1}")
    for i in range(2): e(f"v_max_f32 v{T[2+i]}, 0, v{T[2+i]}")
    bf16r2(T[2]); bf16r2(T[0])
    for i in range(2): e(f"v_add_f32 v{T[2+i]}, {hex(f32(1e-5))}, v{T[2+i]}")
    bf16r2(T[2])
    for i in range(2): e(f"v_sqrt_f32 v{T[2+i]}, v{T[2+i]}")
    bf16r2(T[2])
    for i in range(2): e(f"v_rcp_f32 v{T[2+i]}, v{T[2+i]}")
    for b_ in range(2):
        for i in range(2):
            norm_pair(YB + 4*b_ + 2*i, b_, dst=T[8 + 2*b_ + i])
    e(f"v_cmp_gt_u32 vcc, 40, v{VLANE}")
    e("s_mov_b64 exec, vcc")
    e(f"ds_write_b64 v{VLW}, v[{T[8]}:{T[9]}]")
    e(f"ds_write_b64 v{VLW}, v[{T[10]}:{T[11]}] offset:320")
    e("s_mov_b64 exec, -1")
    BF = 72
    for ks in range(5):
        e(f"ds_read_b128 v[{BF+4*ks}:{BF+4*ks+3}], v{VLR} offset:{64*ks}")
    D = T[8]
    for ks in range(5):
        e(f"s_waitcnt lgkmcnt({4-ks})")
        c = "0" if ks == 0 else f"v[{D}:{D+3}]"
        e(f"v_mfma_f32_16x16x32_bf16 v[{D}:{D+3}], v[{F1+4*ks}:{F1+4*ks+3}], v[{BF+4*ks}:{BF+4*ks+3}], {c}")
    e("s_mov_b32 exec_lo, 0x00030003")
    e("s_mov_b32 exec_hi, 0x00030003")
    e(f"ds_write_b128 v{VDW}, v[{D}:{D+3}] offset:{L_DX}")
    e("s_mov_b64 exec, -1")
    e("s_waitcnt lgkmcnt(0)")
    barrier("L_bar3")
    for w in range(4):
        e(f"ds_read_b128 v[{YB+4*w}:{YB+4*w+3}], v{VDR} offset:{L_DX + 128*w}")
    e("s_waitcnt lgkmcnt(0)")
    for i in (0, 2):
        e(f"v_pk_add_f32 v[{YB+i}:{YB+i+1}], v[{YB+i}:{YB+i+1}], v[{YB+4+i}:{YB+4+i+1}]")
        e(f"v_pk_add_f32 v[{YB+8+i}:{YB+8+i+1}], v[{YB+8+i}:{YB+8+i+1}], v[{YB+12+i}:{YB+12+i+1}]")
    for i in (0, 2): e(f"v_pk_add_f32 v[{YB+i}:{YB+i+1}], v[{YB+i}:{YB+i+1}], v[{YB+8+i}:{YB+8+i+1}]")
    D = YB
    for i in range(4): bf16r(D+i)
    for i in range(4): e(f"v_mul_f32 v{T[i]}, {hex(f32(-1.4426950408889634))}, v{D+i}")
    for i in range(4): e(f"v_exp_f32 v{T[i]}, v{T[i]}")
    for i in range(4): e(f"v_add_f32 v{T[i]}, 1.0, v{T[i]}")
    for i in range(4): e(f"v_rcp_f32 v{T[i]}, v{T[i]}")
    for i in range(4): e(f"v_mul_f32 v{D+i}, v{D+i}, v{T[i]}")
    e(f"v_cvt_pk_bf16_f32 v{T[4]}, v{D}, v{D+1}")
    e(f"v_cvt_pk_bf16_f32 v{T[5]}, v{D+2}, v{D+3}")
    ZD = 180
    for tt in range(10):
        e(f"v_mfma_f32_16x16x16_bf16 v[{ZD+4*tt}:{ZD+4*tt+3}], v[{F2+2*tt}:{F2+2*tt+1}], v[{T[4]}:{T[5]}], 0")
    for tt in range(10):
        e(f"s_add_u32 s{sT0}, s{sOOB}, {tt*6144}")
        e(f"buffer_store_dwordx4 v[{ZD+4*tt}:{ZD+4*tt+3}], v{VZA}, {srd(SRD_WS)}, s{sT0} offen sc1")
    stamp()
    if dry:
        e(f"s_cmp_eq_u32 s{sDRY}, 0")
        e("s_cbranch_scc1 L_fin")
        wait_progress("L_mlp_wait")
        e("s_branch L_mlp_tail")
    A.label("L_fin"); A.fence()
    if stamps and not prog:
        e(f"s_cmp_lg_u32 s{sW}, 0")
        e("s_cbranch_scc1 L_end")
        e("s_waitcnt lgkmcnt(0)")
        e(f"s_lshl_b32 s{sT0}, s2, 7")
        e(f"s_add_u32 s{sT0}, s{sT0}, {WS_STAMP + 64 + 32}")
        e("s_mov_b64 exec, 1")
        for i in range(1, 4):
            e(f"v_mov_b32 v{T[2]}, s{sST+2*i}")
            e(f"v_mov_b32 v{T[3]}, s{sST+2*i+1}")
            e(f"buffer_store_dwordx2 v[{T[2]}:{T[3]}], v{VZERO}, {srd(SRD_WS)}, s{sT0} offen offset:{8*i}")
            e("s_nop 1")
    A.label("L_end")
    A.raw("    s_endpgm")
    A.raw(f""".section .rodata,"a"
.p2align 6
.amdhsa_kernel {NAME}
  .amdhsa_next_free_vgpr 256
  .amdhsa_next_free_sgpr 102
  .amdhsa_accum_offset 256
  .amdhsa_group_segment_fixed_size 0
  .amdhsa_kernarg_size 88
  .amdhsa_user_sgpr_count 2
  .amdhsa_user_sgpr_kernarg_segment_ptr 1
  .amdhsa_system_sgpr_workgroup_id_x 1
  .amdhsa_float_denorm_mode_32 3
.end_amdhsa_kernel""")
    return A.text()

if __name__ == "__main__":
    out = sys.argv[1] if len(sys.argv) > 1 else "sequential_preLN__mha_block_cached__dense_activation_silu__decode.s"
    kw = eval("dict(%s)" % sys.argv[2]) if len(sys.argv) > 2 else {}
    open(out, "w").write(gen(**kw))
```

```python
import sys, struct, os
from asmlib import Asm

NAME = "sequential_preLN__mha_block_cached__dense_activation_silu__decode_kernel"
HEADER = open(os.path.join(os.path.dirname(os.path.abspath(__file__)), "header.txt")).read()
def f32(x): return struct.unpack('<I', struct.pack('<f', x))[0]

WS_PART = 0x000000
WS_Y    = 0x040000
WS_Z    = 0x070000
WS_FB   = 0x0F0000
WS_IN   = 0x100000
WS_P0   = 0x180000
WS_STAMP= 0x300000
WS_SIZE = 0x400000
L_CTL  = 0
L_F    = 32
L_ML   = 64
L_QS   = 128
L_RED  = 1024
L_RQ   = 7168
L_OB   = 19712
L_YR   = 22784
L_H    = 23808
L_LN   = 24064
L_DX   = 26624
L_W    = 27136
LDS_BYTES = L_W + 4*12288
KVBYTES = 2*32*8192*384
OOB = WS_SIZE

def gen(depths=(5,6,7,8), thr=(-60,20,100), cp=18, fb=True, init=1, fbdelay=8, stamps=False, spin_limit=1 << 20, kvflags="nt", wflags="nt", sleep=1,
        wdelay=200, indelay=12, insleep=6, prog=False, cflags='sc1', rot=9, back=1, pol=None, late=False, latet=32, skipw=0, ko=0, n0=None, CS=4, hstop=0, ebar=True, hdelay=0, prelvl=None, early0=False, mlsleep=100, sl=dict(a=1, h=1, c=1, b=4)):
    dry = False; wpace = 1; wskew = 0; half = None; endn = 0
    stamps = stamps or prog
    A = Asm(); e = A.e
    A.raw(HEADER.rstrip('\n'))
    A.raw(f"; @launch grid=(256,1,1) block=(512,1,1) lds={LDS_BYTES}")
    A.raw('.amdgcn_target "amdgcn-amd-amdhsa--gfx950"\n.text\n.globl %s\n.p2align 8\n.type %s,@function\n%s:' % (NAME, NAME, NAME))
    VLANE, VKV, VZERO = 1, 2, 3
    T = list(range(4, 20))
    VG, VC, VMW, VLW_ = 20, 21, 22, 23
    SRD_X, SRD_K, SRD_V, SRD_WQ, SRD_WA, SRD_OUT, SRD_DBG, SRD_WS, SRD_WB = 28, 32, 36, 40, 44, 48, 52, 56, 96
    sW, sH, sB, sSPL, sMEM, sKVB, sOFF = 60, 61, 62, 63, 64, 65, 66
    sMASK, sR, sRS, sT0, sT1, sT2, sT3, sSPIN, sF0 = 67, 68, 69, 70, 71, 72, 73, 74, 75
    sPLO, sPHI, sXG, sCS = 76, 77, 78, 79
    sLID, sDRY, sOOB, sLIM = 3, 26, 27, 100
    sLVL, sNOW, sPREV, sLAG = 101, 20, 22, 23
    depth = depths[init]; DMAX = depths[-1]
    sST = 80
    def srd(s): return f"s[{s}:{s+3}]"
    nstamp = [0]
    def stamp(p=False):
        if not stamps: return
        if prog and not p and nstamp[0] > 0: return
        i = nstamp[0]; nstamp[0] += 1
        assert i < 8, i
        e(f"s_memrealtime s[{sST+2*i}:{sST+2*i+1}]")
    LOG2E = hex(f32(1.4426950408889634))
    SCALE = hex(f32(192 ** -0.5))
    e("s_cmp_ge_u32 s2, 256")
    e("s_cbranch_scc1 L_end")
    e("s_load_dwordx16 s[4:19], s[0:1], 0")
    e("s_load_dwordx4 s[20:23], s[0:1], 64")
    e("s_load_dwordx2 s[24:25], s[0:1], 80")
    if stamps:
        for i in range(1, 8): e(f"s_mov_b64 s[{sST+2*i}:{sST+2*i+1}], 0")
    stamp()
    e(f"v_lshrrev_b32 v{T[0]}, 6, v0")
    e(f"v_and_b32 v{VLANE}, 63, v0")
    e(f"v_readfirstlane_b32 s{sW}, v{T[0]}")
    e(f"v_lshrrev_b32 v{VG}, 3, v{VLANE}")
    e(f"v_and_b32 v{VC}, 7, v{VLANE}")
    e(f"v_mov_b32 v{VZERO}, 0")
    e(f"v_lshlrev_b32 v{T[1]}, 4, v{VLANE}")
    e(f"v_cmp_gt_u32 vcc, 2, v{VLANE}")
    e(f"v_mov_b32 v{T[4]}, -1")
    e(f"v_cndmask_b32 v{T[4]}, v{T[4]}, v{VZERO}, vcc")
    for i in range(1, 4): e(f"v_mov_b32 v{T[4+i]}, v{T[4]}")
    e(f"ds_write_b128 v{T[1]}, v[{T[4]}:{T[7]}]")
    e(f"s_and_b32 s{sXG}, s2, 7")
    e(f"s_lshr_b32 s{sT1}, s2, 3")
    e(f"s_lshr_b32 s{sT2}, s{sT1}, 3")
    e(f"s_lshl_b32 s{sH}, s{sXG}, 2")
    e(f"s_add_u32 s{sH}, s{sH}, s{sT2}")
    e(f"s_and_b32 s{sMEM}, s{sT1}, 7")
    e(f"s_lshr_b32 s{sB}, s{sMEM}, 2")
    e(f"s_and_b32 s{sSPL}, s{sMEM}, 3")
    e(f"s_mul_i32 s{sCS}, s{sT2}, 5")
    e(f"s_add_u32 s{sCS}, s{sCS}, s{sMEM}")
    e(f"s_lshl_b32 s{sLID}, s{sH}, 3")
    e(f"s_add_u32 s{sLID}, s{sLID}, s{sMEM}")
    e(f"s_mov_b32 s{sMASK}, 0xffff0000")
    e(f"s_mov_b32 s{sLIM}, {spin_limit}")
    e(f"s_mov_b32 s{sDRY}, 0")
    e(f"s_mov_b32 s{sOOB}, 0")
    e(f"s_mul_i32 s{sKVB}, s{sH}, 3145728")
    e(f"s_lshl_b32 s{sT0}, s{sMEM}, 2")
    e(f"s_and_b32 s{sT1}, s{sW}, 3")
    e(f"s_add_u32 s{sT0}, s{sT0}, s{sT1}")
    e(f"s_mul_i32 s{sT0}, s{sT0}, 3072")
    e(f"s_add_u32 s{sKVB}, s{sKVB}, s{sT0}")
    e(f"v_mul_u32_u24 v{VKV}, 384, v{VG}")
    e(f"v_lshl_add_u32 v{VKV}, v{VC}, 4, v{VKV}")
    def mkc(s, size):
        e(f"s_mov_b32 s{s+2}, {size}"); e(f"s_mov_b32 s{s+3}, 0x20000")
    def mkb(s, p):
        e(f"s_mov_b32 s{s}, s{p}"); e(f"s_mov_b32 s{s+1}, s{p+1}")
    mkc(SRD_K, KVBYTES); mkc(SRD_X, 2560); mkc(SRD_WQ, 640*6144*2); mkc(SRD_WS, WS_SIZE)
    mkc(SRD_V, KVBYTES); mkc(SRD_OUT, 2560); mkc(SRD_DBG, 256)
    e(f"s_cmp_lt_u32 s{sW}, 4")
    e("s_cbranch_scc1 L_helper")

    def wave_reduce(v, op, tmp, n=64):
        for ctl in ("quad_perm:[1,0,3,2]", "quad_perm:[2,3,0,1]", "row_half_mirror", "row_mirror"):
            e(f"v_{op}_dpp v{v}, v{v}, v{v} {ctl} row_mask:0xf bank_mask:0xf")
        e(f"v_mov_b32 v{tmp}, v{v}")
        e(f"v_permlane16_swap_b32 v{v}, v{tmp}")
        e(f"v_{op} v{v}, v{v}, v{tmp}")
        if n == 64:
            e(f"v_mov_b32 v{tmp}, v{v}")
            e(f"v_permlane32_swap_b32 v{v}, v{tmp}")
            e(f"v_{op} v{v}, v{v}, v{tmp}")
    def group_reduce(v, op, tmp):
        e(f"v_{op}_dpp v{v}, v{v}, v{v} row_ror:8 row_mask:0xf bank_mask:0xf")
        e(f"v_mov_b32 v{tmp}, v{v}")
        e(f"v_permlane16_swap_b32 v{v}, v{tmp}")
        e(f"v_{op} v{v}, v{v}, v{tmp}")
        e(f"v_mov_b32 v{tmp}, v{v}")
        e(f"v_permlane32_swap_b32 v{v}, v{tmp}")
        e(f"v_{op} v{v}, v{v}, v{tmp}")
    def bf16r(v):
        e(f"v_cvt_pk_bf16_f32 v{v}, v{v}, v{v}")
        e(f"v_lshlrev_b32 v{v}, 16, v{v}")
    def spin_begin(lbl):
        e(f"s_mov_b32 s{sSPIN}, 0")
        A.label(lbl); A.fence()
    def spin_end(lbl, done_lbl, slp=None):
        slp = sleep if slp is None else slp
        e(f"s_cbranch_vccz {done_lbl}")
        e(f"s_add_u32 s{sSPIN}, s{sSPIN}, 1")
        e(f"s_cmp_ge_u32 s{sSPIN}, s{sLIM}")
        e(f"s_cbranch_scc1 {done_lbl}")
        if slp: e(f"s_sleep {slp}")
        e(f"s_branch {lbl}")
        A.label(done_lbl); A.fence()
    def sentinel_check(regs, tmp):
        n = len(regs)
        e(f"v_max3_u32 v{tmp}, v{regs[0]}, v{regs[1]}, v{regs[2]}")
        i = 3
        while i + 1 < n:
            e(f"v_max3_u32 v{tmp}, v{tmp}, v{regs[i]}, v{regs[i+1]}"); i += 2
        if i < n: e(f"v_max_u32 v{tmp}, v{tmp}, v{regs[i]}")
        e(f"v_cmp_eq_u32 vcc, -1, v{tmp}")
    def rng(a, n): return list(range(a, a+n))
    def poll(name, loads, setA, consume, res, tmp):
        spin_begin(f"L_{name}_spin")
        loads(setA)
        e("s_waitcnt vmcnt(0)")
        consume(setA)
        cur = list(res)
        if len(cur) == 8:
            e(f"v_pk_add_f32 v[{tmp}:{tmp+1}], v[{cur[0]}:{cur[1]}], v[{cur[2]}:{cur[3]}]")
            e(f"v_pk_add_f32 v[{tmp+2}:{tmp+3}], v[{cur[4]}:{cur[5]}], v[{cur[6]}:{cur[7]}]")
            e(f"v_pk_add_f32 v[{tmp}:{tmp+1}], v[{tmp}:{tmp+1}], v[{tmp+2}:{tmp+3}]")
        else:
            e(f"v_pk_add_f32 v[{tmp}:{tmp+1}], v[{cur[0]}:{cur[1]}], v[{cur[2]}:{cur[3]}]")
        e(f"v_cmp_u_f32 vcc, v{tmp}, v{tmp+1}")
        spin_end(f"L_{name}_spin", f"L_{name}_ok", slp=sl[name])
    def ln_stats(HBx):
        s_, t_, q_ = T[0], T[1], T[2]
        e(f"v_pk_add_f32 v[{T[4]}:{T[5]}], v[{HBx}:{HBx+1}], v[{HBx+2}:{HBx+3}]")
        for i in range(4, 20, 2): e(f"v_pk_add_f32 v[{T[4]}:{T[5]}], v[{T[4]}:{T[5]}], v[{HBx+i}:{HBx+i+1}]")
        e(f"v_add_f32 v{s_}, v{T[4]}, v{T[5]}")
        wave_reduce(s_, "add_f32", t_, n=32)
        e(f"v_mul_f32 v{s_}, {hex(f32(-1.0/640))}, v{s_}")
        for i in range(0, 20, 2):
            e(f"v_pk_add_f32 v[{T[6]}:{T[7]}], v[{HBx+i}:{HBx+i+1}], v[{s_}:{s_+1}] op_sel_hi:[1,0]")
            if i == 0: e(f"v_pk_mul_f32 v[{T[4]}:{T[5]}], v[{T[6]}:{T[7]}], v[{T[6]}:{T[7]}]")
            else: e(f"v_pk_fma_f32 v[{T[4]}:{T[5]}], v[{T[6]}:{T[7]}], v[{T[6]}:{T[7]}], v[{T[4]}:{T[5]}]")
        e(f"v_add_f32 v{q_}, v{T[4]}, v{T[5]}")
        wave_reduce(q_, "add_f32", T[3], n=32)
        e(f"v_mul_f32 v{q_}, {hex(f32(1.0/640))}, v{q_}")
        bf16r(s_); bf16r(q_)
        e(f"v_add_f32 v{q_}, {hex(f32(1e-5))}, v{q_}")
        bf16r(q_)
        e(f"v_sqrt_f32 v{q_}, v{q_}")
        bf16r(q_)
        e(f"v_rcp_f32 v{q_}, v{q_}")
        e(f"v_mov_b32 v{T[1]}, v{T[0]}")
        e(f"v_mov_b32 v{T[3]}, v{T[2]}")
        e(f"v_permlane32_swap_b32 v{T[0]}, v{T[1]}")
        e(f"v_permlane32_swap_b32 v{T[2]}, v{T[3]}")
    def norm_pair(a, b_, dst=None):
        sel = "op_sel_hi:[1,0]" if b_ == 0 else "op_sel:[0,1] op_sel_hi:[1,1]"
        e(f"v_pk_add_f32 v[{a}:{a+1}], v[{a}:{a+1}], v[{T[0]}:{T[1]}] {sel}")
        e(f"v_cvt_pk_bf16_f32 v{a+1}, v{a}, v{a+1}")
        e(f"v_lshlrev_b32 v{a}, 16, v{a+1}")
        e(f"v_and_b32 v{a+1}, s{sMASK}, v{a+1}")
        e(f"v_pk_mul_f32 v[{a}:{a+1}], v[{a}:{a+1}], v[{T[2]}:{T[3]}] {sel}")
        if dst is not None:
            e(f"v_cvt_pk_bf16_f32 v{dst}, v{a}, v{a+1}")
        else:
            e(f"v_cvt_pk_bf16_f32 v{a+1}, v{a}, v{a+1}")
            e(f"v_lshlrev_b32 v{a}, 16, v{a+1}")
            e(f"v_and_b32 v{a+1}, s{sMASK}, v{a+1}")
    def write_stamps(slot):
        e("s_waitcnt lgkmcnt(0)")
        e(f"s_lshl_b32 s{sT0}, s2, 7")
        e(f"s_add_u32 s{sT0}, s{sT0}, {WS_STAMP + slot*64}")
        e("s_mov_b64 exec, 1")
        for i in range(8):
            e(f"v_mov_b32 v{T[2]}, s{sST+2*i}")
            e(f"v_mov_b32 v{T[3]}, s{sST+2*i+1}")
            e(f"buffer_store_dwordx2 v[{T[2]}:{T[3]}], v{VZERO}, {srd(SRD_WS)}, s{sT0} offen offset:{8*i}")
            e("s_nop 1")

    Q = 24; ACC = 36; SC = 60; RING = 92; VRED = 252; VRP = 253
    NT = 32
    slots = [RING + 4*i for i in range(40)]
    early = [ACC + 4*i for i in range(6)] + [SC + 8 + 4*i for i in range(6)]
    order = [(k, b_, t, j) for b_ in range(2) for k in 'KV' for t in range(NT) for j in range(3)]
    pos = {L: i for i, L in enumerate(order)}
    free = early + slots
    npre = 51
    slot = {}; tick = {}; m = [0]; last_off = [None]; landed = [0]
    A.vm_issued = 0
    def issue_one():
        L = order[m[0]]; m[0] += 1
        kind, b_, t, j = L
        r = free.pop(0); slot[L] = r
        if last_off[0] != (kind, b_, t):
            e(f"s_add_u32 s{sOFF}, s{sCS}, {t}")
            e(f"s_and_b32 s{sOFF}, s{sOFF}, 31")
            e(f"s_mul_i32 s{sOFF}, s{sOFF}, 98304")
            e(f"s_add_u32 s{sOFF}, s{sOFF}, s{sKVB if b_ == 0 else sF0}")
            last_off[0] = (kind, b_, t)
        sr = SRD_K if kind == 'K' else SRD_V
        tick[L] = e(f"buffer_load_dwordx4 v[{r}:{r+3}], v{VKV}, {srd(sr)}, s{sOFF} offen offset:{j*128} {kvflags if not (pol and (kind + str(b_)) in pol) else ''}")
    def can_issue(): return m[0] < len(order) and free
    def wait_for(L):
        while L not in tick: issue_one()
        if tick[L] > landed[0]:
            A.wait_vm(tick[L]); landed[0] = tick[L]
    nthr = [0]
    def pump():
        if not can_issue(): return
        infl = A.vm_issued - landed[0]
        if infl >= depths[0]:
            if infl >= DMAX:
                tk = A.vm_issued - (DMAX - 1)
                A.wait_vm(tk); landed[0] = tk
            if fb:
                nthr[0] += 1; lbl = f"L_go{nthr[0]}"
                for lv in (3, 2, 1):
                    e(f"s_cmp_ge_u32 s{sLVL}, {lv}")
                    e(f"s_cbranch_scc1 {lbl}")
                    e(f"s_waitcnt vmcnt({depths[lv-1]-1})")
                for I_ in A.hist[-7:]: I_.states = 0
                A.label(lbl)
            elif A.vm_issued - landed[0] >= depth:
                tk = A.vm_issued - (depth - 1)
                A.wait_vm(tk); landed[0] = tk
        issue_one()
    def release(L):
        if slot[L] >= RING: free.append(slot[L])
    e(f"s_mul_i32 s{sCS}, s{sH}, {rot}")
    e(f"s_add_u32 s{sF0}, s{sKVB}, 100663296")
    e("s_waitcnt lgkmcnt(0)")
    mkb(SRD_K, 6)
    n0 = depth if n0 is None else n0
    for _ in range(n0): issue_one()
    mkb(SRD_V, 8); mkb(SRD_WS, 24)
    e("s_barrier")
    e(f"s_mov_b32 s{sLVL}, {init if prelvl is None else prelvl}")
    e(f"s_mov_b32 s{sNOW}, 0")
    sOK = sPLO; sLAST = sPHI
    e(f"s_mov_b32 s{sOK}, 0")
    e(f"s_mov_b32 s{sR}, 0")
    e(f"s_lshr_b32 s{sT0}, s2, 7"); e(f"s_lshl_b32 s{sT0}, s{sT0}, 3"); e(f"s_add_u32 s{sT0}, s{sT0}, s{sXG}"); e(f"s_lshl_b32 s{sT0}, s{sT0}, 2")
    e(f"s_bfe_u32 s{sT1}, s2, 0x40003")
    e(f"s_cmp_eq_u32 s{sT1}, 3"); e(f"s_cselect_b32 s{sT0}, s{sT0}, {OOB}")
    e(f"s_cmp_eq_u32 s{sW}, 4"); e(f"s_cselect_b32 s{sT0}, s{sT0}, {OOB}")
    e(f"v_mov_b32 v{VRP}, s{sT0}")
    e(f"v_mov_b32 v{T[2]}, {OOB}")
    e(f"v_cmp_eq_u32 vcc, 0, v{VLANE}")
    e(f"v_cndmask_b32 v{VRP}, v{T[2]}, v{VRP}, vcc")
    e(f"v_mul_u32_u24 v{VRED}, 96, v{VC}")
    e(f"v_mul_u32_u24 v{T[2]}, 12, v{VG}")
    e(f"v_add_u32 v{VRED}, v{VRED}, v{T[2]}")
    e(f"s_and_b32 s{sSPL}, s{sW}, 3")
    e(f"s_mul_i32 s{sRS}, s{sSPL}, 768")
    e(f"v_add_u32 v{VRED}, s{sRS}, v{VRED}")
    e(f"v_lshlrev_b32 v{T[14]}, 4, v{VLANE}")
    e(f"v_cmp_gt_u32 vcc, 48, v{VLANE}")
    e(f"v_mov_b32 v{T[15]}, {OOB}")
    e(f"v_cndmask_b32 v{T[15]}, v{T[15]}, v{T[14]}, vcc")
    e(f"v_mov_b32 v{T[13]}, 1")
    for _ in range(npre - n0): pump()
    e(f"s_mov_b32 s{sLVL}, {init}")
    ncons = [0]
    fbs = dict(ncp=0, due1=None, due=None)
    LOOK = DMAX if fb else depth
    def step(L):
        ncons[0] += 1
        n = ncons[0]
        if m[0] - pos[L] > LOOK:
            if n % 3 == 0: pump()
        else:
            while can_issue() and m[0] - pos[L] <= LOOK: pump()
        wait_for(L)
    def feedback():
        if not fb: return
        n = ncons[0]
        if fbs['due1'] == n:
            e("s_waitcnt lgkmcnt(0)")
            e(f"v_mov_b32 v254, s{sNOW}")
            e(f"s_mov_b32 s{sT0}, {WS_FB + fbs['ncp']*128}")
            e(f"buffer_store_dword v254, v{VRP}, {srd(SRD_WS)}, s{sT0} offen sc1")
            if fbs['ncp'] > back:
                e(f"s_cmp_eq_u32 s{sOK}, 0")
                e(f"s_cbranch_scc1 L_fb{fbs['ncp']}a")
                e(f"s_load_dwordx16 s[4:19], s[24:25], {WS_FB + (fbs['ncp']-back)*128}")
                A.label(f"L_fb{fbs['ncp']}a")
            e(f"ds_read_b32 v255, v{VZERO} offset:{L_CTL+8}")
            fbs['due'] = n + fbdelay
        if fbs['due'] == n:
            e("s_waitcnt lgkmcnt(0)")
            if fbs['ncp'] > back:
                e(f"s_cmp_eq_u32 s{sOK}, 0")
                e(f"s_cbranch_scc1 L_fb{fbs['ncp']}b")
                e(f"s_mov_b32 s{sLAG}, 0")
                for i in range(16):
                    e(f"s_min_u32 s{4+i}, s{4+i}, s{sNOW}")
                    e(f"s_sub_u32 s{4+i}, s{sPREV}, s{4+i}")
                    e(f"s_add_u32 s{sLAG}, s{sLAG}, s{4+i}")
                e(f"s_ashr_i32 s{sLAG}, s{sLAG}, 4")
                e(f"s_mov_b32 s{sLVL}, 0")
                for lv, th in enumerate(thr):
                    e(f"s_cmp_ge_i32 s{sLAG}, {th}"); e(f"s_cselect_b32 s{sLVL}, {lv+1}, s{sLVL}")
                A.label(f"L_fb{fbs['ncp']}b"); A.fence()
                e("s_nop 2")
            e(f"v_readfirstlane_b32 s{sOK}, v255")
        if n >= 84 and n % cp == cp - 1 and n + 2*DMAX + 12 < len(order):
            fbs['ncp'] += 1
            assert fbs['ncp'] < 32
            if back == 1: e(f"s_mov_b32 s{sPREV}, s{sNOW}")
            else:
                e(f"s_mov_b32 s{sPREV}, s{sR}"); e(f"s_mov_b32 s{sR}, s{sNOW}")
            e(f"s_memrealtime s[{sNOW}:{sNOW+1}]")
            fbs['due1'] = n + 1
    def flush(b_):
        a = ACC
        for k in range(12): e(f"v_permlane32_swap_b32 v{a+k}, v{a+k+12}")
        for k in range(12): e(f"v_add_f32 v{a+k}, v{a+k}, v{a+k+12}")
        if b_ == 0: pump()
        for k in range(6): e(f"v_permlane16_swap_b32 v{a+k}, v{a+k+6}")
        for k in range(6): e(f"v_add_f32 v{a+k}, v{a+k}, v{a+k+6}")
        for k in range(3): e(f"v_add_f32_dpp v{a+12+k}, v{a+k}, v{a+k} row_ror:8 row_mask:0xf bank_mask:0x3")
        for k in range(3): e(f"v_add_f32_dpp v{a+12+k}, v{a+3+k}, v{a+3+k} row_ror:8 row_mask:0xf bank_mask:0xc")
        for k in range(3): e(f"v_mul_f32 v{a+12+k}, v{a+12+k}, v{VMW}")
        for k in range(3): e(f"ds_write_b32 v{VRED}, v{a+12+k} offset:{L_RED + 3072*b_ + 4*k}")
        e("s_mov_b64 exec, 1")
        e(f"ds_add_rtn_u32 v{T[12]}, v{VZERO}, v{T[13]} offset:{L_CTL + (4 if b_ == 0 else 16)}")
        e("s_mov_b64 exec, -1")
        if b_ == 0: pump()
        e(f"s_lshl_b32 s{sT1}, s{sLID}, 10")
        if b_ == 0: e(f"s_add_u32 s{sT1}, s{sT1}, {WS_P0}")
        e("s_waitcnt lgkmcnt(0)")
        e(f"v_readfirstlane_b32 s{sLAST}, v{T[12]}")
        e(f"s_cmp_lg_u32 s{sLAST}, 3")
        if b_ == 0: e(f"s_cselect_b32 s{sT1}, {OOB}, s{sT1}")
        e(f"s_cbranch_scc1 L_fl{b_}")
        for w in range(4):
            e(f"ds_read_b128 v[{ACC+4*w}:{ACC+4*w+3}], v{T[14]} offset:{L_RED + 3072*b_ + w*768}")
        e("s_waitcnt lgkmcnt(0)")
        for i in (0, 2):
            e(f"v_pk_add_f32 v[{ACC+i}:{ACC+i+1}], v[{ACC+i}:{ACC+i+1}], v[{ACC+4+i}:{ACC+4+i+1}]")
            e(f"v_pk_add_f32 v[{ACC+8+i}:{ACC+8+i+1}], v[{ACC+8+i}:{ACC+8+i+1}], v[{ACC+12+i}:{ACC+12+i+1}]")
        for i in (0, 2): e(f"v_pk_add_f32 v[{ACC+i}:{ACC+i+1}], v[{ACC+i}:{ACC+i+1}], v[{ACC+8+i}:{ACC+8+i+1}]")
        if b_ == 0:
            A.label("L_fl0"); A.fence()
            return e(f"buffer_store_dwordx4 v[{ACC}:{ACC+3}], v{T[15]}, {srd(SRD_WS)}, s{sT1} offen sc1")
        e(f"buffer_store_dwordx4 v[{ACC}:{ACC+3}], v{T[15]}, {srd(SRD_WS)}, s{sT1} offen sc1")
        e(f"ds_write_b32 v{VZERO}, v{T[13]} offset:{L_CTL+12}")
        if stamps:
            stamp()
            write_stamps(0)
        A.label("L_fl1"); A.fence()
    tk_p0 = None; p0_flagged = False
    for L in order:
        kind, b_, t, j = L
        if prog and j == 0 and (kind, b_, t) in (('K',0,24),('V',0,8),('V',0,24),('K',1,8),('K',1,24),('V',1,8),('V',1,24)): stamp(True)
        if kind == 'K':
            if t == 0 and j == 0:
                e(f"v_lshlrev_b32 v{T[8]}, 4, v{VC}")
                spin_begin(f"L_ql{b_}_spin")
                for jj in range(3):
                    e(f"ds_read_b128 v[{Q+4*jj}:{Q+4*jj+3}], v{T[8]} offset:{L_QS + 384*b_ + 128*jj}")
                e("s_waitcnt lgkmcnt(0)")
                sentinel_check(rng(Q, 12), T[9])
                if ko & 2: e("s_mov_b64 vcc, 0")
                spin_end(f"L_ql{b_}_spin", f"L_ql{b_}_done")
                if b_ == 0: stamp()
            step(L)
            r = slot[L]
            for i in range(4):
                c = "0" if i == 0 else f"v{T[j]}"
                e(f"v_dot2_f32_bf16 v{T[j]}, v{r+i}, v{Q+4*j+i}, {c}")
            release(L)
            feedback()
            if tk_p0 is not None and not p0_flagged and landed[0] >= tk_p0:
                e(f"s_cmp_lg_u32 s{sLAST}, 3")
                e("s_cbranch_scc1 L_p0f")
                e(f"ds_write_b32 v{VZERO}, v{T[13]} offset:{L_CTL+20}")
                A.label("L_p0f")
                p0_flagged = True
            if j == 2:
                sc = SC + t
                assert all(not (slot[x] <= sc < slot[x]+4) for x in order[pos[L]+1:] if x in slot), "score reg busy"
                e(f"v_add_f32 v{sc}, v{T[0]}, v{T[1]}")
                e(f"v_add_f32 v{sc}, v{sc}, v{T[2]}")
                for ctl in ("quad_perm:[1,0,3,2]", "quad_perm:[2,3,0,1]", "row_half_mirror"):
                    e(f"v_add_f32_dpp v{sc}, v{sc}, v{sc} {ctl} row_mask:0xf bank_mask:0xf")
                bf16r(sc)
                e(f"v_mul_f32 v{sc}, {SCALE}, v{sc}")
                bf16r(sc)
                if t == 0: e(f"v_mov_b32 v{VMW}, v{sc}")
                else: e(f"v_max_f32 v{VMW}, v{VMW}, v{sc}")
            if t == NT-1 and j == 2:
                if b_ == 1: stamp()
                group_reduce(VMW, "max_f32", T[1])
        else:
            if j == 0 and t < 8:
                for t2 in range(4*t, 4*t+4):
                    sc = SC + t2
                    e(f"v_sub_f32 v{sc}, v{sc}, v{VMW}")
                    e(f"v_mul_f32 v{sc}, {LOG2E}, v{sc}")
                    e(f"v_exp_f32 v{sc}, v{sc}")
                    if t2 == 0: e(f"v_mov_b32 v{VLW_}, v{sc}")
                    else: e(f"v_add_f32 v{VLW_}, v{VLW_}, v{sc}")
            if t == 8 and j == 0:
                group_reduce(VLW_, "add_f32", T[8])
                e(f"s_lshl_b32 s{sT0}, s{sSPL}, 3")
                e(f"v_mov_b32 v{T[8]}, s{sT0}")
                e(f"ds_write_b64 v{T[8]}, v[{VMW}:{VLW_}] offset:{L_ML + 32*b_}")
            if b_ == 1 and t == latet and j == 0:
                e(f"ds_write_b32 v{VZERO}, v{T[13]} offset:{L_CTL+24}")
            if t == NT-3 and j == 1:
                e(f"s_lshl_b32 s{sT0}, s{sSPL}, 2")
                e(f"v_mov_b32 v{T[8]}, s{sT0}")
                spin_begin(f"L_mx{b_}_spin")
                e(f"ds_read_b32 v{VMW}, v{T[8]} offset:{L_F + 16*b_}")
                e(f"ds_read_b32 v{T[12]}, v{VZERO} offset:{L_CTL+8}")
                e("s_waitcnt lgkmcnt(0)")
                e(f"v_subrev_u32 v{T[12]}, 1, v{T[12]}")
                e(f"v_max_u32 v{T[12]}, v{T[12]}, v{VMW}")
                e(f"v_cmp_eq_u32 vcc, -1, v{T[12]}")
                if ko & 2: e("s_mov_b64 vcc, 0")
                spin_end(f"L_mx{b_}_spin", f"L_mx{b_}_done")
            step(L)
            r = slot[L]
            for i in range(4):
                lo, hi = T[(2*i) % 8], T[(2*i+1) % 8]
                e(f"v_lshlrev_b32 v{lo}, 16, v{r+i}")
                e(f"v_and_b32 v{hi}, s{sMASK}, v{r+i}")
                k = ACC + 8*j + 2*i
                op = "v_mul_f32" if t == 0 else "v_fmac_f32"
                e(f"{op} v{k}, v{SC+t}, v{lo}"); e(f"{op} v{k+1}, v{SC+t}, v{hi}")
            release(L)
            feedback()
            if t == NT-1 and j == 2:
                if b_ == 0: tk_p0 = flush(0)
                else:
                    stamp(); flush(1)
    assert p0_flagged
    e("s_endpgm")

    A.label("L_helper"); A.fence()
    if ko & 4:
        e("s_waitcnt lgkmcnt(0)"); e("s_barrier"); e("s_endpgm")
    nstamp[0] = 1
    e("s_setprio 3")
    e(f"s_mov_b32 s{sPLO}, 0x05040100")
    e(f"s_mov_b32 s{sPHI}, 0x07060302")
    e(f"s_mul_i32 s{sR}, s{sH}, 5")
    e(f"s_add_u32 s{sR}, s{sR}, s{sMEM}")
    e(f"s_mul_i32 s{sF0}, s{sH}, 3")
    e(f"s_add_u32 s{sF0}, s{sF0}, s{sMEM}")
    e(f"s_sub_u32 s{sF0}, s{sF0}, 5")
    e(f"s_lshl_b32 s{sF0}, s{sF0}, 4")
    VL16 = 24; VYA = 25; VA = [26, 27, 28, 29, 30, 31]
    XS = 32
    XO = 42
    HB = 52
    LNV = 72
    QA = 92
    WQB = 108
    assert CS in (2, 4)
    CW = 24 // CS; RS = 8 // CS; QW = 48 // CS
    def divmod_lane(q_, r2, d):
        mul = (65536 + d - 1) // d
        e(f"v_mul_u32_u24 v{q_}, {mul}, v{VLANE}")
        e(f"v_lshrrev_b32 v{q_}, 16, v{q_}")
        e(f"v_mul_u32_u24 v{r2}, {d}, v{q_}")
        e(f"v_sub_u32 v{r2}, v{VLANE}, v{r2}")
    r_, c_ = T[0], T[1]
    divmod_lane(r_, c_, CW)
    e(f"s_and_b32 s{sT0}, s{sMEM}, {RS-1}")
    e(f"s_mul_i32 s{sT0}, s{sT0}, {80*CS}")
    e(f"s_mul_i32 s{sT1}, s{sW}, {20*CS}")
    e(f"s_add_u32 s{sT0}, s{sT0}, s{sT1}")
    e(f"v_mul_u32_u24 v{T[2]}, 10, v{r_}")
    e(f"v_add_u32 v{T[2]}, s{sT0}, v{T[2]}")
    e(f"v_lshlrev_b32 v{VA[0]}, 1, v{T[2]}")
    e(f"v_mul_u32_u24 v{VA[1]}, 40, v{VLANE}")
    e(f"v_mul_u32_u24 v{VA[2]}, 12288, v{T[2]}")
    e(f"v_lshl_add_u32 v{VA[2]}, v{c_}, 4, v{VA[2]}")
    e(f"s_mul_i32 s{sT0}, s{sH}, 384")
    e(f"s_lshr_b32 s{sT1}, s{sMEM}, {RS.bit_length()-1}")
    e(f"s_mul_i32 s{sT1}, s{sT1}, {384//CS}")
    e(f"s_add_u32 s{sT0}, s{sT0}, s{sT1}")
    e(f"v_add_u32 v{VA[2]}, s{sT0}, v{VA[2]}")
    e(f"v_cmp_gt_u32 vcc, 48, v{VLANE}")
    e(f"v_mov_b32 v{T[3]}, 0x7f000000")
    e(f"v_cndmask_b32 v{VA[2]}, v{T[3]}, v{VA[2]}, vcc")
    e("s_waitcnt lgkmcnt(0)")
    if ebar: e("s_barrier")
    if hdelay: e(f"s_sleep {hdelay}")
    mkb(SRD_X, 4); mkb(SRD_WQ, 10)
    e(f"buffer_load_dwordx4 v[{XS}:{XS+3}], v{VA[1]}, {srd(SRD_X)}, 0 offen")
    e(f"buffer_load_dwordx4 v[{XS+4}:{XS+7}], v{VA[1]}, {srd(SRD_X)}, 0 offen offset:16")
    e(f"buffer_load_dwordx2 v[{XS+8}:{XS+9}], v{VA[1]}, {srd(SRD_X)}, 0 offen offset:32")
    XOa = [44, 48]; XOb = [42, 43]
    for b_ in range(2):
        e(f"buffer_load_dwordx4 v[{XOa[b_]}:{XOa[b_]+3}], v{VA[0]}, {srd(SRD_X)}, 0 offen offset:{1280*b_}")
        e(f"buffer_load_dword v{XOb[b_]}, v{VA[0]}, {srd(SRD_X)}, 0 offen offset:{1280*b_+16}")
    for i in range(10):
        if i: e(f"s_mov_b32 s{sOFF}, {i*12288}")
        so = f"s{sOFF}" if i else "0"
        e(f"buffer_load_dwordx4 v[{WQB+4*i}:{WQB+4*i+3}], v{VA[2]}, {srd(SRD_WQ)}, {so} offen {wflags}")
    mkb(SRD_WS, 24); mkb(SRD_OUT, 20); mkb(SRD_DBG, 22)
    e(f"s_cmp_lt_u32 s{sMEM}, 5")
    e(f"s_cselect_b32 s{SRD_WA}, s12, s16"); e(f"s_cselect_b32 s{SRD_WA+1}, s13, s17")
    e(f"s_cselect_b32 s{SRD_WB}, s12, s18"); e(f"s_cselect_b32 s{SRD_WB+1}, s13, s19")
    e(f"s_mov_b32 s{SRD_WA+2}, {640*1536*2}")
    e(f"s_cselect_b32 s{SRD_WA+2}, {6144*640*2}, s{SRD_WA+2}")
    e(f"s_mov_b32 s{SRD_WB+2}, s{SRD_WA+2}")
    e(f"s_mov_b32 s{SRD_WA+3}, 0x20000"); e(f"s_mov_b32 s{SRD_WB+3}, 0x20000")
    e(f"v_lshlrev_b32 v{VA[3]}, 5, v{VLANE}")
    e(f"s_mul_i32 s{sT0}, s{sW}, 3072")
    e(f"v_add_u32 v{VA[3]}, s{sT0}, v{VA[3]}")
    if hstop == 1:
        e("s_waitcnt vmcnt(0) lgkmcnt(0)"); e("s_endpgm")
    e(f"v_lshlrev_b32 v{VL16}, 4, v{VLANE}")
    e(f"v_mul_u32_u24 v{VYA}, 2560, v{VG}")
    e(f"v_lshl_add_u32 v{VYA}, v{VC}, 4, v{VYA}")
    e(f"s_mul_i32 s{sT0}, s{sXG}, 5120")
    e(f"s_lshl_b32 s{sT1}, s{sCS}, 7")
    e(f"s_add_u32 s{sT0}, s{sT0}, s{sT1}")
    e(f"s_add_u32 s{sT0}, s{sT0}, {WS_Y}")
    e(f"s_cmp_ge_u32 s{sMEM}, 5")
    e(f"s_cselect_b32 s{sT0}, {OOB}, s{sT0}")
    e(f"v_add_u32 v{VYA}, s{sT0}, v{VYA}")
    e(f"v_cmp_le_u32 vcc, 16, v{VLANE}")
    e(f"v_mov_b32 v{T[3]}, {OOB}")
    e(f"v_cndmask_b32 v{VYA}, v{VYA}, v{T[3]}, vcc")
    for i in range(4): e(f"v_mov_b32 v{T[4+i]}, -1")
    e(f"s_cmp_lg_u32 s{sW}, {3 if not (ko & 1) else 9}")
    e("s_cbranch_scc1 L_clr_done")
    e(f"s_mul_i32 s{sT1}, s{sR}, 3072")
    e(f"s_add_u32 s{sT1}, s{sT1}, {WS_Z}")
    e(f"s_cmp_ge_u32 s{sMEM}, 5")
    e(f"s_cselect_b32 s{sT1}, {OOB}, s{sT1}")
    for i in range(3):
        e(f"buffer_store_dwordx4 v[{T[4]}:{T[7]}], v{VL16}, {srd(SRD_WS)}, s{sT1} offen offset:{1024*i} {cflags}")
    e(f"s_lshl_b32 s{sT0}, s{sLID}, 10")
    e("s_mov_b32 exec_hi, 0x3ffff")
    e(f"buffer_store_dwordx4 v[{T[4]}:{T[7]}], v{VL16}, {srd(SRD_WS)}, s{sT0} offen {cflags}")
    e("s_mov_b64 exec, -1")
    e(f"buffer_store_dwordx4 v[{T[4]}:{T[7]}], v{VYA}, {srd(SRD_WS)}, 0 offen {cflags}")
    e(f"s_cmp_lg_u32 s{sLID}, 7")
    e("s_cbranch_scc1 L_clr_done")
    e(f"s_mov_b32 s{sT0}, {WS_FB}")
    for i in range(4):
        e(f"buffer_store_dwordx4 v[{T[4]}:{T[7]}], v{VL16}, {srd(SRD_WS)}, s{sT0} offen offset:{1024*i} {cflags}")
    A.label("L_clr_done"); A.fence()
    if not ebar: e("s_barrier")
    if hstop == 2:
        e("s_waitcnt vmcnt(0) lgkmcnt(0)"); e("s_endpgm")
    e(f"s_cmp_lg_u32 s{sW}, 3")
    e("s_cbranch_scc1 L_h3w")
    e("s_waitcnt vmcnt(0)")
    A.label("L_h3w"); A.fence()
    e("s_waitcnt vmcnt(10)")
    for i in range(10):
        e(f"v_lshlrev_b32 v{HB+2*i}, 16, v{XS+i}")
        e(f"v_and_b32 v{HB+2*i+1}, s{sMASK}, v{XS+i}")
    ln_stats(HB)
    for b_ in range(2):
        src = [XOa[b_]+i for i in range(4)] + [XOb[b_]]
        for i in range(5):
            a_ = LNV + 10*b_ + 2*i
            e(f"v_lshlrev_b32 v{a_}, 16, v{src[i]}")
            e(f"v_and_b32 v{a_+1}, s{sMASK}, v{src[i]}")
            norm_pair(a_, b_)
    for i in range(10):
        e(f"s_waitcnt vmcnt({9-i})")
        r = WQB + 4*i
        for d in range(4):
            lo, hi = T[(2*d) % 8 + 4], T[(2*d+1) % 8 + 4]
            e(f"v_lshlrev_b32 v{lo}, 16, v{r+d}")
            e(f"v_and_b32 v{hi}, s{sMASK}, v{r+d}")
            for b_ in range(2):
                k = QA + 8*b_ + 2*d; p = LNV + 10*b_ + i
                op = "v_mul_f32" if i == 0 else "v_fmac_f32"
                e(f"{op} v{k}, v{p}, v{lo}"); e(f"{op} v{k+1}, v{p}, v{hi}")
    e(f"v_cmp_gt_u32 vcc, 48, v{VLANE}")
    e(f"s_and_saveexec_b64 s[{sT2}:{sT3}], vcc")
    for b_ in range(2):
        e(f"ds_write_b128 v{VA[3]}, v[{QA+8*b_}:{QA+8*b_+3}] offset:{L_RQ + 1536*b_}")
        e(f"ds_write_b128 v{VA[3]}, v[{QA+8*b_+4}:{QA+8*b_+7}] offset:{L_RQ + 1536*b_ + 16}")
    e("s_mov_b64 exec, 1")
    e(f"v_mov_b32 v{T[0]}, 1")
    e(f"ds_add_rtn_u32 v{T[1]}, v{VZERO}, v{T[0]} offset:{L_CTL}")
    e("s_mov_b64 exec, -1")
    e("s_waitcnt lgkmcnt(0)")
    e(f"v_readfirstlane_b32 s{sT0}, v{T[1]}")
    e(f"v_cmp_gt_u32 vcc, 48, v{VLANE}")
    e(f"v_mov_b32 v{T[3]}, {OOB}")
    e(f"v_cndmask_b32 v{VA[4]}, v{T[3]}, v{VL16}, vcc")
    e(f"s_cmp_lg_u32 s{sT0}, 3")
    e("s_cbranch_scc1 L_q_skip")
    divmod_lane(T[2], T[3], QW)
    e(f"v_mul_u32_u24 v{T[4]}, 1536, v{T[2]}")
    e(f"v_lshl_add_u32 v{T[4]}, v{T[3]}, 4, v{T[4]}")
    NR = 4 * 2 * CS
    SB = 108
    for k in range(NR):
        w_, rr = divmod(k, 2*CS)
        e(f"ds_read_b128 v[{SB+4*k}:{SB+4*k+3}], v{T[4]} offset:{L_RQ + w_*3072 + rr*(768//CS)}")
        if k % 8 == 7: e("s_waitcnt lgkmcnt(0)")
    st = 1
    while st < NR:
        for k in range(0, NR, 2*st):
            for i in (0, 2):
                a_, b2 = SB+4*k+i, SB+4*(k+st)+i
                e(f"v_pk_add_f32 v[{a_}:{a_+1}], v[{a_}:{a_+1}], v[{b2}:{b2+1}]")
        st *= 2
    e(f"v_cmp_gt_u32 vcc, {2*QW}, v{VLANE}")
    e(f"v_mov_b32 v{T[5]}, {OOB}")
    e(f"v_cndmask_b32 v{T[5]}, v{T[5]}, v{VL16}, vcc")
    e(f"s_mul_i32 s{sT0}, s{sLID}, {1536//CS}")
    e(f"s_add_u32 s{sT0}, s{sT0}, {WS_IN}")
    e(f"buffer_store_dwordx4 v[{SB}:{SB+3}], v{T[5]}, {srd(SRD_WS)}, s{sT0} offen sc1")
    e(f"v_mul_u32_u24 v{T[12]}, {RS*(1536//CS)}, v{T[2]}")
    e(f"v_lshl_add_u32 v{T[12]}, v{T[3]}, 4, v{T[12]}")
    e(f"v_cmp_gt_u32 vcc, 48, v{VLANE}")
    e(f"v_mov_b32 v{T[13]}, {OOB}")
    e(f"v_cndmask_b32 v{T[12]}, v{T[13]}, v{T[12]}, vcc")
    stamp()
    e(f"s_lshl_b32 s{sT0}, s{sH}, 3")
    e(f"s_add_u32 s{sT2}, s22, s{sT0}")
    e(f"s_addc_u32 s{sT3}, s23, 0")
    e(f"s_mov_b32 s{sT1}, 1")
    e(f"v_lshlrev_b32 v{VA[5]}, 10, v{VLANE}")
    e(f"s_lshl_b32 s{sT0}, s{sH}, 13")
    e(f"s_add_u32 s{sT0}, s{sT0}, 784")
    e(f"s_lshl_b32 s{sOFF}, s{sLID}, 10")
    e(f"s_add_u32 s{sOFF}, s{sOFF}, 784")
    e("s_waitcnt vmcnt(0) lgkmcnt(0)")
    e(f"s_atomic_add s{sT1}, s[{sT2}:{sT3}], 0 glc")
    e("s_waitcnt lgkmcnt(0)")
    e(f"s_and_b32 s{sT1}, s{sT1}, 7")
    e(f"s_cmp_lg_u32 s{sT1}, 7")
    e("s_cbranch_scc1 L_qf_wait")
    e("s_mov_b64 exec, 0xff")
    e(f"buffer_store_dword v{VZERO}, v{VA[5]}, {srd(SRD_WS)}, s{sT0} offen sc1")
    e("s_mov_b64 exec, -1")
    e("s_branch L_qf_done")
    A.label("L_qf_wait"); A.fence()
    if indelay: e(f"s_sleep {indelay}")
    spin_begin("L_qf_spin")
    e(f"buffer_load_dword v{T[14]}, v{VZERO}, {srd(SRD_WS)}, s{sOFF} offen sc1")
    e("s_waitcnt vmcnt(0)")
    e(f"v_cmp_eq_u32 vcc, -1, v{T[14]}")
    spin_end("L_qf_spin", "L_qf_done", slp=insleep)
    stamp()
    e(f"s_mul_i32 s{sT0}, s{sH}, {8*(1536//CS)}")
    e(f"s_add_u32 s{sT0}, s{sT0}, {WS_IN}")
    IB = 108
    for k in range(RS):
        for b_ in range(2):
            d = IB + 32*b_ + 4*k
            e(f"buffer_load_dwordx4 v[{d}:{d+3}], v{T[12]}, {srd(SRD_WS)}, s{sT0} offen offset:{k*(1536//CS) + (768//CS)*b_} sc1")
    e("s_waitcnt vmcnt(0)")
    for b_ in range(2):
        ib = IB + 32*b_
        for k in range(1, RS):
            for i in (0, 2):
                e(f"v_pk_add_f32 v[{ib+i}:{ib+i+1}], v[{ib+i}:{ib+i+1}], v[{ib+4*k+i}:{ib+4*k+i+1}]")
        e(f"v_cvt_pk_bf16_f32 v{T[4+2*b_]}, v{ib}, v{ib+1}")
        e(f"v_cvt_pk_bf16_f32 v{T[5+2*b_]}, v{ib+2}, v{ib+3}")
    for i in range(4): e(f"v_min_u32 v{T[4+i]}, -2, v{T[4+i]}")
    e(f"v_lshlrev_b32 v{T[0]}, 3, v{VLANE}")
    e(f"v_cmp_gt_u32 vcc, 48, v{VLANE}")
    e(f"s_and_saveexec_b64 s[{sT2}:{sT3}], vcc")
    e(f"ds_write_b64 v{T[0]}, v[{T[4]}:{T[5]}] offset:{L_QS}")
    e(f"ds_write_b64 v{T[0]}, v[{T[6]}:{T[7]}] offset:{L_QS+384}")
    e("s_mov_b64 exec, -1")
    stamp()
    if stamps and not prog:
        write_stamps(1)
        e("s_mov_b64 exec, -1")
    A.label("L_q_skip"); A.fence()
    nstamp[0] = 1
    if hstop == 3:
        e("s_waitcnt vmcnt(0) lgkmcnt(0)"); e("s_endpgm")
    for _ in range(wdelay // 100): e("s_sleep 100")
    if wskew:
        e(f"s_mov_b32 s{sT0}, 0")
        A.label("L_skew"); A.fence()
        e(f"s_cmp_ge_u32 s{sT0}, s{sW}")
        e("s_cbranch_scc1 L_skew_done")
        for _ in range(wskew // 100): e("s_sleep 100")
        e(f"s_add_u32 s{sT0}, s{sT0}, 1")
        e("s_branch L_skew")
        A.label("L_skew_done"); A.fence()
    e(f"s_cmp_lg_u32 s{sW}, 1")
    e("s_cbranch_scc1 L_all_skip")
    e(f"v_and_b32 v{T[0]}, 31, v{VLANE}")
    e(f"v_lshlrev_b32 v{T[0]}, 3, v{T[0]}")
    spin_begin("L_all_spin")
    e(f"buffer_load_dword v{T[1]}, v{T[0]}, {srd(SRD_DBG)}, 0 offen sc1")
    e("s_waitcnt vmcnt(0)")
    e(f"v_cmp_gt_u32 vcc, 8, v{T[1]}")
    spin_end("L_all_spin", "L_all_done", slp=64)
    e(f"v_mov_b32 v{T[1]}, 1")
    e(f"ds_write_b32 v{VZERO}, v{T[1]} offset:{L_CTL+8}")
    A.label("L_all_skip"); A.fence()
    WB_ = 32
    FRG = 128
    gA, gB, lA, lB = VA[0], VA[1], VA[2], VA[3]
    e(f"s_mul_i32 s{sRS}, s{sW}, 12288")
    e(f"s_add_u32 s{sRS}, s{sRS}, {L_W}")
    e(f"s_cmp_ge_u32 s{sMEM}, 5")
    e("s_cbranch_scc1 L_wadr_mlp")
    def wo_addr(g_, l_, add):
        u, cb, u3 = T[0], T[1], T[2]
        e(f"v_lshrrev_b32 v{u}, 2, v{VLANE}")
        if add: e(f"v_add_u32 v{u}, {add}, v{u}")
        e(f"v_and_b32 v{cb}, 3, v{VLANE}")
        e(f"v_mul_u32_u24 v{u3}, 43, v{u}")
        e(f"v_lshrrev_b32 v{u3}, 7, v{u3}")
        e(f"v_mul_u32_u24 v{T[3]}, 3, v{u3}")
        e(f"v_sub_u32 v{T[3]}, v{u}, v{T[3]}")
        e(f"v_lshlrev_b32 v{T[3]}, 6, v{T[3]}")
        e(f"v_lshl_add_u32 v{T[3]}, v{u3}, 3, v{T[3]}")
        e(f"v_add_u32 v{T[3]}, s{sT0}, v{T[3]}")
        e(f"v_mul_u32_u24 v{g_}, 1280, v{T[3]}")
        e(f"v_lshl_add_u32 v{g_}, v{cb}, 4, v{g_}")
        e(f"v_add_u32 v{g_}, s{sT1}, v{g_}")
        e(f"v_lshrrev_b32 v{T[3]}, 1, v{cb}")
        e(f"v_mul_u32_u24 v{T[3]}, 6, v{T[3]}")
        e(f"v_lshrrev_b32 v{u3}, 2, v{u}")
        e(f"v_add_u32 v{T[3]}, v{T[3]}, v{u3}")
        e(f"v_lshlrev_b32 v{l_}, 10, v{T[3]}")
        e(f"v_and_b32 v{u3}, 3, v{u}")
        e(f"v_lshl_add_u32 v{l_}, v{u3}, 8, v{l_}")
        e(f"v_and_b32 v{u3}, 1, v{cb}")
        e(f"v_lshl_add_u32 v{l_}, v{u3}, 7, v{l_}")
        e(f"v_add_u32 v{l_}, s{sRS}, v{l_}")
    e(f"s_lshl_b32 s{sT0}, s{sXG}, 2")
    e(f"s_add_u32 s{sT0}, s{sT0}, s{sW}")
    e(f"s_mul_i32 s{sT0}, s{sT0}, 192")
    e(f"s_lshl_b32 s{sT1}, s{sCS}, 6")
    wo_addr(gA, lA, 0); wo_addr(gB, lB, 16)
    e(f"s_movk_i32 s{sT2}, 64"); e(f"s_movk_i32 s{sT3}, 32")
    if skipw & 1:
        e(f"v_mov_b32 v{gA}, 0x7f000000"); e(f"v_mov_b32 v{gB}, 0x7f000000")
    e(f"s_movk_i32 s{sOFF}, 1280")
    e("s_branch L_wadr_done")
    A.label("L_wadr_mlp"); A.fence()
    e(f"v_lshrrev_b32 v{T[0]}, 1, v{VLANE}")
    e(f"s_mul_i32 s{sT0}, s{sW}, 20")
    e(f"v_add_u32 v{T[0]}, s{sT0}, v{T[0]}")
    e(f"v_mul_u32_u24 v{gA}, 24576, v{T[0]}")
    e(f"v_and_b32 v{T[1]}, 1, v{VLANE}")
    e(f"v_lshl_add_u32 v{gA}, v{T[1]}, 4, v{gA}")
    e(f"s_lshl_b32 s{sT0}, s{sF0}, 1")
    e(f"v_add_u32 v{gA}, s{sT0}, v{gA}")
    e(f"v_lshlrev_b32 v{lA}, 7, v{VLANE}")
    e(f"v_add_u32 v{lA}, s{sRS}, v{lA}")
    e(f"v_cmp_le_u32 vcc, 20, v{VLANE}")
    e(f"v_cndmask_b32 v{T[0]}, 0, 1, vcc")
    e(f"v_mul_u32_u24 v{T[1]}, 20, v{T[0]}")
    e(f"v_sub_u32 v{T[1]}, v{VLANE}, v{T[1]}")
    e(f"v_mul_u32_u24 v{gB}, 10240, v{T[0]}")
    e(f"v_lshl_add_u32 v{gB}, v{T[1]}, 4, v{gB}")
    e(f"s_mul_i32 s{sT0}, s{sF0}, 1280")
    e(f"s_mul_i32 s{sT1}, s{sW}, 320")
    e(f"s_add_u32 s{sT0}, s{sT0}, s{sT1}")
    e(f"v_add_u32 v{gB}, s{sT0}, v{gB}")
    e(f"v_lshrrev_b32 v{lB}, 1, v{T[1]}")
    e(f"v_lshlrev_b32 v{lB}, 9, v{lB}")
    e(f"v_lshl_add_u32 v{lB}, v{T[0]}, 8, v{lB}")
    e(f"v_and_b32 v{T[1]}, 1, v{T[1]}")
    e(f"v_lshl_add_u32 v{lB}, v{T[1]}, 7, v{lB}")
    e(f"s_add_u32 s{sT0}, s{sRS}, 6144")
    e(f"v_add_u32 v{lB}, s{sT0}, v{lB}")
    e(f"s_movk_i32 s{sT2}, 40"); e(f"s_movk_i32 s{sT3}, 40")
    if skipw & 2: e(f"v_mov_b32 v{gA}, 0x7f000000")
    if skipw & 4: e(f"v_mov_b32 v{gB}, 0x7f000000")
    e(f"s_movk_i32 s{sOFF}, 3072")
    if late:
        for i, r_ in enumerate((gA, gB, lA, lB)): e(f"v_mov_b32 v{124+i}, v{r_}")
        e("s_branch L_stage_done")
    A.label("L_wadr_done"); A.fence()
    for rnd, (g_, l_, sN, sr) in enumerate(((gA, lA, sT2, SRD_WA), (gB, lB, sT3, SRD_WB))):
        e(f"v_cmp_gt_u32 vcc, s{sN}, v{VLANE}")
        e("s_mov_b64 exec, vcc")
        for kk in range(8):
            if kk == 0: so = "0"
            else:
                if rnd == 0: e(f"s_mul_i32 s{sT0}, s{sOFF}, {kk}")
                else: e(f"s_movk_i32 s{sT0}, {1280*kk}")
                so = f"s{sT0}"
            e(f"buffer_load_dwordx4 v[{WB_+4*kk}:{WB_+4*kk+3}], v{g_}, {srd(sr)}, {so} offen {wflags}")
            if wpace == 1 and kk % 2 == 1 and kk < 7: e("s_waitcnt vmcnt(1)")
            if wpace == 2 and kk < 7: e("s_waitcnt vmcnt(0)")
            if wpace == 3 and kk < 7:
                e("s_waitcnt vmcnt(0)"); e("s_sleep 16")
        e("s_waitcnt vmcnt(0)")
        for i in range(4):
            tb = WB_ + 32 + 8*i
            for kp in range(4):
                e(f"v_perm_b32 v{tb+kp}, v{WB_+4*(2*kp+1)+i}, v{WB_+4*(2*kp)+i}, s{sPLO}")
                e(f"v_perm_b32 v{tb+4+kp}, v{WB_+4*(2*kp+1)+i}, v{WB_+4*(2*kp)+i}, s{sPHI}")
            e(f"ds_write_b128 v{l_}, v[{tb}:{tb+3}] offset:{32*i}")
            e(f"ds_write_b128 v{l_}, v[{tb+4}:{tb+7}] offset:{32*i+16}")
        e("s_mov_b64 exec, -1")
        e("s_waitcnt lgkmcnt(0)")
    A.label("L_stage_done"); A.fence()
    if hstop == 4:
        e("s_waitcnt vmcnt(0) lgkmcnt(0)"); e("s_endpgm")
    e(f"s_cmp_lg_u32 s{sW}, 0")
    e("s_cbranch_scc1 L_ml_skip")
    e(f"v_lshlrev_b32 v{VA[5]}, 10, v{VC}")
    for b_ in range(2):
        spin_begin(f"L_ml1{b_}_spin")
        e(f"ds_read_b128 v[{T[0]}:{T[3]}], v{VZERO} offset:{L_ML + 32*b_}")
        e(f"ds_read_b128 v[{T[4]}:{T[7]}], v{VZERO} offset:{L_ML + 32*b_ + 16}")
        e(f"ds_read_b32 v{T[8]}, v{VZERO} offset:{L_CTL+20}")
        e("s_waitcnt lgkmcnt(0)")
        if b_ == 1: e(f"v_subrev_u32 v{T[8]}, 1, v{T[8]}")
        sentinel_check(rng(T[0], 9), T[9])
        spin_end(f"L_ml1{b_}_spin", f"L_ml1{b_}_done", slp=32)
        mw = [T[0], T[2], T[4], T[6]]; lw = [T[1], T[3], T[5], T[7]]; tmp = [T[10], T[11], T[12], T[13]]
        e(f"v_max3_f32 v{T[8]}, v{mw[0]}, v{mw[1]}, v{mw[2]}")
        e(f"v_max_f32 v{T[8]}, v{T[8]}, v{mw[3]}")
        for i in range(4):
            e(f"v_sub_f32 v{tmp[i]}, v{mw[i]}, v{T[8]}")
            e(f"v_mul_f32 v{tmp[i]}, {LOG2E}, v{tmp[i]}")
            e(f"v_exp_f32 v{tmp[i]}, v{tmp[i]}")
        e(f"v_mul_f32 v{T[9]}, v{tmp[0]}, v{lw[0]}")
        for i in range(1, 4): e(f"v_fmac_f32 v{T[9]}, v{tmp[i]}, v{lw[i]}")
        e(f"s_lshl_b32 s{sT0}, s{sLID}, 10")
        e(f"s_add_u32 s{sT0}, s{sT0}, {768 + 8*b_}")
        e("s_mov_b64 exec, 1")
        e(f"buffer_store_dwordx2 v[{T[8]}:{T[9]}], v{VZERO}, {srd(SRD_WS)}, s{sT0} offen sc1")
        e("s_mov_b64 exec, -1")
        e(f"s_lshl_b32 s{sT0}, s{sH}, 13")
        e(f"s_add_u32 s{sT0}, s{sT0}, {768 + 8*b_}")
        e("s_sleep 64")
        spin_begin(f"L_ml2{b_}_spin")
        e("s_mov_b64 exec, 0xff")
        e(f"buffer_load_dwordx2 v[{T[8]}:{T[9]}], v{VA[5]}, {srd(SRD_WS)}, s{sT0} offen sc1")
        e("s_waitcnt vmcnt(0)")
        e(f"v_max_u32 v{T[10]}, v{T[8]}, v{T[9]}")
        e(f"v_cmp_eq_u32 vcc, -1, v{T[10]}")
        spin_end(f"L_ml2{b_}_spin", f"L_ml2{b_}_done", slp=mlsleep)
        e(f"v_mov_b32 v{T[10]}, v{T[8]}")
        for ctl in ("quad_perm:[1,0,3,2]", "quad_perm:[2,3,0,1]", "row_half_mirror"):
            e(f"v_max_f32_dpp v{T[10]}, v{T[10]}, v{T[10]} {ctl} row_mask:0xf bank_mask:0xf")
        e(f"v_sub_f32 v{T[8]}, v{T[8]}, v{T[10]}")
        e(f"v_mul_f32 v{T[8]}, {LOG2E}, v{T[8]}")
        e(f"v_exp_f32 v{T[8]}, v{T[8]}")
        e(f"v_mul_f32 v{T[9]}, v{T[9]}, v{T[8]}")
        for ctl in ("quad_perm:[1,0,3,2]", "quad_perm:[2,3,0,1]", "row_half_mirror"):
            e(f"v_add_f32_dpp v{T[9]}, v{T[9]}, v{T[9]} {ctl} row_mask:0xf bank_mask:0xf")
        e(f"v_rcp_f32 v{T[9]}, v{T[9]}")
        for i in range(4):
            e(f"v_sub_f32 v{T[12+i]}, v{mw[i]}, v{T[10]}")
            e(f"v_mul_f32 v{T[12+i]}, {LOG2E}, v{T[12+i]}")
            e(f"v_exp_f32 v{T[12+i]}, v{T[12+i]}")
            e(f"v_mul_f32 v{T[12+i]}, v{T[12+i]}, v{T[9]}")
            e(f"v_min_u32 v{T[12+i]}, -2, v{T[12+i]}")
        e("s_mov_b64 exec, 1")
        e(f"ds_write_b128 v{VZERO}, v[{T[12]}:{T[15]}] offset:{L_F + 16*b_}")
        e("s_mov_b64 exec, -1")
    A.label("L_ml_skip"); A.fence()
    if hstop == 5:
        e("s_waitcnt vmcnt(0) lgkmcnt(0)"); e("s_endpgm")
    i_, g4 = VA[0], VA[1]
    e(f"v_and_b32 v{i_}, 15, v{VLANE}")
    e(f"v_lshrrev_b32 v{g4}, 4, v{VLANE}")
    e(f"v_add_u32 v{T[0]}, s{sRS}, v{VL16}")
    if dry:
        e(f"s_mov_b32 s{sDRY}, 1"); e(f"s_mov_b32 s{sOOB}, {OOB}"); e(f"s_mov_b32 s{sLIM}, 1")
    def barrier(lbl):
        if dry:
            e(f"s_cmp_lg_u32 s{sDRY}, 0")
            e(f"s_cbranch_scc1 {lbl}")
        e("s_barrier")
        if dry:
            A.label(lbl); A.fence()
    def wait_progress(lbl):
        e(f"s_mov_b32 s{sDRY}, 0"); e(f"s_mov_b32 s{sOOB}, 0"); e(f"s_mov_b32 s{sLIM}, {spin_limit}")
        e("s_mov_b64 exec, -1")
        e("s_waitcnt vmcnt(0) lgkmcnt(0)")
        spin_begin(lbl)
        e(f"ds_read_b32 v{T[0]}, v{VZERO} offset:{L_CTL+12}")
        e("s_waitcnt lgkmcnt(0)")
        e(f"v_cmp_eq_u32 vcc, 0, v{T[0]}")
        spin_end(lbl, lbl + "_done", slp=2)
    e(f"s_cmp_ge_u32 s{sMEM}, 5")
    e("s_cbranch_scc1 L_mlp")
    for f in range(12):
        e(f"ds_read_b128 v[{FRG+4*f}:{FRG+4*f+3}], v{T[0]} offset:{f*1024}")
    VOW, VBA, VYW, VM = VA[2], VA[3], VA[5], 96
    e(f"s_mul_i32 s{sT1}, s{sW}, 768")
    e(f"v_lshlrev_b32 v{VOW}, 3, v{VLANE}")
    e(f"v_add_u32 v{VOW}, s{sT1}, v{VOW}")
    e(f"v_and_b32 v{T[1]}, 1, v{i_}")
    e(f"v_mul_u32_u24 v{VBA}, 384, v{T[1]}")
    e(f"v_lshl_add_u32 v{VBA}, v{g4}, 4, v{VBA}")
    e(f"v_add_u32 v{VBA}, s{sT1}, v{VBA}")
    e(f"v_lshlrev_b32 v{VYW}, 7, v{T[1]}")
    e(f"v_lshl_add_u32 v{VYW}, v{g4}, 4, v{VYW}")
    e(f"s_lshl_b32 s{sT1}, s{sW}, 8")
    e(f"v_add_u32 v{VYW}, s{sT1}, v{VYW}")
    e(f"v_mov_b32 v{VM}, 768")
    col, VOUT, VXH, VYS = 97, 98, 99, 100
    e(f"v_and_b32 v{col}, 1, v{VLANE}")
    e(f"v_lshlrev_b32 v{col}, 2, v{col}")
    e(f"v_lshrrev_b32 v{T[1]}, 5, v{VLANE}")
    e(f"v_lshl_add_u32 v{col}, v{T[1]}, 1, v{col}")
    e(f"v_bfe_u32 v{T[1]}, v{VLANE}, 4, 1")
    e(f"v_add_u32 v{col}, v{col}, v{T[1]}")
    e(f"s_lshl_b32 s{sT0}, s{sR}, 3")
    e(f"v_add_u32 v{col}, s{sT0}, v{col}")
    e(f"v_lshlrev_b32 v{VOUT}, 1, v{col}")
    e(f"buffer_load_ushort v{VXH}, v{VOUT}, {srd(SRD_X)}, 0 offen")
    e(f"v_bfe_u32 v{T[3]}, v{VLANE}, 1, 3")
    e(f"v_mul_u32_u24 v{VYS}, 5120, v{T[3]}")
    e(f"v_lshl_add_u32 v{VYS}, v{col}, 2, v{VYS}")
    e(f"v_cmp_ne_u32 vcc, 0, v{T[3]}")
    e(f"v_mov_b32 v{T[3]}, {OOB}")
    e("s_waitcnt vmcnt(0) lgkmcnt(0)")
    e(f"v_cndmask_b32 v{VOUT}, v{VOUT}, v{T[3]}, vcc")
    e(f"v_lshlrev_b32 v{VXH}, 16, v{VXH}")
    PO = 32
    e(f"s_lshl_b32 s{sT0}, s{sXG}, 2")
    e(f"s_add_u32 s{sT0}, s{sT0}, s{sW}")
    e(f"s_lshl_b32 s{sOFF}, s{sT0}, 13")
    def a_loads(base):
        for s_ in range(8):
            so = sT0 if s_ < 4 else sT1
            e(f"buffer_load_dwordx4 v[{base+4*s_}:{base+4*s_+3}], v{VA[4]}, {srd(SRD_WS)}, s{so} offen offset:{1024*(s_&3)} sc1")
    def a_cons(base):
        o = T[8]
        for st in (1, 2, 4):
            for k in range(0, 8, 2*st):
                for i in (0, 2):
                    a_, b2 = base+4*k+i, base+4*(k+st)+i
                    d_ = o + i if st == 4 else a_
                    e(f"v_pk_add_f32 v[{d_}:{d_+1}], v[{a_}:{a_+1}], v[{b2}:{b2+1}]")
    def a_write(b_):
        e(f"v_cvt_pk_bf16_f32 v{T[4]}, v{T[8]}, v{T[9]}")
        e(f"v_cvt_pk_bf16_f32 v{T[5]}, v{T[10]}, v{T[11]}")
        e("s_mov_b32 exec_hi, 0xffff")
        e(f"ds_write_b64 v{VOW}, v[{T[4]}:{T[5]}] offset:{L_OB + 384*b_}")
        e("s_mov_b64 exec, -1")
    spin_begin("L_mid_spin")
    e(f"ds_read_b32 v{T[0]}, v{VZERO} offset:{L_F+16}")
    e(f"ds_read_b32 v{T[1]}, v{VZERO} offset:{L_CTL+8}")
    e("s_waitcnt lgkmcnt(0)")
    e(f"v_subrev_u32 v{T[1]}, 1, v{T[1]}")
    e(f"v_max_u32 v{T[0]}, v{T[0]}, v{T[1]}")
    e(f"v_cmp_eq_u32 vcc, -1, v{T[0]}")
    spin_end("L_mid_spin", "L_mid_done", slp=32)
    e(f"v_lshlrev_b32 v{T[2]}, 10, v{VC}")
    e(f"s_add_u32 s{sT0}, s{sOFF}, 776")
    spin_begin("L_p0_spin")
    e("s_mov_b64 exec, 0xff")
    e(f"buffer_load_dword v{T[0]}, v{T[2]}, {srd(SRD_WS)}, s{sT0} offen sc1")
    e("s_waitcnt vmcnt(0)")
    e(f"v_cmp_eq_u32 vcc, -1, v{T[0]}")
    spin_end("L_p0_spin", "L_p0_done", slp=mlsleep)
    e("s_mov_b64 exec, -1")
    if early0:
        e(f"s_add_u32 s{sT0}, s{sOFF}, {WS_P0}")
        e(f"s_add_u32 s{sT1}, s{sT0}, 4096")
        a_loads(PO)
        e("s_waitcnt vmcnt(0)")
        a_cons(PO); a_write(0)
        e(f"s_mov_b32 s{sT0}, s{sOFF}")
        e(f"s_add_u32 s{sT1}, s{sT0}, 4096")
        wait_progress("L_wo_wait0")
    else:
        e(f"s_add_u32 s{sT0}, s{sOFF}, {WS_P0}")
        e(f"s_add_u32 s{sT1}, s{sT0}, 4096")
        wait_progress("L_wo_wait0")
        a_loads(208)
        e(f"s_mov_b32 s{sT0}, s{sOFF}")
        e(f"s_add_u32 s{sT1}, s{sT0}, 4096")
        a_loads(PO)
        e("s_waitcnt vmcnt(8)")
        a_cons(208); a_write(0)
        e("s_waitcnt vmcnt(0)")
        a_cons(PO)
        e(f"v_pk_add_f32 v[{T[0]}:{T[1]}], v[{T[8]}:{T[9]}], v[{T[10]}:{T[11]}]")
        e(f"v_cmp_u_f32 vcc, v{T[0]}, v{T[1]}")
        e("s_cbranch_vccz L_a_ok")
    poll("a", a_loads, PO, a_cons, rng(T[8], 4), T[0])
    a_write(1)
    BF = 180
    for ks in range(6):
        e(f"ds_read_b128 v[{BF+4*ks}:{BF+4*ks+3}], v{VBA} offset:{L_OB + 64*ks}")
    D0, D1 = T[8], T[12]
    for ks in range(6):
        e(f"s_waitcnt lgkmcnt({5-ks})")
        for tl, D in ((0, D0), (1, D1)):
            c = "0" if ks == 0 else f"v[{D}:{D+3}]"
            f = FRG + 4*(6*tl + ks)
            e(f"v_mfma_f32_16x16x32_bf16 v[{D}:{D+3}], v[{f}:{f+3}], v[{BF+4*ks}:{BF+4*ks+3}], {c}")
    e("s_mov_b32 exec_lo, 0x00030003")
    e("s_mov_b32 exec_hi, 0x00030003")
    e(f"ds_write_b128 v{VYW}, v[{D0}:{D0+3}] offset:{L_YR}")
    e(f"ds_write_b128 v{VYW}, v[{D1}:{D1+3}] offset:{L_YR+64}")
    e("s_mov_b64 exec, -1")
    e("s_waitcnt lgkmcnt(0)")
    barrier("L_bar1")
    e(f"s_cmp_lg_u32 s{sW}, 0")
    e("s_cbranch_scc1 L_wo_exit")
    e(f"v_lshlrev_b32 v{T[0]}, 4, v{i_}")
    YS = 64
    for hh_ in range(4):
        e(f"ds_read_b128 v[{YS+4*hh_}:{YS+4*hh_+3}], v{T[0]} offset:{L_YR + 256*hh_}")
    e("s_waitcnt lgkmcnt(0)")
    for i in (0, 2):
        e(f"v_pk_add_f32 v[{YS+i}:{YS+i+1}], v[{YS+i}:{YS+i+1}], v[{YS+4+i}:{YS+4+i+1}]")
        e(f"v_pk_add_f32 v[{YS+8+i}:{YS+8+i+1}], v[{YS+8+i}:{YS+8+i+1}], v[{YS+12+i}:{YS+12+i+1}]")
    for i in (0, 2): e(f"v_pk_add_f32 v[{YS+i}:{YS+i+1}], v[{YS+i}:{YS+i+1}], v[{YS+8+i}:{YS+8+i+1}]")
    e(f"buffer_store_dwordx4 v[{YS}:{YS+3}], v{VYA}, {srd(SRD_WS)}, s{sOOB} offen sc1")
    stamp()
    Yr = 80
    e(f"s_mov_b32 s{sT0}, {WS_Y}")
    spin_begin("L_b_spin")
    e(f"buffer_load_dword v{Yr}, v{VYS}, {srd(SRD_WS)}, s{sT0} offen sc1")
    e("s_waitcnt vmcnt(0)")
    e(f"v_cmp_eq_u32 vcc, -1, v{Yr}")
    spin_end("L_b_spin", "L_b_done", slp=sl["b"])
    e(f"v_add_f32_dpp v{Yr}, v{Yr}, v{Yr} quad_perm:[2,3,0,1] row_mask:0xf bank_mask:0xf")
    e(f"v_mov_b32 v{T[6]}, v{Yr}")
    e(f"v_add_f32_dpp v{Yr}, v{T[6]}, v{T[6]} row_shr:4 row_mask:0xf bank_mask:0xa")
    e(f"v_add_f32_dpp v{Yr}, v{T[6]}, v{T[6]} row_shl:4 row_mask:0xf bank_mask:0x5")
    e(f"v_add_f32_dpp v{Yr}, v{Yr}, v{Yr} row_ror:8 row_mask:0xf bank_mask:0xf")
    bf16r(Yr)
    e(f"v_add_f32 v{Yr}, v{VXH}, v{Yr}")
    bf16r(Yr)
    stamp()
    Zr = 84
    e(f"s_mul_i32 s{sT0}, s{sR}, 3072")
    e(f"s_add_u32 s{sT0}, s{sT0}, {WS_Z}")
    def c_loads(base):
        for i in range(3):
            e(f"buffer_load_dwordx4 v[{base+4*i}:{base+4*i+3}], v{VL16}, {srd(SRD_WS)}, s{sT0} offen offset:{1024*i} sc1")
    def c_cons(base):
        for i in (0, 2):
            e(f"v_pk_add_f32 v[{Zr+i}:{Zr+i+1}], v[{base+i}:{base+i+1}], v[{base+4+i}:{base+4+i+1}]")
            e(f"v_pk_add_f32 v[{Zr+i}:{Zr+i+1}], v[{Zr+i}:{Zr+i+1}], v[{base+8+i}:{base+8+i+1}]")
    poll("c", c_loads, 32, c_cons, rng(Zr, 4), T[0])
    y = Zr
    e(f"v_permlane32_swap_b32 v{y}, v{y+2}")
    e(f"v_permlane32_swap_b32 v{y+1}, v{y+3}")
    e(f"v_add_f32 v{y}, v{y}, v{y+2}")
    e(f"v_add_f32 v{y+1}, v{y+1}, v{y+3}")
    e(f"v_permlane16_swap_b32 v{y}, v{y+1}")
    e(f"v_add_f32 v{y}, v{y}, v{y+1}")
    for k in (8, 4, 2):
        e(f"v_add_f32_dpp v{y}, v{y}, v{y} row_ror:{k} row_mask:0xf bank_mask:0xf")
    bf16r(y)
    e(f"v_add_f32 v{y}, v{y}, v{Yr}")
    e(f"v_cvt_pk_bf16_f32 v{y}, v{y}, v{y}")
    e(f"buffer_store_short v{y}, v{VOUT}, {srd(SRD_OUT)}, s{sOOB} offen")
    stamp()
    A.label("L_wo_exit"); A.fence()
    if dry:
        e(f"s_cmp_eq_u32 s{sDRY}, 0")
        e("s_cbranch_scc1 L_fin")
        wait_progress("L_wo_wait")
        e("s_branch L_wo_tail")
    else:
        e("s_branch L_fin")
    A.label("L_mlp"); A.fence()
    nstamp[0] = 1
    F1 = FRG; F2 = FRG + 24
    VF1, VF2 = 176, 177
    e(f"v_mov_b32 v{VF1}, v{T[0]}")
    e(f"v_lshrrev_b32 v{VF2}, 1, v{g4}")
    e(f"v_lshlrev_b32 v{VF2}, 8, v{VF2}")
    e(f"v_lshl_add_u32 v{VF2}, v{i_}, 4, v{VF2}")
    e(f"v_and_b32 v{T[4]}, 1, v{g4}")
    e(f"v_lshl_add_u32 v{VF2}, v{T[4]}, 3, v{VF2}")
    e(f"v_add_u32 v{VF2}, s{sRS}, v{VF2}")
    def frag_reads():
        for ks in range(5):
            e(f"ds_read_b128 v[{F1+4*ks}:{F1+4*ks+3}], v{VF1} offset:{ks*1024}")
        for tt in range(10):
            e(f"ds_read_b64 v[{F2+2*tt}:{F2+2*tt+1}], v{VF2} offset:{6144 + tt*512}")
    if not late: frag_reads()
    VGA, VLW, VLR, VZA, VHR, VDW, VDR = VA[2], VA[3], VA[5], 96, 97, 98, 99
    XH = 100
    e(f"s_mul_i32 s{sT0}, s{sW}, 640")
    e(f"v_add_u32 v{VGA}, s{sT0}, v{VL16}")
    e(f"v_cmp_gt_u32 vcc, 40, v{VLANE}")
    e(f"v_mov_b32 v{T[1]}, {OOB}")
    e(f"v_cndmask_b32 v{VGA}, v{T[1]}, v{VGA}, vcc")
    e(f"v_cmp_eq_u32 vcc, 40, v{VLANE}")
    e(f"v_cndmask_b32 v{VGA}, v{VGA}, v{VZERO}, vcc")
    e(f"v_lshrrev_b32 v{T[1]}, 1, v{VGA}")
    e(f"buffer_load_dwordx2 v[{T[8]}:{T[9]}], v{T[1]}, {srd(SRD_X)}, 0 offen")
    e(f"buffer_load_dwordx2 v[{T[10]}:{T[11]}], v{T[1]}, {srd(SRD_X)}, 0 offen offset:1280")
    e(f"s_mul_i32 s{sT0}, s{sW}, 640")
    e(f"s_add_u32 s{sT0}, s{sT0}, {L_LN}")
    e(f"v_lshlrev_b32 v{VLW}, 3, v{VLANE}")
    e(f"v_add_u32 v{VLW}, s{sT0}, v{VLW}")
    e(f"v_and_b32 v{T[4]}, 1, v{i_}")
    e(f"v_mul_u32_u24 v{VLR}, 320, v{T[4]}")
    e(f"v_lshl_add_u32 v{VLR}, v{g4}, 4, v{VLR}")
    e(f"v_add_u32 v{VLR}, s{sT0}, v{VLR}")
    e(f"v_lshlrev_b32 v{VDR}, 6, v{T[4]}")
    e(f"v_lshl_add_u32 v{VDR}, v{g4}, 4, v{VDR}")
    e(f"s_lshl_b32 s{sT0}, s{sW}, 7")
    e(f"v_add_u32 v{VDW}, s{sT0}, v{VDR}")
    e(f"v_mul_u32_u24 v{VZA}, 80, v{i_}")
    e(f"v_lshrrev_b32 v{T[4]}, 1, v{g4}")
    e(f"v_add_u32 v{VZA}, v{VZA}, v{T[4]}")
    e(f"s_mul_i32 s{sT0}, s{sW}, 20")
    e(f"v_add_u32 v{VZA}, s{sT0}, v{VZA}")
    e(f"v_mul_u32_u24 v{VZA}, 3072, v{VZA}")
    e(f"v_and_b32 v{T[4]}, 1, v{g4}")
    e(f"v_lshl_add_u32 v{VZA}, v{T[4]}, 4, v{VZA}")
    e(f"s_lshl_b32 s{sT0}, s{sF0}, 1")
    e(f"s_add_u32 s{sT0}, s{sT0}, {WS_Z}")
    e(f"v_add_u32 v{VZA}, s{sT0}, v{VZA}")
    e(f"v_cmp_lt_u32 vcc, 1, v{i_}")
    e(f"v_mov_b32 v{T[4]}, {OOB}")
    e(f"v_cndmask_b32 v{VZA}, v{VZA}, v{T[4]}, vcc")
    e(f"v_lshlrev_b32 v{VHR}, 2, v{g4}")
    e(f"s_lshl_b32 s{sT0}, s{sW}, 4")
    e(f"v_add_u32 v{VHR}, s{sT0}, v{VHR}")
    e("s_waitcnt vmcnt(0) lgkmcnt(0)")
    for i in range(4):
        e(f"v_lshlrev_b32 v{XH+2*i}, 16, v{T[8+i]}")
        e(f"v_and_b32 v{XH+2*i+1}, s{sMASK}, v{T[8+i]}")
    spin_begin("L_mid2_spin")
    e(f"ds_read_b32 v{T[0]}, v{VZERO} offset:{L_F+16}")
    e("s_waitcnt lgkmcnt(0)")
    e(f"v_cmp_eq_u32 vcc, -1, v{T[0]}")
    spin_end("L_mid2_spin", "L_mid2_done", slp=32)
    if late:
        spin_begin("L_late_spin")
        e(f"ds_read_b32 v{T[0]}, v{VZERO} offset:{L_CTL + (12 if latet >= 32 else 24)}")
        e("s_waitcnt lgkmcnt(0)")
        e(f"v_cmp_eq_u32 vcc, 0, v{T[0]}")
        spin_end("L_late_spin", "L_late_done", slp=2)
        e("s_mov_b32 exec_hi, 0xff")
        for rnd, (g_, sr, rs) in enumerate(((124, SRD_WA, 3072), (125, SRD_WB, 1280))):
            for kk in range(8):
                if kk: e(f"s_movk_i32 s{sT0}, {rs*kk}")
                d = 32 + 32*rnd + 4*kk
                e(f"buffer_load_dwordx4 v[{d}:{d+3}], v{g_}, {srd(sr)}, {'s%d' % sT0 if kk else '0'} offen {wflags}")
        for rnd in range(2):
            e(f"s_waitcnt vmcnt({8 - 8*rnd})")
            wb = 32 + 32*rnd
            for i in range(4):
                tb = 192 + 32*rnd + 8*i
                for kp in range(4):
                    e(f"v_perm_b32 v{tb+kp}, v{wb+4*(2*kp+1)+i}, v{wb+4*(2*kp)+i}, s{sPLO}")
                    e(f"v_perm_b32 v{tb+4+kp}, v{wb+4*(2*kp+1)+i}, v{wb+4*(2*kp)+i}, s{sPHI}")
                e(f"ds_write_b128 v{126+rnd}, v[{tb}:{tb+3}] offset:{32*i}")
                e(f"ds_write_b128 v{126+rnd}, v[{tb+4}:{tb+7}] offset:{32*i+16}")
            e("s_waitcnt lgkmcnt(0)")
        e("s_mov_b64 exec, -1")
        frag_reads()
    wait_progress("L_mlp_wait0")
    A.label("L_mlp_tail"); A.fence()
    YB = 108
    GA, GB = 32, 192
    def h_loads(base):
        for x in range(8):
            e(f"s_mov_b32 s{sT0}, {WS_Y + 5120*x}")
            for b_ in range(2):
                d = base + 8*x + 4*b_
                e(f"buffer_load_dwordx4 v[{d}:{d+3}], v{VGA}, {srd(SRD_WS)}, s{sT0} offen offset:{2560*b_} sc1")
    def h_cons(base):
        for st in (1, 2, 4):
            for x in range(0, 8, 2*st):
                for i in range(0, 8, 2):
                    a_, b2 = base+8*x+i, base+8*(x+st)+i
                    d_ = YB + i if st == 4 else a_
                    e(f"v_pk_add_f32 v[{d_}:{d_+1}], v[{a_}:{a_+1}], v[{b2}:{b2+1}]")
    poll("h", h_loads, GA, h_cons, rng(YB, 8), T[0])
    stamp()
    for i in range(0, 8, 2):
        e(f"v_cvt_pk_bf16_f32 v{YB+i+1}, v{YB+i}, v{YB+i+1}")
        e(f"v_lshlrev_b32 v{YB+i}, 16, v{YB+i+1}")
        e(f"v_and_b32 v{YB+i+1}, s{sMASK}, v{YB+i+1}")
        e(f"v_pk_add_f32 v[{YB+i}:{YB+i+1}], v[{YB+i}:{YB+i+1}], v[{XH+i}:{XH+i+1}]")
        e(f"v_cvt_pk_bf16_f32 v{YB+i+1}, v{YB+i}, v{YB+i+1}")
        e(f"v_lshlrev_b32 v{YB+i}, 16, v{YB+i+1}")
        e(f"v_and_b32 v{YB+i+1}, s{sMASK}, v{YB+i+1}")
    e(f"v_readlane_b32 s{sT2}, v{YB}, 40")
    e(f"v_readlane_b32 s{sT3}, v{YB+4}, 40")
    S1 = [T[4], T[5]]; S2 = [T[6], T[7]]; DD = 48
    for r_ in S1 + S2: e(f"v_mov_b32 v{r_}, 0")
    e("s_mov_b32 exec_lo, -1"); e("s_mov_b32 exec_hi, 0xff")
    for b_ in range(2):
        for i in range(4): e(f"v_subrev_f32 v{DD+4*b_+i}, s{sT2+b_}, v{YB+4*b_+i}")
    for b_ in range(2):
        d = DD + 4*b_
        e(f"v_add_f32 v{S1[b_]}, v{d}, v{d+1}")
        e(f"v_mul_f32 v{S2[b_]}, v{d}, v{d}")
    for b_ in range(2):
        d = DD + 4*b_
        e(f"v_add_f32 v{S1[b_]}, v{S1[b_]}, v{d+2}")
        e(f"v_fmac_f32 v{S2[b_]}, v{d+1}, v{d+1}")
    for b_ in range(2):
        d = DD + 4*b_
        e(f"v_add_f32 v{S1[b_]}, v{S1[b_]}, v{d+3}")
        e(f"v_fmac_f32 v{S2[b_]}, v{d+2}, v{d+2}")
    for b_ in range(2): e(f"v_fmac_f32 v{S2[b_]}, v{DD+4*b_+3}, v{DD+4*b_+3}")
    e("s_mov_b64 exec, -1")
    e(f"v_permlane32_swap_b32 v{S1[0]}, v{S2[0]}")
    e(f"v_permlane32_swap_b32 v{S1[1]}, v{S2[1]}")
    e(f"v_add_f32 v{S1[0]}, v{S1[0]}, v{S2[0]}")
    e(f"v_add_f32 v{S1[1]}, v{S1[1]}, v{S2[1]}")
    e(f"v_permlane16_swap_b32 v{S1[0]}, v{S1[1]}")
    e(f"v_add_f32 v{S1[0]}, v{S1[0]}, v{S1[1]}")
    for ctl in ("quad_perm:[1,0,3,2]", "quad_perm:[2,3,0,1]", "row_half_mirror", "row_mirror"):
        e(f"v_add_f32_dpp v{S1[0]}, v{S1[0]}, v{S1[0]} {ctl} row_mask:0xf bank_mask:0xf")
    e("s_mov_b32 exec_lo, 0x00010001"); e("s_mov_b32 exec_hi, 0x00010001")
    e(f"ds_write_b32 v{VHR}, v{S1[0]} offset:{L_H}")
    e("s_mov_b64 exec, -1")
    e("s_waitcnt lgkmcnt(0)")
    barrier("L_bar2")
    for w in range(4):
        e(f"ds_read_b128 v[{DD+4*w}:{DD+4*w+3}], v{VZERO} offset:{L_H + 16*w}")
    e(f"v_mov_b32 v{T[8]}, s{sT2}")
    e(f"v_mov_b32 v{T[9]}, s{sT3}")
    e(f"s_mov_b32 s{sT0}, {hex(f32(1.0/640))}")
    e(f"v_mov_b32 v{T[10]}, s{sT0}")
    e("s_waitcnt lgkmcnt(0)")
    for i in (0, 2):
        e(f"v_pk_add_f32 v[{DD+i}:{DD+i+1}], v[{DD+i}:{DD+i+1}], v[{DD+4+i}:{DD+4+i+1}]")
        e(f"v_pk_add_f32 v[{DD+8+i}:{DD+8+i+1}], v[{DD+8+i}:{DD+8+i+1}], v[{DD+12+i}:{DD+12+i+1}]")
    for i in (0, 2): e(f"v_pk_add_f32 v[{DD+i}:{DD+i+1}], v[{DD+i}:{DD+i+1}], v[{DD+8+i}:{DD+8+i+1}]")
    for i in (0, 2): e(f"v_pk_mul_f32 v[{DD+i}:{DD+i+1}], v[{DD+i}:{DD+i+1}], v[{T[10]}:{T[11]}] op_sel_hi:[1,0]")
    e(f"v_pk_add_f32 v[{T[0]}:{T[1]}], v[{DD}:{DD+1}], v[{T[8]}:{T[9]}] neg_lo:[1,1] neg_hi:[1,1]")
    e(f"v_pk_fma_f32 v[{T[2]}:{T[3]}], v[{DD}:{DD+1}], v[{DD}:{DD+1}], v[{DD+2}:{DD+3}] neg_lo:[1,0,0] neg_hi:[1,0,0]")
    def bf16r2(a_):
        e(f"v_cvt_pk_bf16_f32 v{a_+1}, v{a_}, v{a_+1}")
        e(f"v_lshlrev_b32 v{a_}, 16, v{a_+1}")
        e(f"v_and_b32 v{a_+1}, s{sMASK}, v{a_+1}")
    for i in range(2): e(f"v_max_f32 v{T[2+i]}, 0, v{T[2+i]}")
    bf16r2(T[2]); bf16r2(T[0])
    for i in range(2): e(f"v_add_f32 v{T[2+i]}, {hex(f32(1e-5))}, v{T[2+i]}")
    bf16r2(T[2])
    for i in range(2): e(f"v_sqrt_f32 v{T[2+i]}, v{T[2+i]}")
    bf16r2(T[2])
    for i in range(2): e(f"v_rcp_f32 v{T[2+i]}, v{T[2+i]}")
    for b_ in range(2):
        for i in range(2):
            norm_pair(YB + 4*b_ + 2*i, b_, dst=T[8 + 2*b_ + i])
    e(f"v_cmp_gt_u32 vcc, 40, v{VLANE}")
    e("s_mov_b64 exec, vcc")
    e(f"ds_write_b64 v{VLW}, v[{T[8]}:{T[9]}]")
    e(f"ds_write_b64 v{VLW}, v[{T[10]}:{T[11]}] offset:320")
    e("s_mov_b64 exec, -1")
    BF = 72
    for ks in range(5):
        e(f"ds_read_b128 v[{BF+4*ks}:{BF+4*ks+3}], v{VLR} offset:{64*ks}")
    D = T[8]
    for ks in range(5):
        e(f"s_waitcnt lgkmcnt({4-ks})")
        c = "0" if ks == 0 else f"v[{D}:{D+3}]"
        e(f"v_mfma_f32_16x16x32_bf16 v[{D}:{D+3}], v[{F1+4*ks}:{F1+4*ks+3}], v[{BF+4*ks}:{BF+4*ks+3}], {c}")
    e("s_mov_b32 exec_lo, 0x00030003")
    e("s_mov_b32 exec_hi, 0x00030003")
    e(f"ds_write_b128 v{VDW}, v[{D}:{D+3}] offset:{L_DX}")
    e("s_mov_b64 exec, -1")
    e("s_waitcnt lgkmcnt(0)")
    barrier("L_bar3")
    for w in range(4):
        e(f"ds_read_b128 v[{YB+4*w}:{YB+4*w+3}], v{VDR} offset:{L_DX + 128*w}")
    e("s_waitcnt lgkmcnt(0)")
    for i in (0, 2):
        e(f"v_pk_add_f32 v[{YB+i}:{YB+i+1}], v[{YB+i}:{YB+i+1}], v[{YB+4+i}:{YB+4+i+1}]")
        e(f"v_pk_add_f32 v[{YB+8+i}:{YB+8+i+1}], v[{YB+8+i}:{YB+8+i+1}], v[{YB+12+i}:{YB+12+i+1}]")
    for i in (0, 2): e(f"v_pk_add_f32 v[{YB+i}:{YB+i+1}], v[{YB+i}:{YB+i+1}], v[{YB+8+i}:{YB+8+i+1}]")
    D = YB
    for i in range(4): bf16r(D+i)
    for i in range(4): e(f"v_mul_f32 v{T[i]}, {hex(f32(-1.4426950408889634))}, v{D+i}")
    for i in range(4): e(f"v_exp_f32 v{T[i]}, v{T[i]}")
    for i in range(4): e(f"v_add_f32 v{T[i]}, 1.0, v{T[i]}")
    for i in range(4): e(f"v_rcp_f32 v{T[i]}, v{T[i]}")
    for i in range(4): e(f"v_mul_f32 v{D+i}, v{D+i}, v{T[i]}")
    e(f"v_cvt_pk_bf16_f32 v{T[4]}, v{D}, v{D+1}")
    e(f"v_cvt_pk_bf16_f32 v{T[5]}, v{D+2}, v{D+3}")
    ZD = 180
    for tt in range(10):
        e(f"v_mfma_f32_16x16x16_bf16 v[{ZD+4*tt}:{ZD+4*tt+3}], v[{F2+2*tt}:{F2+2*tt+1}], v[{T[4]}:{T[5]}], 0")
    for tt in range(10):
        e(f"s_add_u32 s{sT0}, s{sOOB}, {tt*6144}")
        e(f"buffer_store_dwordx4 v[{ZD+4*tt}:{ZD+4*tt+3}], v{VZA}, {srd(SRD_WS)}, s{sT0} offen sc1")
    stamp()
    if dry:
        e(f"s_cmp_eq_u32 s{sDRY}, 0")
        e("s_cbranch_scc1 L_fin")
        wait_progress("L_mlp_wait")
        e("s_branch L_mlp_tail")
    A.label("L_fin"); A.fence()
    if stamps and not prog:
        e(f"s_cmp_lg_u32 s{sW}, 0")
        e("s_cbranch_scc1 L_end")
        e("s_waitcnt lgkmcnt(0)")
        e(f"s_lshl_b32 s{sT0}, s2, 7")
        e(f"s_add_u32 s{sT0}, s{sT0}, {WS_STAMP + 64 + 32}")
        e("s_mov_b64 exec, 1")
        for i in range(1, 4):
            e(f"v_mov_b32 v{T[2]}, s{sST+2*i}")
            e(f"v_mov_b32 v{T[3]}, s{sST+2*i+1}")
            e(f"buffer_store_dwordx2 v[{T[2]}:{T[3]}], v{VZERO}, {srd(SRD_WS)}, s{sT0} offen offset:{8*i}")
            e("s_nop 1")
    A.label("L_end")
    A.raw("    s_endpgm")
    A.raw(f""".section .rodata,"a"
.p2align 6
.amdhsa_kernel {NAME}
  .amdhsa_next_free_vgpr 256
  .amdhsa_next_free_sgpr 102
  .amdhsa_accum_offset 256
  .amdhsa_group_segment_fixed_size 0
  .amdhsa_kernarg_size 88
  .amdhsa_user_sgpr_count 2
  .amdhsa_user_sgpr_kernarg_segment_ptr 1
  .amdhsa_system_sgpr_workgroup_id_x 1
  .amdhsa_float_denorm_mode_32 3
.end_amdhsa_kernel""")
    return A.text()

if __name__ == "__main__":
    out = sys.argv[1] if len(sys.argv) > 1 else "sequential_preLN__mha_block_cached__dense_activation_silu__decode.s"
    kw = eval("dict(%s)" % sys.argv[2]) if len(sys.argv) > 2 else {}
    open(out, "w").write(gen(**kw))
```

```python
import sys, struct, os
from asmlib import Asm

NAME = "sequential_preLN__mha_block_cached__dense_activation_silu__decode_kernel"
HEADER = open(os.path.join(os.path.dirname(os.path.abspath(__file__)), "header.txt")).read()
def f32(x): return struct.unpack('<I', struct.pack('<f', x))[0]

WS_PART = 0x000000
WS_Y    = 0x040000
WS_Z    = 0x070000
WS_FB   = 0x0F0000
WS_IN   = 0x100000
WS_P0   = 0x180000
WS_STAMP= 0x300000
WS_SIZE = 0x400000
L_CTL  = 0
L_F    = 32
L_ML   = 64
L_QS   = 128
L_RED  = 1024
L_RQ   = 7168
L_OB   = 19712
L_YR   = 22784
L_H    = 23808
L_LN   = 24064
L_DX   = 26624
L_W    = 27136
LDS_BYTES = L_W + 4*12288
KVBYTES = 2*32*8192*384
OOB = WS_SIZE

def gen(depths=(5,6,7,8), thr=(-60,20,100), cp=18, fb=True, init=1, fbdelay=8, stamps=False, spin_limit=1 << 20, kvflags="nt", wflags="nt", sleep=1,
        wdelay=200, indelay=12, insleep=6, prog=False, cflags='sc1', rot=9, back=1, pol=None, late=False, latet=32, skipw=0, ko=0, n0=None, pf=dict(a='sc1', h='sc1', c='sc1'), sf=dict(a='sc1', h='sc1', c='sc1'), CS=4, wt=19, xm=True, inc=False, fine=False, hstop=0, ebar=True, hdelay=0, prelvl=None, early0=False, mlsleep=100, sl=dict(a=1, h=1, c=1, b=4)):
    dry = False; wpace = 1; wskew = 0; half = None; endn = 0
    stamps = stamps or prog
    A = Asm(); e = A.e
    A.raw(HEADER.rstrip('\n'))
    A.raw(f"; @launch grid=(256,1,1) block=(512,1,1) lds={LDS_BYTES}")
    A.raw('.amdgcn_target "amdgcn-amd-amdhsa--gfx950"\n.text\n.globl %s\n.p2align 8\n.type %s,@function\n%s:' % (NAME, NAME, NAME))
    VLANE, VKV, VZERO = 1, 2, 3
    T = list(range(4, 20))
    VG, VC, VMW, VLW_ = 20, 21, 22, 23
    SRD_X, SRD_K, SRD_V, SRD_WQ, SRD_WA, SRD_OUT, SRD_DBG, SRD_WS, SRD_WB = 28, 32, 36, 40, 44, 48, 52, 56, 96
    sW, sH, sB, sSPL, sMEM, sKVB, sOFF = 60, 61, 62, 63, 64, 65, 66
    sMASK, sR, sRS, sT0, sT1, sT2, sT3, sSPIN, sF0 = 67, 68, 69, 70, 71, 72, 73, 74, 75
    sPLO, sPHI, sXG, sCS = 76, 77, 78, 79
    sLID, sDRY, sOOB, sLIM = 3, 26, 27, 100
    sLVL, sNOW, sPREV, sLAG = 101, 20, 22, 23
    depth = depths[init]; DMAX = depths[-1]
    sST = 80
    def srd(s): return f"s[{s}:{s+3}]"
    nstamp = [0]
    def stamp(p=False):
        if not stamps: return
        if prog and not p and nstamp[0] > 0: return
        i = nstamp[0]; nstamp[0] += 1
        assert i < 8, i
        e(f"s_memrealtime s[{sST+2*i}:{sST+2*i+1}]")
    LOG2E = hex(f32(1.4426950408889634))
    SCALE = hex(f32(192 ** -0.5))
    e("s_cmp_ge_u32 s2, 256")
    e("s_cbranch_scc1 L_end")
    e("s_load_dwordx16 s[4:19], s[0:1], 0")
    e("s_load_dwordx4 s[20:23], s[0:1], 64")
    e("s_load_dwordx2 s[24:25], s[0:1], 80")
    if stamps:
        for i in range(1, 8): e(f"s_mov_b64 s[{sST+2*i}:{sST+2*i+1}], 0")
    stamp()
    e(f"v_lshrrev_b32 v{T[0]}, 6, v0")
    e(f"v_and_b32 v{VLANE}, 63, v0")
    e(f"v_readfirstlane_b32 s{sW}, v{T[0]}")
    e(f"v_lshrrev_b32 v{VG}, 3, v{VLANE}")
    e(f"v_and_b32 v{VC}, 7, v{VLANE}")
    e(f"v_mov_b32 v{VZERO}, 0")
    e(f"v_lshlrev_b32 v{T[1]}, 4, v{VLANE}")
    e(f"v_cmp_gt_u32 vcc, 2, v{VLANE}")
    e(f"v_mov_b32 v{T[4]}, -1")
    e(f"v_cndmask_b32 v{T[4]}, v{T[4]}, v{VZERO}, vcc")
    for i in range(1, 4): e(f"v_mov_b32 v{T[4+i]}, v{T[4]}")
    e(f"ds_write_b128 v{T[1]}, v[{T[4]}:{T[7]}]")
    e(f"s_and_b32 s{sXG}, s2, 7")
    e(f"s_lshr_b32 s{sT1}, s2, 3")
    e(f"s_lshr_b32 s{sT2}, s{sT1}, 3")
    e(f"s_lshl_b32 s{sH}, s{sXG}, 2")
    e(f"s_add_u32 s{sH}, s{sH}, s{sT2}")
    e(f"s_and_b32 s{sMEM}, s{sT1}, 7")
    e(f"s_lshr_b32 s{sB}, s{sMEM}, 2")
    e(f"s_and_b32 s{sSPL}, s{sMEM}, 3")
    e(f"s_mul_i32 s{sCS}, s{sT2}, 5")
    e(f"s_add_u32 s{sCS}, s{sCS}, s{sMEM}")
    e(f"s_lshl_b32 s{sLID}, s{sH}, 3")
    e(f"s_add_u32 s{sLID}, s{sLID}, s{sMEM}")
    e(f"s_mov_b32 s{sMASK}, 0xffff0000")
    e(f"s_mov_b32 s{sLIM}, {spin_limit}")
    e(f"s_mov_b32 s{sDRY}, 0")
    e(f"s_mov_b32 s{sOOB}, 0")
    e(f"s_mul_i32 s{sKVB}, s{sH}, 3145728")
    e(f"s_lshl_b32 s{sT0}, s{sMEM}, 2")
    e(f"s_and_b32 s{sT1}, s{sW}, 3")
    e(f"s_add_u32 s{sT0}, s{sT0}, s{sT1}")
    e(f"s_mul_i32 s{sT0}, s{sT0}, 3072")
    e(f"s_add_u32 s{sKVB}, s{sKVB}, s{sT0}")
    e(f"v_mul_u32_u24 v{VKV}, 384, v{VG}")
    e(f"v_lshl_add_u32 v{VKV}, v{VC}, 4, v{VKV}")
    def mkc(s, size):
        e(f"s_mov_b32 s{s+2}, {size}"); e(f"s_mov_b32 s{s+3}, 0x20000")
    def mkb(s, p):
        e(f"s_mov_b32 s{s}, s{p}"); e(f"s_mov_b32 s{s+1}, s{p+1}")
    mkc(SRD_K, KVBYTES); mkc(SRD_X, 2560); mkc(SRD_WQ, 640*6144*2); mkc(SRD_WS, WS_SIZE)
    mkc(SRD_V, KVBYTES); mkc(SRD_OUT, 2560); mkc(SRD_DBG, 256)
    e(f"s_cmp_lt_u32 s{sW}, 4")
    e("s_cbranch_scc1 L_helper")

    def wave_reduce(v, op, tmp, n=64):
        for ctl in ("quad_perm:[1,0,3,2]", "quad_perm:[2,3,0,1]", "row_half_mirror", "row_mirror"):
            e(f"v_{op}_dpp v{v}, v{v}, v{v} {ctl} row_mask:0xf bank_mask:0xf")
        e(f"v_mov_b32 v{tmp}, v{v}")
        e(f"v_permlane16_swap_b32 v{v}, v{tmp}")
        e(f"v_{op} v{v}, v{v}, v{tmp}")
        if n == 64:
            e(f"v_mov_b32 v{tmp}, v{v}")
            e(f"v_permlane32_swap_b32 v{v}, v{tmp}")
            e(f"v_{op} v{v}, v{v}, v{tmp}")
    def group_reduce(v, op, tmp):
        e(f"v_{op}_dpp v{v}, v{v}, v{v} row_ror:8 row_mask:0xf bank_mask:0xf")
        e(f"v_mov_b32 v{tmp}, v{v}")
        e(f"v_permlane16_swap_b32 v{v}, v{tmp}")
        e(f"v_{op} v{v}, v{v}, v{tmp}")
        e(f"v_mov_b32 v{tmp}, v{v}")
        e(f"v_permlane32_swap_b32 v{v}, v{tmp}")
        e(f"v_{op} v{v}, v{v}, v{tmp}")
    def bf16r(v):
        e(f"v_cvt_pk_bf16_f32 v{v}, v{v}, v{v}")
        e(f"v_lshlrev_b32 v{v}, 16, v{v}")
    def spin_begin(lbl):
        e(f"s_mov_b32 s{sSPIN}, 0")
        A.label(lbl); A.fence()
    def spin_end(lbl, done_lbl, slp=None):
        slp = sleep if slp is None else slp
        e(f"s_cbranch_vccz {done_lbl}")
        e(f"s_add_u32 s{sSPIN}, s{sSPIN}, 1")
        e(f"s_cmp_ge_u32 s{sSPIN}, s{sLIM}")
        e(f"s_cbranch_scc1 {done_lbl}")
        if slp: e(f"s_sleep {slp}")
        e(f"s_branch {lbl}")
        A.label(done_lbl); A.fence()
    def sentinel_check(regs, tmp):
        n = len(regs)
        e(f"v_max3_u32 v{tmp}, v{regs[0]}, v{regs[1]}, v{regs[2]}")
        i = 3
        while i + 1 < n:
            e(f"v_max3_u32 v{tmp}, v{tmp}, v{regs[i]}, v{regs[i+1]}"); i += 2
        if i < n: e(f"v_max_u32 v{tmp}, v{tmp}, v{regs[i]}")
        e(f"v_cmp_eq_u32 vcc, -1, v{tmp}")
    def rng(a, n): return list(range(a, a+n))
    def poll(name, loads, setA, consume, res, tmp):
        spin_begin(f"L_{name}_spin")
        loads(setA)
        e("s_waitcnt vmcnt(0)")
        consume(setA)
        cur = list(res)
        if len(cur) == 8:
            e(f"v_pk_add_f32 v[{tmp}:{tmp+1}], v[{cur[0]}:{cur[1]}], v[{cur[2]}:{cur[3]}]")
            e(f"v_pk_add_f32 v[{tmp+2}:{tmp+3}], v[{cur[4]}:{cur[5]}], v[{cur[6]}:{cur[7]}]")
            e(f"v_pk_add_f32 v[{tmp}:{tmp+1}], v[{tmp}:{tmp+1}], v[{tmp+2}:{tmp+3}]")
        else:
            e(f"v_pk_add_f32 v[{tmp}:{tmp+1}], v[{cur[0]}:{cur[1]}], v[{cur[2]}:{cur[3]}]")
        e(f"v_cmp_u_f32 vcc, v{tmp}, v{tmp+1}")
        spin_end(f"L_{name}_spin", f"L_{name}_ok", slp=sl[name])
    def ln_stats(HBx):
        s_, t_, q_ = T[0], T[1], T[2]
        e(f"v_pk_add_f32 v[{T[4]}:{T[5]}], v[{HBx}:{HBx+1}], v[{HBx+2}:{HBx+3}]")
        for i in range(4, 20, 2): e(f"v_pk_add_f32 v[{T[4]}:{T[5]}], v[{T[4]}:{T[5]}], v[{HBx+i}:{HBx+i+1}]")
        e(f"v_add_f32 v{s_}, v{T[4]}, v{T[5]}")
        wave_reduce(s_, "add_f32", t_, n=32)
        e(f"v_mul_f32 v{s_}, {hex(f32(-1.0/640))}, v{s_}")
        for i in range(0, 20, 2):
            e(f"v_pk_add_f32 v[{T[6]}:{T[7]}], v[{HBx+i}:{HBx+i+1}], v[{s_}:{s_+1}] op_sel_hi:[1,0]")
            if i == 0: e(f"v_pk_mul_f32 v[{T[4]}:{T[5]}], v[{T[6]}:{T[7]}], v[{T[6]}:{T[7]}]")
            else: e(f"v_pk_fma_f32 v[{T[4]}:{T[5]}], v[{T[6]}:{T[7]}], v[{T[6]}:{T[7]}], v[{T[4]}:{T[5]}]")
        e(f"v_add_f32 v{q_}, v{T[4]}, v{T[5]}")
        wave_reduce(q_, "add_f32", T[3], n=32)
        e(f"v_mul_f32 v{q_}, {hex(f32(1.0/640))}, v{q_}")
        bf16r(s_); bf16r(q_)
        e(f"v_add_f32 v{q_}, {hex(f32(1e-5))}, v{q_}")
        bf16r(q_)
        e(f"v_sqrt_f32 v{q_}, v{q_}")
        bf16r(q_)
        e(f"v_rcp_f32 v{q_}, v{q_}")
        e(f"v_mov_b32 v{T[1]}, v{T[0]}")
        e(f"v_mov_b32 v{T[3]}, v{T[2]}")
        e(f"v_permlane32_swap_b32 v{T[0]}, v{T[1]}")
        e(f"v_permlane32_swap_b32 v{T[2]}, v{T[3]}")
    def norm_pair(a, b_, dst=None):
        sel = "op_sel_hi:[1,0]" if b_ == 0 else "op_sel:[0,1] op_sel_hi:[1,1]"
        e(f"v_pk_add_f32 v[{a}:{a+1}], v[{a}:{a+1}], v[{T[0]}:{T[1]}] {sel}")
        e(f"v_cvt_pk_bf16_f32 v{a+1}, v{a}, v{a+1}")
        e(f"v_lshlrev_b32 v{a}, 16, v{a+1}")
        e(f"v_and_b32 v{a+1}, s{sMASK}, v{a+1}")
        e(f"v_pk_mul_f32 v[{a}:{a+1}], v[{a}:{a+1}], v[{T[2]}:{T[3]}] {sel}")
        if dst is not None:
            e(f"v_cvt_pk_bf16_f32 v{dst}, v{a}, v{a+1}")
        else:
            e(f"v_cvt_pk_bf16_f32 v{a+1}, v{a}, v{a+1}")
            e(f"v_lshlrev_b32 v{a}, 16, v{a+1}")
            e(f"v_and_b32 v{a+1}, s{sMASK}, v{a+1}")
    def write_stamps(slot):
        e("s_waitcnt lgkmcnt(0)")
        e(f"s_lshl_b32 s{sT0}, s2, 7")
        e(f"s_add_u32 s{sT0}, s{sT0}, {WS_STAMP + slot*64}")
        e("s_mov_b64 exec, 1")
        for i in range(8):
            e(f"v_mov_b32 v{T[2]}, s{sST+2*i}")
            e(f"v_mov_b32 v{T[3]}, s{sST+2*i+1}")
            e(f"buffer_store_dwordx2 v[{T[2]}:{T[3]}], v{VZERO}, {srd(SRD_WS)}, s{sT0} offen offset:{8*i}")
            e("s_nop 1")

    Q = 24; ACC = 36; SC = 60; RING = 92; VRED = 252; VRP = 253
    NT = 32
    slots = [RING + 4*i for i in range(40)]
    early = [ACC + 4*i for i in range(6)] + [SC + 8 + 4*i for i in range(6)]
    order = [(k, b_, t, j) for b_ in range(2) for k in 'KV' for t in range(NT) for j in range(3)]
    pos = {L: i for i, L in enumerate(order)}
    free = early + slots
    npre = 51
    slot = {}; tick = {}; m = [0]; last_off = [None]; landed = [0]
    A.vm_issued = 0
    def issue_one():
        L = order[m[0]]; m[0] += 1
        kind, b_, t, j = L
        r = free.pop(0); slot[L] = r
        if last_off[0] != (kind, b_, t):
            e(f"s_add_u32 s{sOFF}, s{sCS}, {t}")
            e(f"s_and_b32 s{sOFF}, s{sOFF}, 31")
            e(f"s_mul_i32 s{sOFF}, s{sOFF}, 98304")
            e(f"s_add_u32 s{sOFF}, s{sOFF}, s{sKVB if b_ == 0 else sF0}")
            last_off[0] = (kind, b_, t)
        sr = SRD_K if kind == 'K' else SRD_V
        tick[L] = e(f"buffer_load_dwordx4 v[{r}:{r+3}], v{VKV}, {srd(sr)}, s{sOFF} offen offset:{j*128} {kvflags if not (pol and (kind + str(b_)) in pol) else ''}")
    def can_issue(): return m[0] < len(order) and free
    def wait_for(L):
        while L not in tick: issue_one()
        if tick[L] > landed[0]:
            A.wait_vm(tick[L]); landed[0] = tick[L]
    nthr = [0]
    def pump():
        if not can_issue(): return
        infl = A.vm_issued - landed[0]
        if infl >= depths[0]:
            if infl >= DMAX:
                tk = A.vm_issued - (DMAX - 1)
                A.wait_vm(tk); landed[0] = tk
            if fb:
                nthr[0] += 1; lbl = f"L_go{nthr[0]}"
                for lv in (3, 2, 1):
                    e(f"s_cmp_ge_u32 s{sLVL}, {lv}")
                    e(f"s_cbranch_scc1 {lbl}")
                    e(f"s_waitcnt vmcnt({depths[lv-1]-1})")
                for I_ in A.hist[-7:]: I_.states = 0
                A.label(lbl)
            elif A.vm_issued - landed[0] >= depth:
                tk = A.vm_issued - (depth - 1)
                A.wait_vm(tk); landed[0] = tk
        issue_one()
    def release(L):
        if slot[L] >= RING: free.append(slot[L])
    e(f"s_mul_i32 s{sCS}, s{sH}, {rot}")
    e(f"s_add_u32 s{sF0}, s{sKVB}, 100663296")
    e("s_waitcnt lgkmcnt(0)")
    mkb(SRD_K, 6)
    n0 = depth if n0 is None else n0
    for _ in range(n0): issue_one()
    mkb(SRD_V, 8); mkb(SRD_WS, 24)
    e("s_barrier")
    e(f"s_mov_b32 s{sLVL}, {init if prelvl is None else prelvl}")
    e(f"s_mov_b32 s{sNOW}, 0")
    sOK = sPLO; sLAST = sPHI
    e(f"s_mov_b32 s{sOK}, 0")
    e(f"s_mov_b32 s{sR}, 0")
    e(f"s_lshr_b32 s{sT0}, s2, 7"); e(f"s_lshl_b32 s{sT0}, s{sT0}, 3"); e(f"s_add_u32 s{sT0}, s{sT0}, s{sXG}"); e(f"s_lshl_b32 s{sT0}, s{sT0}, 2")
    e(f"s_bfe_u32 s{sT1}, s2, 0x40003")
    e(f"s_cmp_eq_u32 s{sT1}, 3"); e(f"s_cselect_b32 s{sT0}, s{sT0}, {OOB}")
    e(f"s_cmp_eq_u32 s{sW}, 4"); e(f"s_cselect_b32 s{sT0}, s{sT0}, {OOB}")
    e(f"v_mov_b32 v{VRP}, s{sT0}")
    e(f"v_mov_b32 v{T[2]}, {OOB}")
    e(f"v_cmp_eq_u32 vcc, 0, v{VLANE}")
    e(f"v_cndmask_b32 v{VRP}, v{T[2]}, v{VRP}, vcc")
    e(f"v_mul_u32_u24 v{VRED}, 96, v{VC}")
    e(f"v_mul_u32_u24 v{T[2]}, 12, v{VG}")
    e(f"v_add_u32 v{VRED}, v{VRED}, v{T[2]}")
    e(f"s_and_b32 s{sSPL}, s{sW}, 3")
    e(f"s_mul_i32 s{sRS}, s{sSPL}, 768")
    e(f"v_add_u32 v{VRED}, s{sRS}, v{VRED}")
    e(f"v_lshlrev_b32 v{T[14]}, 4, v{VLANE}")
    e(f"v_cmp_gt_u32 vcc, 48, v{VLANE}")
    e(f"v_mov_b32 v{T[15]}, {OOB}")
    e(f"v_cndmask_b32 v{T[15]}, v{T[15]}, v{T[14]}, vcc")
    e(f"v_mov_b32 v{T[13]}, 1")
    for _ in range(npre - n0): pump()
    e(f"s_mov_b32 s{sLVL}, {init}")
    ncons = [0]
    fbs = dict(ncp=0, due1=None, due=None)
    LOOK = DMAX if fb else depth
    def step(L):
        ncons[0] += 1
        n = ncons[0]
        if m[0] - pos[L] > LOOK:
            if n % 3 == 0: pump()
        else:
            while can_issue() and m[0] - pos[L] <= LOOK: pump()
        wait_for(L)
    def feedback():
        if not fb: return
        n = ncons[0]
        if fbs['due1'] == n:
            e("s_waitcnt lgkmcnt(0)")
            e(f"v_mov_b32 v254, s{sNOW}")
            e(f"s_mov_b32 s{sT0}, {WS_FB + fbs['ncp']*128}")
            e(f"buffer_store_dword v254, v{VRP}, {srd(SRD_WS)}, s{sT0} offen sc1")
            if fbs['ncp'] > back:
                e(f"s_cmp_eq_u32 s{sOK}, 0")
                e(f"s_cbranch_scc1 L_fb{fbs['ncp']}a")
                e(f"s_load_dwordx16 s[4:19], s[24:25], {WS_FB + (fbs['ncp']-back)*128}")
                A.label(f"L_fb{fbs['ncp']}a")
            e(f"ds_read_b32 v255, v{VZERO} offset:{L_CTL+8}")
            fbs['due'] = n + fbdelay
        if fbs['due'] == n:
            e("s_waitcnt lgkmcnt(0)")
            if fbs['ncp'] > back:
                e(f"s_cmp_eq_u32 s{sOK}, 0")
                e(f"s_cbranch_scc1 L_fb{fbs['ncp']}b")
                e(f"s_mov_b32 s{sLAG}, 0")
                for i in range(16):
                    e(f"s_min_u32 s{4+i}, s{4+i}, s{sNOW}")
                    e(f"s_sub_u32 s{4+i}, s{sPREV}, s{4+i}")
                    e(f"s_add_u32 s{sLAG}, s{sLAG}, s{4+i}")
                e(f"s_ashr_i32 s{sLAG}, s{sLAG}, 4")
                e(f"s_mov_b32 s{sLVL}, 0")
                for lv, th in enumerate(thr):
                    e(f"s_cmp_ge_i32 s{sLAG}, {th}"); e(f"s_cselect_b32 s{sLVL}, {lv+1}, s{sLVL}")
                A.label(f"L_fb{fbs['ncp']}b"); A.fence()
                e("s_nop 2")
            e(f"v_readfirstlane_b32 s{sOK}, v255")
        if n >= 84 and n % cp == cp - 1 and n + 2*DMAX + 12 < len(order):
            fbs['ncp'] += 1
            assert fbs['ncp'] < 32
            if back == 1: e(f"s_mov_b32 s{sPREV}, s{sNOW}")
            else:
                e(f"s_mov_b32 s{sPREV}, s{sR}"); e(f"s_mov_b32 s{sR}, s{sNOW}")
            e(f"s_memrealtime s[{sNOW}:{sNOW+1}]")
            fbs['due1'] = n + 1
    def flush(b_):
        a = ACC
        for k in range(12): e(f"v_permlane32_swap_b32 v{a+k}, v{a+k+12}")
        for k in range(12): e(f"v_add_f32 v{a+k}, v{a+k}, v{a+k+12}")
        if b_ == 0: pump()
        for k in range(6): e(f"v_permlane16_swap_b32 v{a+k}, v{a+k+6}")
        for k in range(6): e(f"v_add_f32 v{a+k}, v{a+k}, v{a+k+6}")
        for k in range(3): e(f"v_add_f32_dpp v{a+12+k}, v{a+k}, v{a+k} row_ror:8 row_mask:0xf bank_mask:0x3")
        for k in range(3): e(f"v_add_f32_dpp v{a+12+k}, v{a+3+k}, v{a+3+k} row_ror:8 row_mask:0xf bank_mask:0xc")
        for k in range(3): e(f"v_mul_f32 v{a+12+k}, v{a+12+k}, v{VMW}")
        for k in range(3): e(f"ds_write_b32 v{VRED}, v{a+12+k} offset:{L_RED + 3072*b_ + 4*k}")
        e("s_mov_b64 exec, 1")
        e(f"ds_add_rtn_u32 v{T[12]}, v{VZERO}, v{T[13]} offset:{L_CTL + (4 if b_ == 0 else 16)}")
        e("s_mov_b64 exec, -1")
        if b_ == 0: pump()
        e(f"s_lshl_b32 s{sT1}, s{sLID}, 10")
        if b_ == 0: e(f"s_add_u32 s{sT1}, s{sT1}, {WS_P0}")
        e("s_waitcnt lgkmcnt(0)")
        e(f"v_readfirstlane_b32 s{sLAST}, v{T[12]}")
        e(f"s_cmp_lg_u32 s{sLAST}, 3")
        if b_ == 0: e(f"s_cselect_b32 s{sT1}, {OOB}, s{sT1}")
        e(f"s_cbranch_scc1 L_fl{b_}")
        for w in range(4):
            e(f"ds_read_b128 v[{ACC+4*w}:{ACC+4*w+3}], v{T[14]} offset:{L_RED + 3072*b_ + w*768}")
        e("s_waitcnt lgkmcnt(0)")
        for i in (0, 2):
            e(f"v_pk_add_f32 v[{ACC+i}:{ACC+i+1}], v[{ACC+i}:{ACC+i+1}], v[{ACC+4+i}:{ACC+4+i+1}]")
            e(f"v_pk_add_f32 v[{ACC+8+i}:{ACC+8+i+1}], v[{ACC+8+i}:{ACC+8+i+1}], v[{ACC+12+i}:{ACC+12+i+1}]")
        for i in (0, 2): e(f"v_pk_add_f32 v[{ACC+i}:{ACC+i+1}], v[{ACC+i}:{ACC+i+1}], v[{ACC+8+i}:{ACC+8+i+1}]")
        if b_ == 0:
            A.label("L_fl0"); A.fence()
            return e(f"buffer_store_dwordx4 v[{ACC}:{ACC+3}], v{T[15]}, {srd(SRD_WS)}, s{sT1} offen sc1")
        e(f"buffer_store_dwordx4 v[{ACC}:{ACC+3}], v{T[15]}, {srd(SRD_WS)}, s{sT1} offen {sf['a']}")
        e(f"ds_write_b32 v{VZERO}, v{T[13]} offset:{L_CTL+12}")
        if stamps:
            stamp()
            write_stamps(0)
        A.label("L_fl1"); A.fence()
    tk_p0 = None; p0_flagged = False
    for L in order:
        kind, b_, t, j = L
        if prog and j == 0 and (kind, b_, t) in (('K',0,24),('V',0,8),('V',0,24),('K',1,8),('K',1,24),('V',1,8),('V',1,24)): stamp(True)
        if kind == 'K':
            if t == 0 and j == 0:
                e(f"v_lshlrev_b32 v{T[8]}, 4, v{VC}")
                spin_begin(f"L_ql{b_}_spin")
                for jj in range(3):
                    e(f"ds_read_b128 v[{Q+4*jj}:{Q+4*jj+3}], v{T[8]} offset:{L_QS + 384*b_ + 128*jj}")
                e("s_waitcnt lgkmcnt(0)")
                sentinel_check(rng(Q, 12), T[9])
                if ko & 2: e("s_mov_b64 vcc, 0")
                spin_end(f"L_ql{b_}_spin", f"L_ql{b_}_done")
                if b_ == 0: stamp()
            if b_ == 0 and t == wt and j == 0:
                e(f"ds_write_b32 v{VZERO}, v{T[13]} offset:{L_CTL+28}")
            step(L)
            r = slot[L]
            for i in range(4):
                c = "0" if i == 0 else f"v{T[j]}"
                e(f"v_dot2_f32_bf16 v{T[j]}, v{r+i}, v{Q+4*j+i}, {c}")
            release(L)
            feedback()
            if tk_p0 is not None and not p0_flagged and landed[0] >= tk_p0:
                e(f"s_cmp_lg_u32 s{sLAST}, 3")
                e("s_cbranch_scc1 L_p0f")
                e(f"ds_write_b32 v{VZERO}, v{T[13]} offset:{L_CTL+20}")
                A.label("L_p0f")
                p0_flagged = True
            if j == 2:
                sc = SC + t
                assert all(not (slot[x] <= sc < slot[x]+4) for x in order[pos[L]+1:] if x in slot), "score reg busy"
                e(f"v_add_f32 v{sc}, v{T[0]}, v{T[1]}")
                e(f"v_add_f32 v{sc}, v{sc}, v{T[2]}")
                for ctl in ("quad_perm:[1,0,3,2]", "quad_perm:[2,3,0,1]", "row_half_mirror"):
                    e(f"v_add_f32_dpp v{sc}, v{sc}, v{sc} {ctl} row_mask:0xf bank_mask:0xf")
                bf16r(sc)
                e(f"v_mul_f32 v{sc}, {SCALE}, v{sc}")
                bf16r(sc)
                if t == 0: e(f"v_mov_b32 v{VMW}, v{sc}")
                else: e(f"v_max_f32 v{VMW}, v{VMW}, v{sc}")
            if t == NT-1 and j == 2:
                if b_ == 1: stamp()
                group_reduce(VMW, "max_f32", T[1])
        else:
            if j == 0 and t < 8:
                for t2 in range(4*t, 4*t+4):
                    sc = SC + t2
                    e(f"v_sub_f32 v{sc}, v{sc}, v{VMW}")
                    e(f"v_mul_f32 v{sc}, {LOG2E}, v{sc}")
                    e(f"v_exp_f32 v{sc}, v{sc}")
                    if t2 == 0: e(f"v_mov_b32 v{VLW_}, v{sc}")
                    else: e(f"v_add_f32 v{VLW_}, v{VLW_}, v{sc}")
            if t == 8 and j == 0:
                group_reduce(VLW_, "add_f32", T[8])
                e(f"s_lshl_b32 s{sT0}, s{sSPL}, 3")
                e(f"v_mov_b32 v{T[8]}, s{sT0}")
                e(f"ds_write_b64 v{T[8]}, v[{VMW}:{VLW_}] offset:{L_ML + 32*b_}")
            if b_ == 1 and t == latet and j == 0:
                e(f"ds_write_b32 v{VZERO}, v{T[13]} offset:{L_CTL+24}")
            if t == NT-3 and j == 1:
                e(f"s_lshl_b32 s{sT0}, s{sSPL}, 2")
                e(f"v_mov_b32 v{T[8]}, s{sT0}")
                spin_begin(f"L_mx{b_}_spin")
                e(f"ds_read_b32 v{VMW}, v{T[8]} offset:{L_F + 16*b_}")
                e(f"ds_read_b32 v{T[12]}, v{VZERO} offset:{L_CTL+8}")
                e("s_waitcnt lgkmcnt(0)")
                e(f"v_subrev_u32 v{T[12]}, 1, v{T[12]}")
                e(f"v_max_u32 v{T[12]}, v{T[12]}, v{VMW}")
                e(f"v_cmp_eq_u32 vcc, -1, v{T[12]}")
                if ko & 2: e("s_mov_b64 vcc, 0")
                spin_end(f"L_mx{b_}_spin", f"L_mx{b_}_done")
            step(L)
            r = slot[L]
            for i in range(4):
                lo, hi = T[(2*i) % 8], T[(2*i+1) % 8]
                e(f"v_lshlrev_b32 v{lo}, 16, v{r+i}")
                e(f"v_and_b32 v{hi}, s{sMASK}, v{r+i}")
                k = ACC + 8*j + 2*i
                op = "v_mul_f32" if t == 0 else "v_fmac_f32"
                e(f"{op} v{k}, v{SC+t}, v{lo}"); e(f"{op} v{k+1}, v{SC+t}, v{hi}")
            release(L)
            feedback()
            if t == NT-1 and j == 2:
                if b_ == 0: tk_p0 = flush(0)
                else:
                    stamp(); flush(1)
    assert p0_flagged
    e("s_endpgm")

    A.label("L_helper"); A.fence()
    if ko & 4:
        e("s_waitcnt lgkmcnt(0)"); e("s_barrier"); e("s_endpgm")
    nstamp[0] = 1
    e("s_setprio 3")
    e(f"s_mov_b32 s{sPLO}, 0x05040100")
    e(f"s_mov_b32 s{sPHI}, 0x07060302")
    e(f"s_mul_i32 s{sR}, s{sH}, 5")
    e(f"s_add_u32 s{sR}, s{sR}, s{sMEM}")
    e(f"s_mul_i32 s{sF0}, s{sH}, 3")
    e(f"s_add_u32 s{sF0}, s{sF0}, s{sMEM}")
    e(f"s_sub_u32 s{sF0}, s{sF0}, 5")
    e(f"s_lshl_b32 s{sF0}, s{sF0}, 4")
    VL16 = 24; VYA = 25; VA = [26, 27, 28, 29, 30, 31]
    XS = 32
    XO = 42
    HB = 52
    LNV = 72
    QA = 92
    WQB = 108
    assert CS in (2, 4)
    CW = 24 // CS; RS = 8 // CS; QW = 48 // CS
    def divmod_lane(q_, r2, d):
        mul = (65536 + d - 1) // d
        e(f"v_mul_u32_u24 v{q_}, {mul}, v{VLANE}")
        e(f"v_lshrrev_b32 v{q_}, 16, v{q_}")
        e(f"v_mul_u32_u24 v{r2}, {d}, v{q_}")
        e(f"v_sub_u32 v{r2}, v{VLANE}, v{r2}")
    r_, c_ = T[0], T[1]
    divmod_lane(r_, c_, CW)
    e(f"s_and_b32 s{sT0}, s{sMEM}, {RS-1}")
    e(f"s_mul_i32 s{sT0}, s{sT0}, {80*CS}")
    e(f"s_mul_i32 s{sT1}, s{sW}, {20*CS}")
    e(f"s_add_u32 s{sT0}, s{sT0}, s{sT1}")
    e(f"v_mul_u32_u24 v{T[2]}, 10, v{r_}")
    e(f"v_add_u32 v{T[2]}, s{sT0}, v{T[2]}")
    e(f"v_lshlrev_b32 v{VA[0]}, 1, v{T[2]}")
    e(f"v_mul_u32_u24 v{VA[1]}, 40, v{VLANE}")
    e(f"v_mul_u32_u24 v{VA[2]}, 12288, v{T[2]}")
    e(f"v_lshl_add_u32 v{VA[2]}, v{c_}, 4, v{VA[2]}")
    e(f"s_mul_i32 s{sT0}, s{sH}, 384")
    e(f"s_lshr_b32 s{sT1}, s{sMEM}, {RS.bit_length()-1}")
    e(f"s_mul_i32 s{sT1}, s{sT1}, {384//CS}")
    e(f"s_add_u32 s{sT0}, s{sT0}, s{sT1}")
    e(f"v_add_u32 v{VA[2]}, s{sT0}, v{VA[2]}")
    e(f"v_cmp_gt_u32 vcc, 48, v{VLANE}")
    e(f"v_mov_b32 v{T[3]}, 0x7f000000")
    e(f"v_cndmask_b32 v{VA[2]}, v{T[3]}, v{VA[2]}, vcc")
    e("s_waitcnt lgkmcnt(0)")
    if ebar: e("s_barrier")
    if hdelay: e(f"s_sleep {hdelay}")
    mkb(SRD_X, 4); mkb(SRD_WQ, 10)
    e(f"buffer_load_dwordx4 v[{XS}:{XS+3}], v{VA[1]}, {srd(SRD_X)}, 0 offen")
    e(f"buffer_load_dwordx4 v[{XS+4}:{XS+7}], v{VA[1]}, {srd(SRD_X)}, 0 offen offset:16")
    e(f"buffer_load_dwordx2 v[{XS+8}:{XS+9}], v{VA[1]}, {srd(SRD_X)}, 0 offen offset:32")
    XOa = [44, 48]; XOb = [42, 43]
    for b_ in range(2):
        e(f"buffer_load_dwordx4 v[{XOa[b_]}:{XOa[b_]+3}], v{VA[0]}, {srd(SRD_X)}, 0 offen offset:{1280*b_}")
        e(f"buffer_load_dword v{XOb[b_]}, v{VA[0]}, {srd(SRD_X)}, 0 offen offset:{1280*b_+16}")
    for i in range(10):
        if i: e(f"s_mov_b32 s{sOFF}, {i*12288}")
        so = f"s{sOFF}" if i else "0"
        e(f"buffer_load_dwordx4 v[{WQB+4*i}:{WQB+4*i+3}], v{VA[2]}, {srd(SRD_WQ)}, {so} offen {wflags}")
    mkb(SRD_WS, 24); mkb(SRD_OUT, 20); mkb(SRD_DBG, 22)
    e(f"s_cmp_lt_u32 s{sMEM}, 5")
    e(f"s_cselect_b32 s{SRD_WA}, s12, s16"); e(f"s_cselect_b32 s{SRD_WA+1}, s13, s17")
    e(f"s_cselect_b32 s{SRD_WB}, s12, s18"); e(f"s_cselect_b32 s{SRD_WB+1}, s13, s19")
    e(f"s_mov_b32 s{SRD_WA+2}, {640*1536*2}")
    e(f"s_cselect_b32 s{SRD_WA+2}, {6144*640*2}, s{SRD_WA+2}")
    e(f"s_mov_b32 s{SRD_WB+2}, s{SRD_WA+2}")
    e(f"s_mov_b32 s{SRD_WA+3}, 0x20000"); e(f"s_mov_b32 s{SRD_WB+3}, 0x20000")
    e(f"v_lshlrev_b32 v{VA[3]}, 5, v{VLANE}")
    e(f"s_mul_i32 s{sT0}, s{sW}, 3072")
    e(f"v_add_u32 v{VA[3]}, s{sT0}, v{VA[3]}")
    if hstop == 1:
        e("s_waitcnt vmcnt(0) lgkmcnt(0)"); e("s_endpgm")
    e(f"v_lshlrev_b32 v{VL16}, 4, v{VLANE}")
    e(f"v_mul_u32_u24 v{VYA}, 2560, v{VG}")
    e(f"v_lshl_add_u32 v{VYA}, v{VC}, 4, v{VYA}")
    e(f"s_mul_i32 s{sT0}, s{sXG}, 5120")
    e(f"s_lshl_b32 s{sT1}, s{sCS}, 7")
    e(f"s_add_u32 s{sT0}, s{sT0}, s{sT1}")
    e(f"s_add_u32 s{sT0}, s{sT0}, {WS_Y}")
    e(f"s_cmp_ge_u32 s{sMEM}, 5")
    e(f"s_cselect_b32 s{sT0}, {OOB}, s{sT0}")
    e(f"v_add_u32 v{VYA}, s{sT0}, v{VYA}")
    e(f"v_cmp_le_u32 vcc, 16, v{VLANE}")
    e(f"v_mov_b32 v{T[3]}, {OOB}")
    e(f"v_cndmask_b32 v{VYA}, v{VYA}, v{T[3]}, vcc")
    for i in range(4): e(f"v_mov_b32 v{T[4+i]}, -1")
    e(f"s_cmp_lg_u32 s{sW}, {3 if not (ko & 1) else 9}")
    e("s_cbranch_scc1 L_clr_done")
    e(f"s_mul_i32 s{sT1}, s{sR}, 3072")
    e(f"s_add_u32 s{sT1}, s{sT1}, {WS_Z}")
    e(f"s_cmp_ge_u32 s{sMEM}, 5")
    e(f"s_cselect_b32 s{sT1}, {OOB}, s{sT1}")
    for i in range(3):
        e(f"buffer_store_dwordx4 v[{T[4]}:{T[7]}], v{VL16}, {srd(SRD_WS)}, s{sT1} offen offset:{1024*i} {cflags}")
    e(f"s_lshl_b32 s{sT0}, s{sLID}, 10")
    e("s_mov_b32 exec_hi, 0x3ffff")
    e(f"buffer_store_dwordx4 v[{T[4]}:{T[7]}], v{VL16}, {srd(SRD_WS)}, s{sT0} offen {cflags}")
    e("s_mov_b64 exec, -1")
    e(f"buffer_store_dwordx4 v[{T[4]}:{T[7]}], v{VYA}, {srd(SRD_WS)}, 0 offen {cflags}")
    e(f"s_cmp_lg_u32 s{sLID}, 7")
    e("s_cbranch_scc1 L_clr_done")
    e(f"s_mov_b32 s{sT0}, {WS_FB}")
    for i in range(4):
        e(f"buffer_store_dwordx4 v[{T[4]}:{T[7]}], v{VL16}, {srd(SRD_WS)}, s{sT0} offen offset:{1024*i} {cflags}")
    A.label("L_clr_done"); A.fence()
    if not ebar: e("s_barrier")
    if hstop == 2:
        e("s_waitcnt vmcnt(0) lgkmcnt(0)"); e("s_endpgm")
    e(f"s_cmp_lg_u32 s{sW}, 3")
    e("s_cbranch_scc1 L_h3w")
    e("s_waitcnt vmcnt(0)")
    A.label("L_h3w"); A.fence()
    e("s_waitcnt vmcnt(10)")
    for i in range(10):
        e(f"v_lshlrev_b32 v{HB+2*i}, 16, v{XS+i}")
        e(f"v_and_b32 v{HB+2*i+1}, s{sMASK}, v{XS+i}")
    ln_stats(HB)
    for b_ in range(2):
        src = [XOa[b_]+i for i in range(4)] + [XOb[b_]]
        for i in range(5):
            a_ = LNV + 10*b_ + 2*i
            e(f"v_lshlrev_b32 v{a_}, 16, v{src[i]}")
            e(f"v_and_b32 v{a_+1}, s{sMASK}, v{src[i]}")
            norm_pair(a_, b_)
    for i in range(10):
        e(f"s_waitcnt vmcnt({9-i})")
        r = WQB + 4*i
        for d in range(4):
            lo, hi = T[(2*d) % 8 + 4], T[(2*d+1) % 8 + 4]
            e(f"v_lshlrev_b32 v{lo}, 16, v{r+d}")
            e(f"v_and_b32 v{hi}, s{sMASK}, v{r+d}")
            for b_ in range(2):
                k = QA + 8*b_ + 2*d; p = LNV + 10*b_ + i
                op = "v_mul_f32" if i == 0 else "v_fmac_f32"
                e(f"{op} v{k}, v{p}, v{lo}"); e(f"{op} v{k+1}, v{p}, v{hi}")
    e(f"v_cmp_gt_u32 vcc, 48, v{VLANE}")
    e(f"s_and_saveexec_b64 s[{sT2}:{sT3}], vcc")
    for b_ in range(2):
        e(f"ds_write_b128 v{VA[3]}, v[{QA+8*b_}:{QA+8*b_+3}] offset:{L_RQ + 1536*b_}")
        e(f"ds_write_b128 v{VA[3]}, v[{QA+8*b_+4}:{QA+8*b_+7}] offset:{L_RQ + 1536*b_ + 16}")
    e("s_mov_b64 exec, 1")
    e(f"v_mov_b32 v{T[0]}, 1")
    e(f"ds_add_rtn_u32 v{T[1]}, v{VZERO}, v{T[0]} offset:{L_CTL}")
    e("s_mov_b64 exec, -1")
    e("s_waitcnt lgkmcnt(0)")
    e(f"v_readfirstlane_b32 s{sT0}, v{T[1]}")
    e(f"v_cmp_gt_u32 vcc, 48, v{VLANE}")
    e(f"v_mov_b32 v{T[3]}, {OOB}")
    e(f"v_cndmask_b32 v{VA[4]}, v{T[3]}, v{VL16}, vcc")
    e(f"s_cmp_lg_u32 s{sT0}, 3")
    e("s_cbranch_scc1 L_q_skip")
    divmod_lane(T[2], T[3], QW)
    e(f"v_mul_u32_u24 v{T[4]}, 1536, v{T[2]}")
    e(f"v_lshl_add_u32 v{T[4]}, v{T[3]}, 4, v{T[4]}")
    NR = 4 * 2 * CS
    SB = 108
    for k in range(NR):
        w_, rr = divmod(k, 2*CS)
        e(f"ds_read_b128 v[{SB+4*k}:{SB+4*k+3}], v{T[4]} offset:{L_RQ + w_*3072 + rr*(768//CS)}")
        if k % 8 == 7: e("s_waitcnt lgkmcnt(0)")
    st = 1
    while st < NR:
        for k in range(0, NR, 2*st):
            for i in (0, 2):
                a_, b2 = SB+4*k+i, SB+4*(k+st)+i
                e(f"v_pk_add_f32 v[{a_}:{a_+1}], v[{a_}:{a_+1}], v[{b2}:{b2+1}]")
        st *= 2
    e(f"v_cmp_gt_u32 vcc, {2*QW}, v{VLANE}")
    e(f"v_mov_b32 v{T[5]}, {OOB}")
    e(f"v_cndmask_b32 v{T[5]}, v{T[5]}, v{VL16}, vcc")
    e(f"s_mul_i32 s{sT0}, s{sLID}, {1536//CS}")
    e(f"s_add_u32 s{sT0}, s{sT0}, {WS_IN}")
    e(f"buffer_store_dwordx4 v[{SB}:{SB+3}], v{T[5]}, {srd(SRD_WS)}, s{sT0} offen sc1")
    e(f"v_mul_u32_u24 v{T[12]}, {RS*(1536//CS)}, v{T[2]}")
    e(f"v_lshl_add_u32 v{T[12]}, v{T[3]}, 4, v{T[12]}")
    e(f"v_cmp_gt_u32 vcc, 48, v{VLANE}")
    e(f"v_mov_b32 v{T[13]}, {OOB}")
    e(f"v_cndmask_b32 v{T[12]}, v{T[13]}, v{T[12]}, vcc")
    stamp()
    e(f"s_lshl_b32 s{sT0}, s{sH}, 3")
    e(f"s_add_u32 s{sT2}, s22, s{sT0}")
    e(f"s_addc_u32 s{sT3}, s23, 0")
    e(f"s_mov_b32 s{sT1}, 1")
    e(f"v_lshlrev_b32 v{VA[5]}, 10, v{VLANE}")
    e(f"s_lshl_b32 s{sT0}, s{sH}, 13")
    e(f"s_add_u32 s{sT0}, s{sT0}, 784")
    e(f"s_lshl_b32 s{sOFF}, s{sLID}, 10")
    e(f"s_add_u32 s{sOFF}, s{sOFF}, 784")
    e("s_waitcnt vmcnt(0) lgkmcnt(0)")
    e(f"s_atomic_add s{sT1}, s[{sT2}:{sT3}], 0 glc")
    e("s_waitcnt lgkmcnt(0)")
    e(f"s_and_b32 s{sT1}, s{sT1}, 7")
    e(f"s_cmp_lg_u32 s{sT1}, 7")
    e("s_cbranch_scc1 L_qf_wait")
    e("s_mov_b64 exec, 0xff")
    e(f"buffer_store_dword v{VZERO}, v{VA[5]}, {srd(SRD_WS)}, s{sT0} offen sc1")
    e("s_mov_b64 exec, -1")
    e("s_branch L_qf_done")
    A.label("L_qf_wait"); A.fence()
    if indelay: e(f"s_sleep {indelay}")
    spin_begin("L_qf_spin")
    e(f"buffer_load_dword v{T[14]}, v{VZERO}, {srd(SRD_WS)}, s{sOFF} offen sc1")
    e("s_waitcnt vmcnt(0)")
    e(f"v_cmp_eq_u32 vcc, -1, v{T[14]}")
    spin_end("L_qf_spin", "L_qf_done", slp=insleep)
    stamp()
    e(f"s_mul_i32 s{sT0}, s{sH}, {8*(1536//CS)}")
    e(f"s_add_u32 s{sT0}, s{sT0}, {WS_IN}")
    IB = 108
    for k in range(RS):
        for b_ in range(2):
            d = IB + 32*b_ + 4*k
            e(f"buffer_load_dwordx4 v[{d}:{d+3}], v{T[12]}, {srd(SRD_WS)}, s{sT0} offen offset:{k*(1536//CS) + (768//CS)*b_} sc1")
    e("s_waitcnt vmcnt(0)")
    for b_ in range(2):
        ib = IB + 32*b_
        for k in range(1, RS):
            for i in (0, 2):
                e(f"v_pk_add_f32 v[{ib+i}:{ib+i+1}], v[{ib+i}:{ib+i+1}], v[{ib+4*k+i}:{ib+4*k+i+1}]")
        e(f"v_cvt_pk_bf16_f32 v{T[4+2*b_]}, v{ib}, v{ib+1}")
        e(f"v_cvt_pk_bf16_f32 v{T[5+2*b_]}, v{ib+2}, v{ib+3}")
    for i in range(4): e(f"v_min_u32 v{T[4+i]}, -2, v{T[4+i]}")
    e(f"v_lshlrev_b32 v{T[0]}, 3, v{VLANE}")
    e(f"v_cmp_gt_u32 vcc, 48, v{VLANE}")
    e(f"s_and_saveexec_b64 s[{sT2}:{sT3}], vcc")
    e(f"ds_write_b64 v{T[0]}, v[{T[4]}:{T[5]}] offset:{L_QS}")
    e(f"ds_write_b64 v{T[0]}, v[{T[6]}:{T[7]}] offset:{L_QS+384}")
    e("s_mov_b64 exec, -1")
    stamp()
    if stamps and not prog:
        write_stamps(1)
        e("s_mov_b64 exec, -1")
    A.label("L_q_skip"); A.fence()
    nstamp[0] = 1
    if hstop == 3:
        e("s_waitcnt vmcnt(0) lgkmcnt(0)"); e("s_endpgm")
    spin_begin("L_wt_spin")
    e(f"ds_read_b32 v{T[0]}, v{VZERO} offset:{L_CTL+28}")
    e("s_waitcnt lgkmcnt(0)")
    e(f"v_cmp_eq_u32 vcc, 0, v{T[0]}")
    spin_end("L_wt_spin", "L_wt_done", slp=32)
    if wskew:
        e(f"s_mov_b32 s{sT0}, 0")
        A.label("L_skew"); A.fence()
        e(f"s_cmp_ge_u32 s{sT0}, s{sW}")
        e("s_cbranch_scc1 L_skew_done")
        for _ in range(wskew // 100): e("s_sleep 100")
        e(f"s_add_u32 s{sT0}, s{sT0}, 1")
        e("s_branch L_skew")
        A.label("L_skew_done"); A.fence()
    e(f"s_cmp_lg_u32 s{sW}, 1")
    e("s_cbranch_scc1 L_all_skip")
    e(f"v_and_b32 v{T[0]}, 31, v{VLANE}")
    e(f"v_lshlrev_b32 v{T[0]}, 3, v{T[0]}")
    spin_begin("L_all_spin")
    e(f"buffer_load_dword v{T[1]}, v{T[0]}, {srd(SRD_DBG)}, 0 offen sc1")
    e("s_waitcnt vmcnt(0)")
    e(f"v_cmp_gt_u32 vcc, 8, v{T[1]}")
    spin_end("L_all_spin", "L_all_done", slp=64)
    e(f"v_mov_b32 v{T[1]}, 1")
    e(f"ds_write_b32 v{VZERO}, v{T[1]} offset:{L_CTL+8}")
    A.label("L_all_skip"); A.fence()
    WB_ = 32
    FRG = 128
    gA, gB, lA, lB = VA[0], VA[1], VA[2], VA[3]
    e(f"s_mul_i32 s{sRS}, s{sW}, 12288")
    e(f"s_add_u32 s{sRS}, s{sRS}, {L_W}")
    e(f"s_cmp_ge_u32 s{sMEM}, 5")
    e("s_cbranch_scc1 L_wadr_mlp")
    def wo_addr(g_, l_, add):
        u, cb, u3 = T[0], T[1], T[2]
        e(f"v_lshrrev_b32 v{u}, 2, v{VLANE}")
        if add: e(f"v_add_u32 v{u}, {add}, v{u}")
        e(f"v_and_b32 v{cb}, 3, v{VLANE}")
        e(f"v_mul_u32_u24 v{u3}, 43, v{u}")
        e(f"v_lshrrev_b32 v{u3}, 7, v{u3}")
        e(f"v_mul_u32_u24 v{T[3]}, 3, v{u3}")
        e(f"v_sub_u32 v{T[3]}, v{u}, v{T[3]}")
        e(f"v_lshlrev_b32 v{T[3]}, 6, v{T[3]}")
        e(f"v_lshl_add_u32 v{T[3]}, v{u3}, 3, v{T[3]}")
        e(f"v_add_u32 v{T[3]}, s{sT0}, v{T[3]}")
        e(f"v_mul_u32_u24 v{g_}, 1280, v{T[3]}")
        e(f"v_lshl_add_u32 v{g_}, v{cb}, 4, v{g_}")
        e(f"v_add_u32 v{g_}, s{sT1}, v{g_}")
        e(f"v_lshrrev_b32 v{T[3]}, 1, v{cb}")
        e(f"v_mul_u32_u24 v{T[3]}, 6, v{T[3]}")
        e(f"v_lshrrev_b32 v{u3}, 2, v{u}")
        e(f"v_add_u32 v{T[3]}, v{T[3]}, v{u3}")
        e(f"v_lshlrev_b32 v{l_}, 10, v{T[3]}")
        e(f"v_and_b32 v{u3}, 3, v{u}")
        e(f"v_lshl_add_u32 v{l_}, v{u3}, 8, v{l_}")
        e(f"v_and_b32 v{u3}, 1, v{cb}")
        e(f"v_lshl_add_u32 v{l_}, v{u3}, 7, v{l_}")
        e(f"v_add_u32 v{l_}, s{sRS}, v{l_}")
    e(f"s_lshl_b32 s{sT0}, s{sXG}, 2")
    e(f"s_add_u32 s{sT0}, s{sT0}, s{sW}")
    e(f"s_mul_i32 s{sT0}, s{sT0}, 192")
    e(f"s_lshl_b32 s{sT1}, s{sCS}, 6")
    wo_addr(gA, lA, 0); wo_addr(gB, lB, 16)
    e(f"s_movk_i32 s{sT2}, 64"); e(f"s_movk_i32 s{sT3}, 32")
    if skipw & 1:
        e(f"v_mov_b32 v{gA}, 0x7f000000"); e(f"v_mov_b32 v{gB}, 0x7f000000")
    e(f"s_movk_i32 s{sOFF}, 1280")
    e("s_branch L_wadr_done")
    A.label("L_wadr_mlp"); A.fence()
    e(f"v_lshrrev_b32 v{T[0]}, 1, v{VLANE}")
    e(f"s_mul_i32 s{sT0}, s{sW}, 20")
    e(f"v_add_u32 v{T[0]}, s{sT0}, v{T[0]}")
    e(f"v_mul_u32_u24 v{gA}, 24576, v{T[0]}")
    e(f"v_and_b32 v{T[1]}, 1, v{VLANE}")
    e(f"v_lshl_add_u32 v{gA}, v{T[1]}, 4, v{gA}")
    e(f"s_lshl_b32 s{sT0}, s{sF0}, 1")
    e(f"v_add_u32 v{gA}, s{sT0}, v{gA}")
    e(f"v_lshlrev_b32 v{lA}, 7, v{VLANE}")
    e(f"v_add_u32 v{lA}, s{sRS}, v{lA}")
    e(f"v_cmp_le_u32 vcc, 20, v{VLANE}")
    e(f"v_cndmask_b32 v{T[0]}, 0, 1, vcc")
    e(f"v_mul_u32_u24 v{T[1]}, 20, v{T[0]}")
    e(f"v_sub_u32 v{T[1]}, v{VLANE}, v{T[1]}")
    e(f"v_mul_u32_u24 v{gB}, 10240, v{T[0]}")
    e(f"v_lshl_add_u32 v{gB}, v{T[1]}, 4, v{gB}")
    e(f"s_mul_i32 s{sT0}, s{sF0}, 1280")
    e(f"s_mul_i32 s{sT1}, s{sW}, 320")
    e(f"s_add_u32 s{sT0}, s{sT0}, s{sT1}")
    e(f"v_add_u32 v{gB}, s{sT0}, v{gB}")
    e(f"v_lshrrev_b32 v{lB}, 1, v{T[1]}")
    e(f"v_lshlrev_b32 v{lB}, 9, v{lB}")
    e(f"v_lshl_add_u32 v{lB}, v{T[0]}, 8, v{lB}")
    e(f"v_and_b32 v{T[1]}, 1, v{T[1]}")
    e(f"v_lshl_add_u32 v{lB}, v{T[1]}, 7, v{lB}")
    e(f"s_add_u32 s{sT0}, s{sRS}, 6144")
    e(f"v_add_u32 v{lB}, s{sT0}, v{lB}")
    e(f"s_movk_i32 s{sT2}, 40"); e(f"s_movk_i32 s{sT3}, 40")
    if skipw & 2: e(f"v_mov_b32 v{gA}, 0x7f000000")
    if skipw & 4: e(f"v_mov_b32 v{gB}, 0x7f000000")
    e(f"s_movk_i32 s{sOFF}, 3072")
    if late:
        for i, r_ in enumerate((gA, gB, lA, lB)): e(f"v_mov_b32 v{124+i}, v{r_}")
        e("s_branch L_stage_done")
    A.label("L_wadr_done"); A.fence()
    for rnd, (g_, l_, sN, sr) in enumerate(((gA, lA, sT2, SRD_WA), (gB, lB, sT3, SRD_WB))):
        e(f"v_cmp_gt_u32 vcc, s{sN}, v{VLANE}")
        e("s_mov_b64 exec, vcc")
        for kk in range(8):
            if kk == 0: so = "0"
            else:
                if rnd == 0: e(f"s_mul_i32 s{sT0}, s{sOFF}, {kk}")
                else: e(f"s_movk_i32 s{sT0}, {1280*kk}")
                so = f"s{sT0}"
            e(f"buffer_load_dwordx4 v[{WB_+4*kk}:{WB_+4*kk+3}], v{g_}, {srd(sr)}, {so} offen {wflags}")
            if wpace == 1 and kk % 2 == 1 and kk < 7: e("s_waitcnt vmcnt(1)")
            if wpace == 2 and kk < 7: e("s_waitcnt vmcnt(0)")
            if wpace == 3 and kk < 7:
                e("s_waitcnt vmcnt(0)"); e("s_sleep 16")
        e("s_waitcnt vmcnt(0)")
        for i in range(4):
            tb = WB_ + 32 + 8*i
            for kp in range(4):
                e(f"v_perm_b32 v{tb+kp}, v{WB_+4*(2*kp+1)+i}, v{WB_+4*(2*kp)+i}, s{sPLO}")
                e(f"v_perm_b32 v{tb+4+kp}, v{WB_+4*(2*kp+1)+i}, v{WB_+4*(2*kp)+i}, s{sPHI}")
            e(f"ds_write_b128 v{l_}, v[{tb}:{tb+3}] offset:{32*i}")
            e(f"ds_write_b128 v{l_}, v[{tb+4}:{tb+7}] offset:{32*i+16}")
        e("s_mov_b64 exec, -1")
        e("s_waitcnt lgkmcnt(0)")
    A.label("L_stage_done"); A.fence()
    if hstop == 4:
        e("s_waitcnt vmcnt(0) lgkmcnt(0)"); e("s_endpgm")
    e(f"s_cmp_lg_u32 s{sW}, 0")
    e("s_cbranch_scc1 L_ml_skip")
    e(f"v_lshlrev_b32 v{VA[5]}, 10, v{VC}")
    for b_ in range(2):
        spin_begin(f"L_ml1{b_}_spin")
        e(f"ds_read_b128 v[{T[0]}:{T[3]}], v{VZERO} offset:{L_ML + 32*b_}")
        e(f"ds_read_b128 v[{T[4]}:{T[7]}], v{VZERO} offset:{L_ML + 32*b_ + 16}")
        e(f"ds_read_b32 v{T[8]}, v{VZERO} offset:{L_CTL+20}")
        e("s_waitcnt lgkmcnt(0)")
        if b_ == 1: e(f"v_subrev_u32 v{T[8]}, 1, v{T[8]}")
        sentinel_check(rng(T[0], 9), T[9])
        spin_end(f"L_ml1{b_}_spin", f"L_ml1{b_}_done", slp=32)
        mw = [T[0], T[2], T[4], T[6]]; lw = [T[1], T[3], T[5], T[7]]; tmp = [T[10], T[11], T[12], T[13]]
        e(f"v_max3_f32 v{T[8]}, v{mw[0]}, v{mw[1]}, v{mw[2]}")
        e(f"v_max_f32 v{T[8]}, v{T[8]}, v{mw[3]}")
        for i in range(4):
            e(f"v_sub_f32 v{tmp[i]}, v{mw[i]}, v{T[8]}")
            e(f"v_mul_f32 v{tmp[i]}, {LOG2E}, v{tmp[i]}")
            e(f"v_exp_f32 v{tmp[i]}, v{tmp[i]}")
        e(f"v_mul_f32 v{T[9]}, v{tmp[0]}, v{lw[0]}")
        for i in range(1, 4): e(f"v_fmac_f32 v{T[9]}, v{tmp[i]}, v{lw[i]}")
        e(f"s_lshl_b32 s{sT0}, s{sLID}, 10")
        e(f"s_add_u32 s{sT0}, s{sT0}, {768 + 8*b_}")
        e("s_mov_b64 exec, 1")
        e(f"buffer_store_dwordx2 v[{T[8]}:{T[9]}], v{VZERO}, {srd(SRD_WS)}, s{sT0} offen sc1")
        e("s_mov_b64 exec, -1")
        e(f"s_lshl_b32 s{sT0}, s{sH}, 13")
        e(f"s_add_u32 s{sT0}, s{sT0}, {768 + 8*b_}")
        e("s_sleep 64")
        spin_begin(f"L_ml2{b_}_spin")
        e("s_mov_b64 exec, 0xff")
        e(f"buffer_load_dwordx2 v[{T[8]}:{T[9]}], v{VA[5]}, {srd(SRD_WS)}, s{sT0} offen sc1")
        e("s_waitcnt vmcnt(0)")
        e(f"v_max_u32 v{T[10]}, v{T[8]}, v{T[9]}")
        e(f"v_cmp_eq_u32 vcc, -1, v{T[10]}")
        spin_end(f"L_ml2{b_}_spin", f"L_ml2{b_}_done", slp=mlsleep)
        e(f"v_mov_b32 v{T[10]}, v{T[8]}")
        for ctl in ("quad_perm:[1,0,3,2]", "quad_perm:[2,3,0,1]", "row_half_mirror"):
            e(f"v_max_f32_dpp v{T[10]}, v{T[10]}, v{T[10]} {ctl} row_mask:0xf bank_mask:0xf")
        e(f"v_sub_f32 v{T[8]}, v{T[8]}, v{T[10]}")
        e(f"v_mul_f32 v{T[8]}, {LOG2E}, v{T[8]}")
        e(f"v_exp_f32 v{T[8]}, v{T[8]}")
        e(f"v_mul_f32 v{T[9]}, v{T[9]}, v{T[8]}")
        for ctl in ("quad_perm:[1,0,3,2]", "quad_perm:[2,3,0,1]", "row_half_mirror"):
            e(f"v_add_f32_dpp v{T[9]}, v{T[9]}, v{T[9]} {ctl} row_mask:0xf bank_mask:0xf")
        e(f"v_rcp_f32 v{T[9]}, v{T[9]}")
        for i in range(4):
            e(f"v_sub_f32 v{T[12+i]}, v{mw[i]}, v{T[10]}")
            e(f"v_mul_f32 v{T[12+i]}, {LOG2E}, v{T[12+i]}")
            e(f"v_exp_f32 v{T[12+i]}, v{T[12+i]}")
            e(f"v_mul_f32 v{T[12+i]}, v{T[12+i]}, v{T[9]}")
            e(f"v_min_u32 v{T[12+i]}, -2, v{T[12+i]}")
        e("s_mov_b64 exec, 1")
        e(f"ds_write_b128 v{VZERO}, v[{T[12]}:{T[15]}] offset:{L_F + 16*b_}")
        e("s_mov_b64 exec, -1")
    A.label("L_ml_skip"); A.fence()
    if hstop == 5:
        e("s_waitcnt vmcnt(0) lgkmcnt(0)"); e("s_endpgm")
    i_, g4 = VA[0], VA[1]
    e(f"v_and_b32 v{i_}, 15, v{VLANE}")
    e(f"v_lshrrev_b32 v{g4}, 4, v{VLANE}")
    e(f"v_add_u32 v{T[0]}, s{sRS}, v{VL16}")
    if dry:
        e(f"s_mov_b32 s{sDRY}, 1"); e(f"s_mov_b32 s{sOOB}, {OOB}"); e(f"s_mov_b32 s{sLIM}, 1")
    def barrier(lbl):
        if dry:
            e(f"s_cmp_lg_u32 s{sDRY}, 0")
            e(f"s_cbranch_scc1 {lbl}")
        e("s_barrier")
        if dry:
            A.label(lbl); A.fence()
    def wait_progress(lbl):
        e(f"s_mov_b32 s{sDRY}, 0"); e(f"s_mov_b32 s{sOOB}, 0"); e(f"s_mov_b32 s{sLIM}, {spin_limit}")
        e("s_mov_b64 exec, -1")
        e("s_waitcnt vmcnt(0) lgkmcnt(0)")
        spin_begin(lbl)
        e(f"ds_read_b32 v{T[0]}, v{VZERO} offset:{L_CTL+12}")
        e("s_waitcnt lgkmcnt(0)")
        e(f"v_cmp_eq_u32 vcc, 0, v{T[0]}")
        spin_end(lbl, lbl + "_done", slp=2)
    e(f"s_cmp_ge_u32 s{sMEM}, 5")
    e("s_cbranch_scc1 L_mlp")
    for f in range(12):
        e(f"ds_read_b128 v[{FRG+4*f}:{FRG+4*f+3}], v{T[0]} offset:{f*1024}")
    VOW, VBA, VYW, VM = VA[2], VA[3], VA[5], 96
    e(f"s_mul_i32 s{sT1}, s{sW}, 768")
    e(f"v_lshlrev_b32 v{VOW}, 3, v{VLANE}")
    e(f"v_add_u32 v{VOW}, s{sT1}, v{VOW}")
    e(f"v_and_b32 v{T[1]}, 1, v{i_}")
    e(f"v_mul_u32_u24 v{VBA}, 384, v{T[1]}")
    e(f"v_lshl_add_u32 v{VBA}, v{g4}, 4, v{VBA}")
    e(f"v_add_u32 v{VBA}, s{sT1}, v{VBA}")
    e(f"v_lshlrev_b32 v{VYW}, 7, v{T[1]}")
    e(f"v_lshl_add_u32 v{VYW}, v{g4}, 4, v{VYW}")
    e(f"s_lshl_b32 s{sT1}, s{sW}, 8")
    e(f"v_add_u32 v{VYW}, s{sT1}, v{VYW}")
    e(f"v_mov_b32 v{VM}, 768")
    col, VOUT, VXH, VYS = 97, 98, 99, 100
    e(f"v_and_b32 v{col}, 1, v{VLANE}")
    e(f"v_lshlrev_b32 v{col}, 2, v{col}")
    e(f"v_lshrrev_b32 v{T[1]}, 5, v{VLANE}")
    e(f"v_lshl_add_u32 v{col}, v{T[1]}, 1, v{col}")
    e(f"v_bfe_u32 v{T[1]}, v{VLANE}, 4, 1")
    e(f"v_add_u32 v{col}, v{col}, v{T[1]}")
    e(f"s_lshl_b32 s{sT0}, s{sR}, 3")
    e(f"v_add_u32 v{col}, s{sT0}, v{col}")
    e(f"v_lshlrev_b32 v{VOUT}, 1, v{col}")
    e(f"buffer_load_ushort v{VXH}, v{VOUT}, {srd(SRD_X)}, 0 offen")
    e(f"v_bfe_u32 v{T[3]}, v{VLANE}, 1, 3")
    e(f"v_mul_u32_u24 v{VYS}, 5120, v{T[3]}")
    e(f"v_lshl_add_u32 v{VYS}, v{col}, 2, v{VYS}")
    e(f"v_cmp_ne_u32 vcc, 0, v{T[3]}")
    e(f"v_mov_b32 v{T[3]}, {OOB}")
    e("s_waitcnt vmcnt(0) lgkmcnt(0)")
    e(f"v_cndmask_b32 v{VOUT}, v{VOUT}, v{T[3]}, vcc")
    e(f"v_lshlrev_b32 v{VXH}, 16, v{VXH}")
    PO = 32
    e(f"s_lshl_b32 s{sT0}, s{sXG}, 2")
    e(f"s_add_u32 s{sT0}, s{sT0}, s{sW}")
    e(f"s_lshl_b32 s{sOFF}, s{sT0}, 13")
    def a_loads(base):
        for s_ in range(8):
            so = sT0 if s_ < 4 else sT1
            e(f"buffer_load_dwordx4 v[{base+4*s_}:{base+4*s_+3}], v{VA[4]}, {srd(SRD_WS)}, s{so} offen offset:{1024*(s_&3)} {pf['a']}")
    def a_cons(base):
        o = T[8]
        for st in (1, 2, 4):
            for k in range(0, 8, 2*st):
                for i in (0, 2):
                    a_, b2 = base+4*k+i, base+4*(k+st)+i
                    d_ = o + i if st == 4 else a_
                    e(f"v_pk_add_f32 v[{d_}:{d_+1}], v[{a_}:{a_+1}], v[{b2}:{b2+1}]")
    def a_write(b_):
        e(f"v_cvt_pk_bf16_f32 v{T[4]}, v{T[8]}, v{T[9]}")
        e(f"v_cvt_pk_bf16_f32 v{T[5]}, v{T[10]}, v{T[11]}")
        e("s_mov_b32 exec_hi, 0xffff")
        e(f"ds_write_b64 v{VOW}, v[{T[4]}:{T[5]}] offset:{L_OB + 384*b_}")
        e("s_mov_b64 exec, -1")
    spin_begin("L_mid_spin")
    e(f"ds_read_b32 v{T[0]}, v{VZERO} offset:{L_F+16}")
    e(f"ds_read_b32 v{T[1]}, v{VZERO} offset:{L_CTL+8}")
    e("s_waitcnt lgkmcnt(0)")
    e(f"v_subrev_u32 v{T[1]}, 1, v{T[1]}")
    e(f"v_max_u32 v{T[0]}, v{T[0]}, v{T[1]}")
    e(f"v_cmp_eq_u32 vcc, -1, v{T[0]}")
    spin_end("L_mid_spin", "L_mid_done", slp=32)
    e(f"v_lshlrev_b32 v{T[2]}, 10, v{VC}")
    e(f"s_add_u32 s{sT0}, s{sOFF}, 776")
    spin_begin("L_p0_spin")
    e("s_mov_b64 exec, 0xff")
    e(f"buffer_load_dword v{T[0]}, v{T[2]}, {srd(SRD_WS)}, s{sT0} offen sc1")
    e("s_waitcnt vmcnt(0)")
    e(f"v_cmp_eq_u32 vcc, -1, v{T[0]}")
    spin_end("L_p0_spin", "L_p0_done", slp=mlsleep)
    e("s_mov_b64 exec, -1")
    if early0:
        e(f"s_add_u32 s{sT0}, s{sOFF}, {WS_P0}")
        e(f"s_add_u32 s{sT1}, s{sT0}, 4096")
        a_loads(PO)
        e("s_waitcnt vmcnt(0)")
        a_cons(PO); a_write(0)
        e(f"s_mov_b32 s{sT0}, s{sOFF}")
        e(f"s_add_u32 s{sT1}, s{sT0}, 4096")
        wait_progress("L_wo_wait0")
    else:
        e(f"s_add_u32 s{sT0}, s{sOFF}, {WS_P0}")
        e(f"s_add_u32 s{sT1}, s{sT0}, 4096")
        wait_progress("L_wo_wait0")
        a_loads(208)
        e(f"s_mov_b32 s{sT0}, s{sOFF}")
        e(f"s_add_u32 s{sT1}, s{sT0}, 4096")
        a_loads(PO)
        e("s_waitcnt vmcnt(8)")
        a_cons(208); a_write(0)
        e("s_waitcnt vmcnt(0)")
        a_cons(PO)
        e(f"v_pk_add_f32 v[{T[0]}:{T[1]}], v[{T[8]}:{T[9]}], v[{T[10]}:{T[11]}]")
        e(f"v_cmp_u_f32 vcc, v{T[0]}, v{T[1]}")
        e("s_cbranch_vccz L_a_ok")
    poll("a", a_loads, PO, a_cons, rng(T[8], 4), T[0])
    a_write(1)
    BF = 180
    for ks in range(6):
        e(f"ds_read_b128 v[{BF+4*ks}:{BF+4*ks+3}], v{VBA} offset:{L_OB + 64*ks}")
    D0, D1 = T[8], T[12]
    for ks in range(6):
        e(f"s_waitcnt lgkmcnt({5-ks})")
        for tl, D in ((0, D0), (1, D1)):
            c = "0" if ks == 0 else f"v[{D}:{D+3}]"
            f = FRG + 4*(6*tl + ks)
            e(f"v_mfma_f32_16x16x32_bf16 v[{D}:{D+3}], v[{f}:{f+3}], v[{BF+4*ks}:{BF+4*ks+3}], {c}")
    e("s_mov_b32 exec_lo, 0x00030003")
    e("s_mov_b32 exec_hi, 0x00030003")
    e(f"ds_write_b128 v{VYW}, v[{D0}:{D0+3}] offset:{L_YR}")
    e(f"ds_write_b128 v{VYW}, v[{D1}:{D1+3}] offset:{L_YR+64}")
    e("s_mov_b64 exec, -1")
    e("s_waitcnt lgkmcnt(0)")
    barrier("L_bar1")
    e(f"s_cmp_lg_u32 s{sW}, 0")
    e("s_cbranch_scc1 L_wo_exit")
    e(f"v_lshlrev_b32 v{T[0]}, 4, v{i_}")
    YS = 64
    for hh_ in range(4):
        e(f"ds_read_b128 v[{YS+4*hh_}:{YS+4*hh_+3}], v{T[0]} offset:{L_YR + 256*hh_}")
    e("s_waitcnt lgkmcnt(0)")
    for i in (0, 2):
        e(f"v_pk_add_f32 v[{YS+i}:{YS+i+1}], v[{YS+i}:{YS+i+1}], v[{YS+4+i}:{YS+4+i+1}]")
        e(f"v_pk_add_f32 v[{YS+8+i}:{YS+8+i+1}], v[{YS+8+i}:{YS+8+i+1}], v[{YS+12+i}:{YS+12+i+1}]")
    for i in (0, 2): e(f"v_pk_add_f32 v[{YS+i}:{YS+i+1}], v[{YS+i}:{YS+i+1}], v[{YS+8+i}:{YS+8+i+1}]")
    e(f"buffer_store_dwordx4 v[{YS}:{YS+3}], v{VYA}, {srd(SRD_WS)}, s{sOOB} offen {sf['h']}")
    stamp()
    Yr = 80
    e(f"s_mov_b32 s{sT0}, {WS_Y}")
    spin_begin("L_b_spin")
    e(f"buffer_load_dword v{Yr}, v{VYS}, {srd(SRD_WS)}, s{sT0} offen sc1")
    e("s_waitcnt vmcnt(0)")
    e(f"v_cmp_eq_u32 vcc, -1, v{Yr}")
    spin_end("L_b_spin", "L_b_done", slp=sl["b"])
    e(f"v_add_f32_dpp v{Yr}, v{Yr}, v{Yr} quad_perm:[2,3,0,1] row_mask:0xf bank_mask:0xf")
    e(f"v_mov_b32 v{T[6]}, v{Yr}")
    e(f"v_add_f32_dpp v{Yr}, v{T[6]}, v{T[6]} row_shr:4 row_mask:0xf bank_mask:0xa")
    e(f"v_add_f32_dpp v{Yr}, v{T[6]}, v{T[6]} row_shl:4 row_mask:0xf bank_mask:0x5")
    e(f"v_add_f32_dpp v{Yr}, v{Yr}, v{Yr} row_ror:8 row_mask:0xf bank_mask:0xf")
    bf16r(Yr)
    e(f"v_add_f32 v{Yr}, v{VXH}, v{Yr}")
    bf16r(Yr)
    stamp()
    Zr = 84
    e(f"s_lshr_b32 s{sT0}, s{sR}, 1")
    e(f"s_mul_i32 s{sT0}, s{sT0}, 6144")
    e(f"s_and_b32 s{sT1}, s{sR}, 1")
    e(f"s_lshl_b32 s{sT1}, s{sT1}, 5")
    e(f"s_add_u32 s{sT0}, s{sT0}, s{sT1}")
    e(f"s_add_u32 s{sT0}, s{sT0}, {WS_Z}")
    e(f"s_add_u32 s{sT1}, s{sT0}, 4096")
    e(f"v_lshrrev_b32 v{T[8]}, 1, v{VLANE}")
    e(f"v_lshlrev_b32 v{T[8]}, 6, v{T[8]}")
    e(f"v_and_b32 v{T[9]}, 1, v{VLANE}")
    e(f"v_lshl_add_u32 v{T[8]}, v{T[9]}, 4, v{T[8]}")
    def c_loads(base):
        for i in range(3):
            so, of = (sT0, 2048*i) if i < 2 else (sT1, 0)
            e(f"buffer_load_dwordx4 v[{base+4*i}:{base+4*i+3}], v{T[8]}, {srd(SRD_WS)}, s{so} offen offset:{of} {pf['c']}")
    def c_cons(base):
        for i in (0, 2):
            e(f"v_pk_add_f32 v[{Zr+i}:{Zr+i+1}], v[{base+i}:{base+i+1}], v[{base+4+i}:{base+4+i+1}]")
            e(f"v_pk_add_f32 v[{Zr+i}:{Zr+i+1}], v[{Zr+i}:{Zr+i+1}], v[{base+8+i}:{base+8+i+1}]")
    poll("c", c_loads, 32, c_cons, rng(Zr, 4), T[0])
    y = Zr
    e(f"v_permlane32_swap_b32 v{y}, v{y+2}")
    e(f"v_permlane32_swap_b32 v{y+1}, v{y+3}")
    e(f"v_add_f32 v{y}, v{y}, v{y+2}")
    e(f"v_add_f32 v{y+1}, v{y+1}, v{y+3}")
    e(f"v_permlane16_swap_b32 v{y}, v{y+1}")
    e(f"v_add_f32 v{y}, v{y}, v{y+1}")
    for k in (8, 4, 2):
        e(f"v_add_f32_dpp v{y}, v{y}, v{y} row_ror:{k} row_mask:0xf bank_mask:0xf")
    bf16r(y)
    e(f"v_add_f32 v{y}, v{y}, v{Yr}")
    e(f"v_cvt_pk_bf16_f32 v{y}, v{y}, v{y}")
    e(f"buffer_store_short v{y}, v{VOUT}, {srd(SRD_OUT)}, s{sOOB} offen")
    stamp()
    A.label("L_wo_exit"); A.fence()
    if dry:
        e(f"s_cmp_eq_u32 s{sDRY}, 0")
        e("s_cbranch_scc1 L_fin")
        wait_progress("L_wo_wait")
        e("s_branch L_wo_tail")
    else:
        e("s_branch L_fin")
    A.label("L_mlp"); A.fence()
    nstamp[0] = 1
    F1 = FRG; F2 = FRG + 24
    VF1, VF2 = 176, 177
    e(f"v_mov_b32 v{VF1}, v{T[0]}")
    e(f"v_lshrrev_b32 v{VF2}, 1, v{g4}")
    e(f"v_lshlrev_b32 v{VF2}, 8, v{VF2}")
    e(f"v_lshl_add_u32 v{VF2}, v{i_}, 4, v{VF2}")
    e(f"v_and_b32 v{T[4]}, 1, v{g4}")
    e(f"v_lshl_add_u32 v{VF2}, v{T[4]}, 3, v{VF2}")
    e(f"v_add_u32 v{VF2}, s{sRS}, v{VF2}")
    def frag_reads():
        for ks in range(5):
            e(f"ds_read_b128 v[{F1+4*ks}:{F1+4*ks+3}], v{VF1} offset:{ks*1024}")
        for tt in range(10):
            e(f"ds_read_b64 v[{F2+2*tt}:{F2+2*tt+1}], v{VF2} offset:{6144 + tt*512}")
    if not late: frag_reads()
    VGA, VLW, VLR, VZA, VHR, VDW, VDR = VA[2], VA[3], VA[5], 96, 97, 98, 99
    XH = 100
    e(f"s_mul_i32 s{sT0}, s{sW}, 640")
    e(f"v_add_u32 v{VGA}, s{sT0}, v{VL16}")
    e(f"v_cmp_gt_u32 vcc, 40, v{VLANE}")
    e(f"v_mov_b32 v{T[1]}, {OOB}")
    e(f"v_cndmask_b32 v{VGA}, v{T[1]}, v{VGA}, vcc")
    e(f"v_cmp_eq_u32 vcc, 40, v{VLANE}")
    e(f"v_cndmask_b32 v{VGA}, v{VGA}, v{VZERO}, vcc")
    e(f"v_lshrrev_b32 v{T[1]}, 1, v{VGA}")
    e(f"buffer_load_dwordx2 v[{T[8]}:{T[9]}], v{T[1]}, {srd(SRD_X)}, 0 offen")
    e(f"buffer_load_dwordx2 v[{T[10]}:{T[11]}], v{T[1]}, {srd(SRD_X)}, 0 offen offset:1280")
    e(f"s_mul_i32 s{sT0}, s{sW}, 640")
    e(f"s_add_u32 s{sT0}, s{sT0}, {L_LN}")
    e(f"v_lshlrev_b32 v{VLW}, 3, v{VLANE}")
    e(f"v_add_u32 v{VLW}, s{sT0}, v{VLW}")
    e(f"v_and_b32 v{T[4]}, 1, v{i_}")
    e(f"v_mul_u32_u24 v{VLR}, 320, v{T[4]}")
    e(f"v_lshl_add_u32 v{VLR}, v{g4}, 4, v{VLR}")
    e(f"v_add_u32 v{VLR}, s{sT0}, v{VLR}")
    e(f"v_lshlrev_b32 v{VDR}, 6, v{T[4]}")
    e(f"v_lshl_add_u32 v{VDR}, v{g4}, 4, v{VDR}")
    e(f"s_lshl_b32 s{sT0}, s{sW}, 7")
    e(f"v_add_u32 v{VDW}, s{sT0}, v{VDR}")
    e(f"v_mul_u32_u24 v{VZA}, {40*6144}, v{i_}")
    e(f"v_lshl_add_u32 v{VZA}, v{g4}, 4, v{VZA}")
    e(f"s_mul_i32 s{sT0}, s{sW}, {10*6144}")
    e(f"s_lshl_b32 s{sT1}, s{sF0}, 2")
    e(f"s_add_u32 s{sT0}, s{sT0}, s{sT1}")
    e(f"s_add_u32 s{sT0}, s{sT0}, {WS_Z}")
    e(f"v_add_u32 v{VZA}, s{sT0}, v{VZA}")
    e(f"v_cmp_lt_u32 vcc, 1, v{i_}")
    e(f"v_mov_b32 v{T[4]}, {OOB}")
    e(f"v_cndmask_b32 v{VZA}, v{VZA}, v{T[4]}, vcc")
    e(f"v_lshlrev_b32 v{VHR}, 2, v{g4}")
    e(f"s_lshl_b32 s{sT0}, s{sW}, 4")
    e(f"v_add_u32 v{VHR}, s{sT0}, v{VHR}")
    e("s_waitcnt vmcnt(0) lgkmcnt(0)")
    for i in range(4):
        e(f"v_lshlrev_b32 v{XH+2*i}, 16, v{T[8+i]}")
        e(f"v_and_b32 v{XH+2*i+1}, s{sMASK}, v{T[8+i]}")
    spin_begin("L_mid2_spin")
    e(f"ds_read_b32 v{T[0]}, v{VZERO} offset:{L_F+16}")
    e("s_waitcnt lgkmcnt(0)")
    e(f"v_cmp_eq_u32 vcc, -1, v{T[0]}")
    spin_end("L_mid2_spin", "L_mid2_done", slp=32)
    if late:
        spin_begin("L_late_spin")
        e(f"ds_read_b32 v{T[0]}, v{VZERO} offset:{L_CTL + (12 if latet >= 32 else 24)}")
        e("s_waitcnt lgkmcnt(0)")
        e(f"v_cmp_eq_u32 vcc, 0, v{T[0]}")
        spin_end("L_late_spin", "L_late_done", slp=2)
        e("s_mov_b32 exec_hi, 0xff")
        for rnd, (g_, sr, rs) in enumerate(((124, SRD_WA, 3072), (125, SRD_WB, 1280))):
            for kk in range(8):
                if kk: e(f"s_movk_i32 s{sT0}, {rs*kk}")
                d = 32 + 32*rnd + 4*kk
                e(f"buffer_load_dwordx4 v[{d}:{d+3}], v{g_}, {srd(sr)}, {'s%d' % sT0 if kk else '0'} offen {wflags}")
        for rnd in range(2):
            e(f"s_waitcnt vmcnt({8 - 8*rnd})")
            wb = 32 + 32*rnd
            for i in range(4):
                tb = 192 + 32*rnd + 8*i
                for kp in range(4):
                    e(f"v_perm_b32 v{tb+kp}, v{wb+4*(2*kp+1)+i}, v{wb+4*(2*kp)+i}, s{sPLO}")
                    e(f"v_perm_b32 v{tb+4+kp}, v{wb+4*(2*kp+1)+i}, v{wb+4*(2*kp)+i}, s{sPHI}")
                e(f"ds_write_b128 v{126+rnd}, v[{tb}:{tb+3}] offset:{32*i}")
                e(f"ds_write_b128 v{126+rnd}, v[{tb+4}:{tb+7}] offset:{32*i+16}")
            e("s_waitcnt lgkmcnt(0)")
        e("s_mov_b64 exec, -1")
        frag_reads()
    wait_progress("L_mlp_wait0")
    A.label("L_mlp_tail"); A.fence()
    YB = 108
    GA, GB = 32, 192
    def h_loads(base):
        for x in range(8):
            e(f"s_mov_b32 s{sT0}, {WS_Y + 5120*x}")
            for b_ in range(2):
                d = base + 8*x + 4*b_
                e(f"buffer_load_dwordx4 v[{d}:{d+3}], v{VGA}, {srd(SRD_WS)}, s{sT0} offen offset:{2560*b_} {pf['h']}")
    def h_cons(base):
        for st in (1, 2, 4):
            for x in range(0, 8, 2*st):
                for i in range(0, 8, 2):
                    a_, b2 = base+8*x+i, base+8*(x+st)+i
                    d_ = YB + i if st == 4 else a_
                    e(f"v_pk_add_f32 v[{d_}:{d_+1}], v[{a_}:{a_+1}], v[{b2}:{b2+1}]")
    if not inc:
        poll("h", h_loads, GA, h_cons, rng(YB, 8), T[0])
    else:
        sPEND = sOFF
        e(f"s_movk_i32 s{sPEND}, 0xff")
        spin_begin("L_hi_spin")
        for x in range(8):
            e(f"s_bitcmp1_b32 s{sPEND}, {x}")
            e(f"s_cbranch_scc0 L_hi_a{x}")
            e(f"s_mov_b32 s{sT0}, {WS_Y + 5120*x}")
            for b_ in range(2):
                d = GA + 8*x + 4*b_
                e(f"buffer_load_dwordx4 v[{d}:{d+3}], v{VGA}, {srd(SRD_WS)}, s{sT0} offen offset:{2560*b_} sc1")
            A.label(f"L_hi_a{x}"); A.fence()
        e("s_waitcnt vmcnt(0)")
        for x in range(8):
            d = GA + 8*x
            e(f"s_bitcmp1_b32 s{sPEND}, {x}")
            e(f"s_cbranch_scc0 L_hi_b{x}")
            e(f"v_pk_add_f32 v[{T[0]}:{T[1]}], v[{d}:{d+1}], v[{d+2}:{d+3}]")
            e(f"v_pk_add_f32 v[{T[2]}:{T[3]}], v[{d+4}:{d+5}], v[{d+6}:{d+7}]")
            e(f"v_pk_add_f32 v[{T[0]}:{T[1]}], v[{T[0]}:{T[1]}], v[{T[2]}:{T[3]}]")
            e(f"v_cmp_u_f32 vcc, v{T[0]}, v{T[1]}")
            e(f"s_cbranch_vccnz L_hi_b{x}")
            e(f"s_bitset0_b32 s{sPEND}, {x}")
            A.label(f"L_hi_b{x}"); A.fence()
        e(f"s_cmp_eq_u32 s{sPEND}, 0")
        e("s_cbranch_scc1 L_hi_done")
        e(f"s_add_u32 s{sSPIN}, s{sSPIN}, 1")
        e(f"s_cmp_ge_u32 s{sSPIN}, s{sLIM}")
        e("s_cbranch_scc1 L_hi_done")
        if sl['h']: e(f"s_sleep {sl['h']}")
        e("s_branch L_hi_spin")
        A.label("L_hi_done"); A.fence()
        h_cons(GA)
    stamp()
    for i in range(0, 8, 2):
        e(f"v_cvt_pk_bf16_f32 v{YB+i+1}, v{YB+i}, v{YB+i+1}")
        e(f"v_lshlrev_b32 v{YB+i}, 16, v{YB+i+1}")
        e(f"v_and_b32 v{YB+i+1}, s{sMASK}, v{YB+i+1}")
        e(f"v_pk_add_f32 v[{YB+i}:{YB+i+1}], v[{YB+i}:{YB+i+1}], v[{XH+i}:{XH+i+1}]")
        e(f"v_cvt_pk_bf16_f32 v{YB+i+1}, v{YB+i}, v{YB+i+1}")
        e(f"v_lshlrev_b32 v{YB+i}, 16, v{YB+i+1}")
        e(f"v_and_b32 v{YB+i+1}, s{sMASK}, v{YB+i+1}")
    e(f"v_readlane_b32 s{sT2}, v{YB}, 40")
    e(f"v_readlane_b32 s{sT3}, v{YB+4}, 40")
    S1 = [T[4], T[5]]; S2 = [T[6], T[7]]; DD = 48
    for r_ in S1 + S2: e(f"v_mov_b32 v{r_}, 0")
    e("s_mov_b32 exec_lo, -1"); e("s_mov_b32 exec_hi, 0xff")
    for b_ in range(2):
        for i in range(4): e(f"v_subrev_f32 v{DD+4*b_+i}, s{sT2+b_}, v{YB+4*b_+i}")
    for b_ in range(2):
        d = DD + 4*b_
        e(f"v_add_f32 v{S1[b_]}, v{d}, v{d+1}")
        e(f"v_mul_f32 v{S2[b_]}, v{d}, v{d}")
    for b_ in range(2):
        d = DD + 4*b_
        e(f"v_add_f32 v{S1[b_]}, v{S1[b_]}, v{d+2}")
        e(f"v_fmac_f32 v{S2[b_]}, v{d+1}, v{d+1}")
    for b_ in range(2):
        d = DD + 4*b_
        e(f"v_add_f32 v{S1[b_]}, v{S1[b_]}, v{d+3}")
        e(f"v_fmac_f32 v{S2[b_]}, v{d+2}, v{d+2}")
    for b_ in range(2): e(f"v_fmac_f32 v{S2[b_]}, v{DD+4*b_+3}, v{DD+4*b_+3}")
    e("s_mov_b64 exec, -1")
    e(f"v_permlane32_swap_b32 v{S1[0]}, v{S2[0]}")
    e(f"v_permlane32_swap_b32 v{S1[1]}, v{S2[1]}")
    e(f"v_add_f32 v{S1[0]}, v{S1[0]}, v{S2[0]}")
    e(f"v_add_f32 v{S1[1]}, v{S1[1]}, v{S2[1]}")
    e(f"v_permlane16_swap_b32 v{S1[0]}, v{S1[1]}")
    e(f"v_add_f32 v{S1[0]}, v{S1[0]}, v{S1[1]}")
    for ctl in ("quad_perm:[1,0,3,2]", "quad_perm:[2,3,0,1]", "row_half_mirror", "row_mirror"):
        e(f"v_add_f32_dpp v{S1[0]}, v{S1[0]}, v{S1[0]} {ctl} row_mask:0xf bank_mask:0xf")
    e("s_mov_b32 exec_lo, 0x00010001"); e("s_mov_b32 exec_hi, 0x00010001")
    e(f"ds_write_b32 v{VHR}, v{S1[0]} offset:{L_H}")
    e("s_mov_b64 exec, -1")
    e("s_waitcnt lgkmcnt(0)")
    if fine: stamp()
    barrier("L_bar2")
    if fine: stamp()
    for w in range(4):
        e(f"ds_read_b128 v[{DD+4*w}:{DD+4*w+3}], v{VZERO} offset:{L_H + 16*w}")
    e(f"v_mov_b32 v{T[8]}, s{sT2}")
    e(f"v_mov_b32 v{T[9]}, s{sT3}")
    e(f"s_mov_b32 s{sT0}, {hex(f32(1.0/640))}")
    e(f"v_mov_b32 v{T[10]}, s{sT0}")
    e("s_waitcnt lgkmcnt(0)")
    for i in (0, 2):
        e(f"v_pk_add_f32 v[{DD+i}:{DD+i+1}], v[{DD+i}:{DD+i+1}], v[{DD+4+i}:{DD+4+i+1}]")
        e(f"v_pk_add_f32 v[{DD+8+i}:{DD+8+i+1}], v[{DD+8+i}:{DD+8+i+1}], v[{DD+12+i}:{DD+12+i+1}]")
    for i in (0, 2): e(f"v_pk_add_f32 v[{DD+i}:{DD+i+1}], v[{DD+i}:{DD+i+1}], v[{DD+8+i}:{DD+8+i+1}]")
    for i in (0, 2): e(f"v_pk_mul_f32 v[{DD+i}:{DD+i+1}], v[{DD+i}:{DD+i+1}], v[{T[10]}:{T[11]}] op_sel_hi:[1,0]")
    e(f"v_pk_add_f32 v[{T[0]}:{T[1]}], v[{DD}:{DD+1}], v[{T[8]}:{T[9]}] neg_lo:[1,1] neg_hi:[1,1]")
    e(f"v_pk_fma_f32 v[{T[2]}:{T[3]}], v[{DD}:{DD+1}], v[{DD}:{DD+1}], v[{DD+2}:{DD+3}] neg_lo:[1,0,0] neg_hi:[1,0,0]")
    def bf16r2(a_):
        e(f"v_cvt_pk_bf16_f32 v{a_+1}, v{a_}, v{a_+1}")
        e(f"v_lshlrev_b32 v{a_}, 16, v{a_+1}")
        e(f"v_and_b32 v{a_+1}, s{sMASK}, v{a_+1}")
    for i in range(2): e(f"v_max_f32 v{T[2+i]}, 0, v{T[2+i]}")
    bf16r2(T[2]); bf16r2(T[0])
    for i in range(2): e(f"v_add_f32 v{T[2+i]}, {hex(f32(1e-5))}, v{T[2+i]}")
    bf16r2(T[2])
    for i in range(2): e(f"v_sqrt_f32 v{T[2+i]}, v{T[2+i]}")
    bf16r2(T[2])
    for i in range(2): e(f"v_rcp_f32 v{T[2+i]}, v{T[2+i]}")
    for b_ in range(2):
        for i in range(2):
            norm_pair(YB + 4*b_ + 2*i, b_, dst=T[8 + 2*b_ + i])
    e(f"v_cmp_gt_u32 vcc, 40, v{VLANE}")
    e("s_mov_b64 exec, vcc")
    e(f"ds_write_b64 v{VLW}, v[{T[8]}:{T[9]}]")
    e(f"ds_write_b64 v{VLW}, v[{T[10]}:{T[11]}] offset:320")
    e("s_mov_b64 exec, -1")
    BF = 72
    for ks in range(5):
        e(f"ds_read_b128 v[{BF+4*ks}:{BF+4*ks+3}], v{VLR} offset:{64*ks}")
    D = T[8]
    for ks in range(5):
        e(f"s_waitcnt lgkmcnt({4-ks})")
        c = "0" if ks == 0 else f"v[{D}:{D+3}]"
        e(f"v_mfma_f32_16x16x32_bf16 v[{D}:{D+3}], v[{F1+4*ks}:{F1+4*ks+3}], v[{BF+4*ks}:{BF+4*ks+3}], {c}")
    e("s_mov_b32 exec_lo, 0x00030003")
    e("s_mov_b32 exec_hi, 0x00030003")
    e(f"ds_write_b128 v{VDW}, v[{D}:{D+3}] offset:{L_DX}")
    e("s_mov_b64 exec, -1")
    e("s_waitcnt lgkmcnt(0)")
    if fine: stamp()
    barrier("L_bar3")
    if fine: stamp()
    for w in range(4):
        e(f"ds_read_b128 v[{YB+4*w}:{YB+4*w+3}], v{VDR} offset:{L_DX + 128*w}")
    e("s_waitcnt lgkmcnt(0)")
    for i in (0, 2):
        e(f"v_pk_add_f32 v[{YB+i}:{YB+i+1}], v[{YB+i}:{YB+i+1}], v[{YB+4+i}:{YB+4+i+1}]")
        e(f"v_pk_add_f32 v[{YB+8+i}:{YB+8+i+1}], v[{YB+8+i}:{YB+8+i+1}], v[{YB+12+i}:{YB+12+i+1}]")
    for i in (0, 2): e(f"v_pk_add_f32 v[{YB+i}:{YB+i+1}], v[{YB+i}:{YB+i+1}], v[{YB+8+i}:{YB+8+i+1}]")
    D = YB
    for i in range(4): bf16r(D+i)
    for i in range(4): e(f"v_mul_f32 v{T[i]}, {hex(f32(-1.4426950408889634))}, v{D+i}")
    for i in range(4): e(f"v_exp_f32 v{T[i]}, v{T[i]}")
    for i in range(4): e(f"v_add_f32 v{T[i]}, 1.0, v{T[i]}")
    for i in range(4): e(f"v_rcp_f32 v{T[i]}, v{T[i]}")
    for i in range(4): e(f"v_mul_f32 v{D+i}, v{D+i}, v{T[i]}")
    e(f"v_cvt_pk_bf16_f32 v{T[4]}, v{D}, v{D+1}")
    e(f"v_cvt_pk_bf16_f32 v{T[5]}, v{D+2}, v{D+3}")
    ZD = 180
    for tt in range(10):
        e(f"v_mfma_f32_16x16x16_bf16 v[{ZD+4*tt}:{ZD+4*tt+3}], v[{F2+2*tt}:{F2+2*tt+1}], v[{T[4]}:{T[5]}], 0")
    if fine: stamp()
    if xm:
        e("s_mov_b32 exec_lo, 0x00030003"); e("s_mov_b32 exec_hi, 0x00030003")
    for tt in range(10):
        e(f"s_add_u32 s{sT0}, s{sOOB}, {tt*6144}")
        e(f"buffer_store_dwordx4 v[{ZD+4*tt}:{ZD+4*tt+3}], v{VZA}, {srd(SRD_WS)}, s{sT0} offen {sf['c']}")
    stamp()
    if dry:
        e(f"s_cmp_eq_u32 s{sDRY}, 0")
        e("s_cbranch_scc1 L_fin")
        wait_progress("L_mlp_wait")
        e("s_branch L_mlp_tail")
    A.label("L_fin"); A.fence()
    if fine:
        e("s_waitcnt lgkmcnt(0)")
        e(f"s_lshl_b32 s{sT0}, s2, 2"); e(f"s_add_u32 s{sT0}, s{sT0}, s{sW}"); e(f"s_lshl_b32 s{sT0}, s{sT0}, 6")
        e(f"s_add_u32 s{sT0}, s{sT0}, {WS_STAMP + 0x10000}")
        e("s_mov_b64 exec, 1")
        for i in range(8):
            e(f"v_mov_b32 v{T[2]}, s{sST+2*i}")
            e(f"v_mov_b32 v{T[3]}, s{sST+2*i+1}")
            e(f"buffer_store_dwordx2 v[{T[2]}:{T[3]}], v{VZERO}, {srd(SRD_WS)}, s{sT0} offen offset:{8*i}")
            e("s_nop 1")
    elif stamps and not prog:
        e(f"s_cmp_lg_u32 s{sW}, 0")
        e("s_cbranch_scc1 L_end")
        e("s_waitcnt lgkmcnt(0)")
        e(f"s_lshl_b32 s{sT0}, s2, 7")
        e(f"s_add_u32 s{sT0}, s{sT0}, {WS_STAMP + 64 + 32}")
        e("s_mov_b64 exec, 1")
        for i in range(1, 4):
            e(f"v_mov_b32 v{T[2]}, s{sST+2*i}")
            e(f"v_mov_b32 v{T[3]}, s{sST+2*i+1}")
            e(f"buffer_store_dwordx2 v[{T[2]}:{T[3]}], v{VZERO}, {srd(SRD_WS)}, s{sT0} offen offset:{8*i}")
            e("s_nop 1")
    A.label("L_end")
    A.raw("    s_endpgm")
    A.raw(f""".section .rodata,"a"
.p2align 6
.amdhsa_kernel {NAME}
  .amdhsa_next_free_vgpr 256
  .amdhsa_next_free_sgpr 102
  .amdhsa_accum_offset 256
  .amdhsa_group_segment_fixed_size 0
  .amdhsa_kernarg_size 88
  .amdhsa_user_sgpr_count 2
  .amdhsa_user_sgpr_kernarg_segment_ptr 1
  .amdhsa_system_sgpr_workgroup_id_x 1
  .amdhsa_float_denorm_mode_32 3
.end_amdhsa_kernel""")
    return A.text()

if __name__ == "__main__":
    out = sys.argv[1] if len(sys.argv) > 1 else "sequential_preLN__mha_block_cached__dense_activation_silu__decode.s"
    kw = eval("dict(%s)" % sys.argv[2]) if len(sys.argv) > 2 else {}
    open(out, "w").write(gen(**kw))
```
